```python
import torch

def _softmax(x, axis=-1):
    return torch.softmax(x, dim=axis)

def _gelu(x):
    return torch.nn.functional.gelu(x, approximate='tanh')

def _silu(x):
    return torch.nn.functional.silu(x)

def _sigmoid(x):
    return torch.sigmoid(x)

def _layernorm(x, axis=-1, eps=1e-05):
    m = x.mean(dim=axis, keepdim=True)
    v = x.var(dim=axis, keepdim=True, unbiased=False)
    return (x - m) / torch.sqrt(v + eps)

def _scatter_add(tgt, idx, src, axis=0):
    return tgt.clone().index_add_(axis, idx, src)

def _segment_sum(src, seg, n):
    out = torch.zeros((n,) + src.shape[1:], dtype=src.dtype)
    return out.index_add_(0, seg, src)

def _pad(x, pw):
    flat = tuple((v for pair in reversed(pw) for v in pair))
    return torch.nn.functional.pad(x, flat)
kernel_name = 'concat_heads__compressed_kv_cla__memory_aug_recurrent_mem_tr__prompt'

def setup_inputs():

    _w = lambda a: (lambda t: t.to(torch.bfloat16) if t.is_floating_point() else t)(torch.as_tensor(a))

    def _A_setup():
        B, H, Sq, Sk, D, M = (1, 32, 2048, 2048, 128, 576)
        Dc = 4 * D
        return {'x': _w((lambda *s: torch.randn(*s, dtype=torch.bfloat16) * 1.6)(B, Sq, M)), 'c_kv': _w((lambda *s: torch.randn(*s, dtype=torch.bfloat16) * 0.2)(B, Sk, Dc)), 'w_q': _w((lambda *s: torch.randn(*s, dtype=torch.bfloat16) * 3.2)(M, H, D) * M ** (-0.5)), 'w_uk': _w((lambda *s: torch.randn(*s, dtype=torch.bfloat16) * 3.2)(Dc, H, D) * Dc ** (-0.5)), 'w_uv': _w((lambda *s: torch.randn(*s, dtype=torch.bfloat16) * 0.2)(Dc, H, D) * Dc ** (-0.5)), 'w_o': _w((lambda *s: torch.randn(*s, dtype=torch.bfloat16) * 0.2)(H, D, M) * (H * D) ** (-0.5))}
    _A_in = _A_setup()

    def _B_setup():
        B, S, Dm = (1, 2048, 576)
        H, Dh = (32, 128)
        M, seg = (8, 32)
        seg = min(seg, S)
        S = S // seg * seg
        return {'x': _w((lambda *s: torch.randn(*s, dtype=torch.bfloat16) * 0.05)(B, S, Dm)), 'mem0': _w((lambda *s: torch.randn(*s, dtype=torch.bfloat16) * 0.4)(B, M, Dm)), 'Wq': _w((lambda *s: torch.randn(*s, dtype=torch.bfloat16) * 6.4)(Dm, H, Dh) * Dm ** (-0.5)), 'Wk': _w((lambda *s: torch.randn(*s, dtype=torch.bfloat16) * 6.4)(Dm, H, Dh) * Dm ** (-0.5)), 'Wv': _w((lambda *s: torch.randn(*s, dtype=torch.bfloat16) * 0.4)(Dm, H, Dh) * Dm ** (-0.5)), 'Wo': _w((lambda *s: torch.randn(*s, dtype=torch.bfloat16) * 0.4)(H, Dh, Dm) * (H * Dh) ** (-0.5)), 'seg_len': seg}
    _B_in = _B_setup()
    return {'A_x': _A_in['x'], 'A_c_kv': _A_in['c_kv'], 'A_w_q': _A_in['w_q'], 'A_w_uk': _A_in['w_uk'], 'A_w_uv': _A_in['w_uv'], 'A_w_o': _A_in['w_o'], 'B_x': _B_in['x'], 'B_mem0': _B_in['mem0'], 'B_Wq': _B_in['Wq'], 'B_Wk': _B_in['Wk'], 'B_Wv': _B_in['Wv'], 'B_Wo': _B_in['Wo'], 'B_seg_len': _B_in['seg_len']}

def reference(A_x, A_c_kv, A_w_q, A_w_uk, A_w_uv, A_w_o, B_x, B_mem0, B_Wq, B_Wk, B_Wv, B_Wo, B_seg_len):

    def _A_ref(x, c_kv, w_q, w_uk, w_uv, w_o):
        B, Sq, M = (x.shape[0], x.shape[1], x.shape[2])
        Sk = c_kv.shape[1]
        H, D = (w_q.shape[1], w_q.shape[2])
        q = torch.einsum('bqm,mhd->bhqd', x, w_q)
        k = torch.einsum('bkc,chd->bhkd', c_kv, w_uk)
        v = torch.einsum('bkc,chd->bhkd', c_kv, w_uv)
        scores = torch.einsum('bhqd,bhkd->bhqk', q, k) * D ** (-0.5)
        off = Sk - Sq
        qi = torch.arange(Sq)[:, None]
        kj = torch.arange(Sk)[None, :]
        cmask = kj <= qi + off
        scores = torch.where(cmask[None, None], scores, -1000000000.0)
        p = _softmax(scores, axis=-1)
        ctx = torch.einsum('bhqk,bhkd->bhqd', p, v)
        return torch.einsum('bhqd,hdm->bqm', ctx, w_o)

    def _B_ref(x, mem0, Wq, Wk, Wv, Wo, seg_len):
        B, S, Dm = x.shape
        H, Dh = (Wq.shape[1], Wq.shape[2])
        M = mem0.shape[1]
        scale = Dh ** (-0.5)
        n_seg = S // seg_len
        L = M + seg_len
        idx = torch.arange(L)
        mask = (idx[:, None] < M) | (idx[:, None] >= idx[None, :])
        mem = mem0
        outs = []
        for s in range(n_seg):
            xs = x[:, s * seg_len:(s + 1) * seg_len, :].clone()
            h = torch.concatenate([mem, xs], axis=1)
            q = torch.einsum('btd,dhe->bhte', h, Wq)
            k = torch.einsum('btd,dhe->bhte', h, Wk)
            v = torch.einsum('btd,dhe->bhte', h, Wv)
            scores = torch.einsum('bhqe,bhke->bhqk', q, k) * scale
            scores = torch.where(mask[None, None], scores, -1000000000.0)
            p = _softmax(scores, axis=-1)
            o = torch.einsum('bhqk,bhke->bhqe', p, v)
            o = torch.einsum('bhte,hed->btd', o, Wo)
            mem = o[:, :M, :].clone()
            outs.append(o[:, M:, :])
        return torch.concatenate(outs, axis=1)
    a = _A_ref(A_x, A_c_kv, A_w_q, A_w_uk, A_w_uv, A_w_o)
    b = _B_ref(B_x, B_mem0, B_Wq, B_Wk, B_Wv, B_Wo, B_seg_len)
    return torch.concatenate([a, b], axis=-1)
```

```python
import re

def v(a, n=1): return f"v{a}" if n == 1 else f"v[{a}:{a+n-1}]"
def a_(a, n=1): return f"a{a}" if n == 1 else f"a[{a}:{a+n-1}]"
def s(a, n=1): return f"s{a}" if n == 1 else f"s[{a}:{a+n-1}]"
def R(r, n=1):
    assert (r < 256) == (r + n - 1 < 256), (r, n)
    return v(r, n) if r < 256 else a_(r - 256, n)

_reg = re.compile(r"^(-|abs\()?([vas])(\d+|\[(\d+):(\d+)\])\)?$")
def regs_of(op):
    op = op.strip()
    if op in ("vcc", "vcc_lo", "vcc_hi"): return {("s", "vcc")}
    if op in ("exec", "exec_lo", "exec_hi"): return {("s", "exec")}
    if op == "m0": return {("s", "m0")}
    m = _reg.match(op)
    if not m: return set()
    k = m.group(2)
    if m.group(4) is not None: lo, hi = int(m.group(4)), int(m.group(5))
    else: lo = hi = int(m.group(3))
    if k == "a": k, lo, hi = "v", lo + 256, hi + 256
    return {(k, i) for i in range(lo, hi + 1)}

TRANS = ("v_exp_f32", "v_log_f32", "v_rcp_f32", "v_rsq_f32", "v_sqrt_f32", "v_sin_f32", "v_cos_f32", "v_rcp_iflag_f32")

class Ins:
    __slots__ = ("text", "op", "ops", "kind", "defs", "uses", "passes", "srcA", "srcB", "srcC", "dpp", "trans",
                 "perm", "stdata", "lds_dma", "label", "target", "states", "rdlane_src", "sread", "lanesel")
    def __init__(self, text):
        self.text = text
        t = text.split(";")[0].strip()
        self.label = None; self.target = None; self.kind = "none"; self.defs = set(); self.uses = set()
        self.passes = 0; self.srcA = self.srcB = self.srcC = set(); self.dpp = False; self.trans = False
        self.perm = False; self.stdata = set(); self.lds_dma = False; self.states = 1; self.rdlane_src = set()
        self.sread = set(); self.lanesel = set(); self.op = ""; self.ops = []
        if not t or t.startswith("."):
            self.states = 0; return
        if t.endswith(":"):
            self.label = t[:-1]; self.states = 0; return
        p = t.split(None, 1)
        op = self.op = p[0]
        rest = p[1] if len(p) > 1 else ""
        bm = " ".join(re.findall(r"\s\w+:\[[^\]]*\]", rest))
        rest = re.sub(r"\s\w+:\[[^\]]*\]", "", rest)
        ops = [x.strip() for x in rest.split(",")] if rest else []
        mods = ""
        if ops:
            q = ops[-1].split(None, 1)
            ops[-1] = q[0]; mods = q[1] if len(q) > 1 else ""
        mods += bm
        self.ops = ops
        ro = [regs_of(x) for x in ops]
        U = lambda l: set().union(*l) if l else set()
        if op.startswith("v_mfma") or op.startswith("v_smfmac"):
            self.kind = "mfma"
            self.passes = 8 if "32x32" in op else 4
            assert "bf16" in op and "4x4" not in op, op
            self.defs = ro[0]; self.srcA = ro[1]; self.srcB = ro[2]
            if op.startswith("v_smfmac"):
                self.srcC = ro[0]; self.srcB = ro[2] | ro[3]
            else:
                self.srcC = ro[3]
            self.uses = self.srcA | self.srcB | self.srcC
        elif op.startswith("v_"):
            self.kind = "valu"
            base = op.replace("_e32", "").replace("_e64", "").replace("_dpp", "").replace("_sdwa", "")
            self.trans = base in TRANS
            self.dpp = "_dpp" in op or "row_" in mods or "quad_perm" in mods
            if base.startswith("v_permlane"):
                self.perm = True; self.defs = ro[0] | ro[1]; self.uses = ro[0] | ro[1]
            elif base.startswith("v_cmpx"):
                self.defs = ro[0] | {("s", "exec")}; self.uses = U(ro[1:])
            elif base in ("v_add_co_u32", "v_sub_co_u32", "v_addc_co_u32", "v_subb_co_u32", "v_mad_u64_u32"):
                self.defs = ro[0] | ro[1]; self.uses = U(ro[2:])
            elif base in ("v_readfirstlane_b32", "v_readlane_b32"):
                self.defs = ro[0]; self.uses = U(ro[1:]); self.rdlane_src = ro[1]
                if len(ro) > 2: self.lanesel = ro[2]
            elif base == "v_writelane_b32":
                self.defs = ro[0]; self.uses = U(ro); self.lanesel = ro[2]
            elif base == "v_nop":
                pass
            else:
                self.defs = ro[0]; self.uses = U(ro[1:])
                if base.startswith("v_fmac") or base.startswith("v_dot2c") or self.dpp: self.uses |= ro[0]
            self.sread = {r for r in self.uses if r[0] == "s"} - self.lanesel
        elif op.startswith("ds_"):
            self.kind = "ds"
            if op.startswith("ds_read") or "permute" in op or "swizzle" in op or "_rtn" in op:
                self.defs = ro[0]; self.uses = U(ro[1:])
            else:
                self.uses = U(ro)
        elif op.startswith("buffer_") or op.startswith("global_"):
            self.kind = "vmem"
            allm = mods.split()
            if op in ("buffer_wbl2", "buffer_inv"):
                pass
            elif "lds" in allm or "load_lds" in op:
                self.lds_dma = True; self.uses = U(ro) | {("s", "m0")}
            elif "_load_" in op:
                self.defs = ro[0]; self.uses = U(ro[1:])
                if "d16" in op: self.uses |= ro[0]
            elif "_store_" in op:
                self.uses = U(ro)
                d = ro[0] if op.startswith("buffer_") else ro[1]
                if "x3" in op or "x4" in op: self.stdata = d
            elif "_atomic_" in op:
                self.uses = U(ro)
                if "sc0" in allm: self.defs = ro[0]
            else:
                raise ValueError(text)
        elif op.startswith("s_"):
            self.kind = "salu"
            if op == "s_nop":
                self.states = int(ops[0], 0) + 1
            elif op.startswith("s_cbranch") or op == "s_branch":
                self.target = ops[0]
            elif op in ("s_waitcnt", "s_barrier", "s_endpgm", "s_sleep", "s_setprio") or op.startswith("s_cmp") or op.startswith("s_bitcmp"):
                self.uses = U(ro)
            elif op.startswith("s_setpc"):
                self.uses = U(ro)
            else:
                self.defs = ro[0] if ro else set(); self.uses = U(ro[1:])
                if "saveexec" in op: self.defs = self.defs | {("s", "exec")}
        else:
            raise ValueError("unknown instr: " + text)

def need(p, c):
    n = 0
    vd = {r for r in p.defs if r[0] == "v"}
    sd = {r for r in p.defs if r[0] == "s"}
    if p.kind == "valu":
        if c.kind == "mfma":
            if vd & c.uses: n = max(n, 2)
            if ("s", "exec") in sd: n = max(n, 4)
        if c.kind == "valu":
            if (c.perm or c.dpp) and vd & c.uses: n = max(n, 2)
            if vd & c.rdlane_src: n = max(n, 1)
            if p.trans and vd & c.uses: n = max(n, 1)
            if sd & c.sread: n = max(n, 2)
            if sd & c.lanesel: n = max(n, 4)
            if ("s", "exec") in sd and (c.perm or c.rdlane_src or c.dpp): n = max(n, 5)
        if c.kind == "vmem" and sd & c.uses: n = max(n, 5)
        if c.kind == "salu" and sd & c.uses and not c.target: n = max(n, 1)
    elif p.kind == "mfma":
        P = p.passes
        if c.kind == "mfma":
            if vd & c.srcC:
                if not (vd == c.srcC and c.passes == P): n = max(n, P + 2)
            if vd & (c.srcA | c.srcB): n = max(n, P + 4)
            if vd & c.defs and not vd & c.srcC and not (vd == c.defs and c.passes == P): n = max(n, P + 2)
        elif c.kind in ("valu", "ds", "vmem"):
            if vd & (c.uses | c.defs): n = max(n, P + 4)
            if p.srcC & c.defs: n = max(n, P - 1)
    elif p.kind == "vmem":
        if p.stdata & c.defs: n = max(n, 2)
    elif p.kind == "salu":
        if ("s", "m0") in sd and c.lds_dma: n = max(n, 1)
    return n

def fix_hazards(lines, verbose=False):
    ins = [Ins(l) for l in lines]
    MAXW = 13
    total = 0
    for it in range(10):
        labels = {x.label: i for i, x in enumerate(ins) if x.label}
        jumps = {}
        for i, x in enumerate(ins):
            if x.target in labels: jumps.setdefault(labels[x.target], []).append(i)
        def preds(i):
            r = list(jumps.get(i, [])) if ins[i].label else []
            if i > 0 and ins[i-1].op not in ("s_branch", "s_endpgm", "s_setpc_b64"): r.append(i - 1)
            return r
        add = {}
        for i, c in enumerate(ins):
            if c.kind in ("none",): continue
            worst = 0
            stack = [(j, 0) for j in preds(i)]
            seen = {}
            while stack:
                j, d = stack.pop()
                if seen.get(j, 99) <= d: continue
                seen[j] = d
                p = ins[j]
                if p.kind != "none":
                    k = need(p, c) - d
                    if k > worst: worst = k
                d2 = d + p.states + add.get(j, 0)
                if d2 < MAXW:
                    stack.extend((q, d2) for q in preds(j))
            if worst > 0: add[i] = worst
        if not add: break
        out = []
        for i, x in enumerate(ins):
            if i in add:
                n = add[i]; total += n
                if verbose: print(f"hazard: +{n} before: {x.text}")
                out.append(Ins(f"s_nop {n-1}"))
            out.append(x)
        ins = out
    return [x.text for x in ins]

class Asm:
    def __init__(self):
        self.l = []
        self._u = 0
    def __call__(self, text):
        for t in text.split("\n"):
            t = t.strip()
            if t: self.l.append(t)
    def label(self, name): self.l.append(name + ":")
    def uniq(self, p="L"):
        self._u += 1; return f"{p}_{self._u}"
    def srd(self, d, base, nbytes):
        self(f"s_mov_b32 s{d}, s{base}\ns_and_b32 s{d+1}, s{base+1}, 0xffff\ns_mov_b32 s{d+2}, {nbytes}\ns_mov_b32 s{d+3}, 0x20000")
    def text(self, verbose=False):
        return "\n".join(fix_hazards(self.l, verbose)) + "\n"

def interleave(main, fill, per=1, start=0):
    out = []; k = 0
    for i, m in enumerate(main):
        out.append(m)
        if i >= start:
            for _ in range(per):
                if k < len(fill): out.append(fill[k]); k += 1
    return out + fill[k:]
```

```python
from common import *
import gemm as G

O0 = 128
SB = [32, 64]
PB = [96, 112]
QA = 256
FR = 256 + 64
M_, L_, AL, TM = 20, 22, 24, 26
A_DM, A_KC, A_KN, A_VP = 1, 2, 3, 4
A_MK, A_CT = 5, 6
S_C, S_J, S_H, S_T, S_TD, S_NT, S_SO, S_M0, S_FL, S_KVH, S_NEG, S_THR = 40, 41, 42, 43, 44, 45, 46, 47, 48, 49, 50, 51
S_RET, S_SUB = 52, 54
Oa = lambda T, a: O0 + 16*(2*T + a)
mf32 = lambda d, a, b, c: f"v_mfma_f32_32x32x16_bf16 {R(d,16)}, {R(a,4)}, {R(b,4)}, {c}"

def consts(A):
    A(f"s_mov_b32 s{S_C}, {f32bits(SCALE_LOG2E):#x}\ns_mov_b32 s{S_NEG}, {f32bits(-1e30):#x}\ns_mov_b32 s{S_THR}, {f32bits(8.0):#x}")

def qproj(A, name):
    A(f"s_lshl_b32 s{S_T2}, s{S_H}, 8")
    G.setup(A, False, 1152, S_T2)
    G.run(A, False, 18, O0, FR, name)
    for a in range(2):
        for T in range(4):
            for i in range(8):
                r = Oa(T, a) + 2*i
                A(f"v_cvt_pk_bf16_f32 v{r}, v{r}, v{r+1}")
            for i in range(8):
                A(f"v_accvgpr_write_b32 a{32*a + 8*T + i}, v{Oa(T, a) + 2*i}")

def lane_regs(A):
    A(f"""v_and_b32 v{A_MK}, 31, v{TID}
    v_bfe_u32 v{TM}, v{TID}, 5, 1
    v_lshlrev_b32 v{TM+1}, 2, v{TM}
    v_sub_u32 v{A_MK}, v{A_MK}, v{TM+1}
    v_bfe_u32 v{TM+1}, v{TID}, 4, 1
    v_lshlrev_b32 v{A_CT}, 17, v{TM+1}
    v_lshl_add_u32 v{A_CT}, v{TM}, 8, v{A_CT}
    v_and_b32 v{TM+1}, 15, v{TID}
    v_lshl_add_u32 v{A_CT}, v{TM+1}, 4, v{A_CT}""")

def diag_mask(S):
    l = []
    for r in range(16):
        l += [f"v_cmp_le_i32 vcc, {8*(r >> 2) + (r & 3)}, v{A_MK}", f"v_cndmask_b32 v{S+r}, v{TM+5}, v{S+r}, vcc"]
    return [f"v_mov_b32 v{TM+5}, s{S_NEG}"] + l

def ctx_store(A, a, s_off, lreg):
    t = TM
    A(f"""v_mov_b32 v{t}, v{lreg}
    v_permlane32_swap_b32 v{t}, v{lreg}
    v_add_f32 v{t}, v{t}, v{lreg}
    v_rcp_f32 v{t}, v{t}""")
    for T in range(4):
        o = Oa(T, a)
        for i in range(0, 16, 2): A(f"v_pk_mul_f32 {v(o+i,2)}, {v(o+i,2)}, {v(t,2)} op_sel_hi:[1,0]")
        for hf in range(2):
            for i in range(4): A(f"v_cvt_pk_bf16_f32 v{o+8*hf+i}, v{o+8*hf+2*i}, v{o+8*hf+2*i+1}")
            A(f"buffer_store_dwordx4 {v(o+8*hf,4)}, v{A_CT}, {buf(S_WS, s(s_off))} offset:{T*1024 + hf*512} sc1")

NR = 8
LEAD = 4

def emit_A(A, name, L_fail):
    lane_regs(A)
    A(f"""v_and_b32 v{A_KC}, 63, v{TID}
    v_lshlrev_b32 v{A_KC}, 4, v{A_KC}
    s_lshl_b32 s{S_T0}, s{S_WV}, 13
    v_add_u32 v{A_DM}, s{S_T0}, v{A_KC}
    v_add_u32 v{A_KN}, {G.BUFSZ}, v{A_KC}
    v_mov_b32 v{A_VP}, v{A_KC}
    s_lshl_b32 s{S_SO}, s{S_H}, 20
    s_add_u32 s{S_SO}, s{S_SO}, {KVA}
    s_mov_b32 s{S_M0}, s{S_T0}
    s_lshl_b32 s{S_TD}, s{S_J}, 2
    s_add_u32 s{S_NT}, s{S_TD}, 4
    s_add_u32 s{S_TD}, s{S_TD}, s{S_WV}
    s_mov_b32 s{S_T}, 0
    s_mov_b32 s{S_FL}, 0
    s_barrier""")
    def dma():
        l = [[f"s_mov_b32 m0, s{S_M0}", f"s_add_u32 s{S_T0}, s{S_SO}, 4096"]]
        l += [[f"buffer_load_dwordx4 v{A_DM}, {buf(S_WS, s(S_SO))} offset:{1024*j} sc1 lds"] for j in range(4)]
        l[-1].append(f"s_add_u32 m0, s{S_M0}, 4096")
        l += [[f"buffer_load_dwordx4 v{A_DM}, {buf(S_WS, s(S_T0))} offset:{1024*j} sc1 lds"] for j in range(4)]
        l[-1] += [f"s_add_u32 s{S_SO}, s{S_SO}, {G.BUFSZ}", f"s_add_u32 s{S_M0}, s{S_M0}, {G.BUFSZ}", f"s_and_b32 s{S_M0}, s{S_M0}, {4*G.BUFSZ-1}"]
        return l
    sel = [f"s_add_u32 s{S_T0}, s{S_T}, 3", f"s_cmp_lt_u32 s{S_T0}, s{S_NT}", f"s_cselect_b32 s{S_SO}, s{S_SO}, {OOB}"]
    for t in range(3):
        for g in dma():
            for x in g: A(x)
    for r in range(O0, O0 + 128, 2): A(f"v_mov_b64 {v(r,2)}, 0")
    for r in range(PB[1], PB[1] + 16, 2): A(f"v_mov_b64 {v(r,2)}, 0")
    A(f"v_mov_b32 v{M_}, s{S_NEG}\nv_mov_b32 v{M_+1}, s{S_NEG}\nv_mov_b64 {v(L_,2)}, 0")
    kfr = lambda ad, blk: [(ad, blk*16384 + ks*1024) for ks in range(8)]
    vfr = lambda ad, blk: [(ad, blk*16384 + 8192 + i*1024) for i in range(8)]
    rd = lambda i, f: f"ds_read_b128 {R(FR + 4*(i % NR), 4)}, v{f[0]} offset:{f[1]}"
    def s_mm(S, fi):
        return [[mf32(S + 16*a, FR + 4*((fi + ks) % NR), QA + 32*a + 4*ks, "0" if ks == 0 else R(S + 16*a, 16))] for ks in range(8) for a in range(2)]
    def pv_mm(P, fi):
        return [[mf32(Oa(i >> 1, a), FR + 4*((fi + i) % NR), P + 8*a + 4*(i & 1), R(Oa(i >> 1, a), 16))] for i in range(8) for a in range(2)]
    def add_reads(groups, frs):
        for i, f in enumerate(frs):
            groups[2*i].insert(0, f"s_waitcnt lgkmcnt({LEAD-1})")
            groups[2*i].append(rd(i + LEAD, f))
    A("s_waitcnt vmcnt(16)\ns_barrier")
    k0 = kfr(A_KC, 0); vp = vfr(A_VP, 1)
    for i in range(LEAD): A(rd(i, k0[i]))
    g = s_mm(SB[0], 0); add_reads(g, k0[LEAD:] + vp[:LEAD])
    for x in sum(g, []): A(x)
    def softmax(par, mask, tag):
        S, P = SB[par], PB[par]
        pre = []
        if mask == 0: pre += diag_mask(S)
        if mask == 1: pre += diag_mask(S + 16) + [f"v_mov_b32 v{S+r}, v{TM+5}" for r in range(16)]
        for a in range(2):
            s_ = S + 16*a; t = TM + a
            pre.append(f"v_max3_f32 v{t}, v{s_}, v{s_+1}, v{s_+2}")
            for i in range(3, 15, 2): pre.append(f"v_max3_f32 v{t}, v{t}, v{s_+i}, v{s_+i+1}")
            pre.append(f"v_max_f32 v{t}, v{t}, v{s_+15}")
        pre += [f"v_fma_f32 v{TM+2}, v{TM}, s{S_C}, -v{M_}", f"v_fma_f32 v{TM+3}, v{TM+1}, s{S_C}, -v{M_+1}",
                f"v_max_f32 v{TM+2}, v{TM+2}, v{TM+3}", f"v_cmp_lt_f32 vcc, s{S_THR}, v{TM+2}",
                f"s_cbranch_vccnz {name}_up{tag}", f"{name}_upr{tag}:"]
        st = [[], [], [], []]
        for a in range(2):
            for i in range(0, 16, 2):
                r = S + 16*a + i
                st[0].append([f"v_fma_f32 v{r}, v{r}, s{S_C}, -v{M_+a}", f"v_fma_f32 v{r+1}, v{r+1}, s{S_C}, -v{M_+a}"])
                st[1].append([f"v_exp_f32 v{r}, v{r}", f"v_exp_f32 v{r+1}, v{r+1}"])
                st[2].append([f"v_add_f32 v{L_+a}, v{L_+a}, v{r}", f"v_cvt_pk_bf16_f32 v{P + 8*a + i//2}, v{r}, v{r+1}", f"v_add_f32 v{L_+a}, v{L_+a}, v{r+1}"])
        body = []
        for k in range(18):
            for j in range(3):
                if 0 <= k - j < 16: body += st[j][k - j]
        return pre + body
    cold = []
    def update(tag):
        A.label(f"{name}_up{tag}")
        for a in range(2):
            t, u = TM + a, TM + 2 + a
            A(f"""v_mov_b32 v{u}, v{t}
            v_permlane32_swap_b32 v{u}, v{t}
            v_max_f32 v{t}, v{t}, v{u}
            v_mul_f32 v{t}, s{S_C}, v{t}
            v_max_f32 v{t}, v{t}, v{M_+a}
            v_sub_f32 v{u}, v{M_+a}, v{t}
            v_exp_f32 v{AL+a}, v{u}
            v_mov_b32 v{M_+a}, v{t}
            v_mul_f32 v{L_+a}, v{L_+a}, v{AL+a}""")
        A(f"s_mov_b32 s{S_FL}, 1\ns_branch {name}_upr{tag}")
        A.label(f"{name}_rs{tag}")
        A("s_nop 7\ns_nop 3")
        for T in range(4):
            for a in range(2):
                for i in range(0, 16, 2):
                    r = Oa(T, a) + i
                    A(f"v_pk_mul_f32 {v(r,2)}, {v(r,2)}, {v(AL,2)} op_sel:[0,{a}] op_sel_hi:[1,{a}]")
        A(f"s_mov_b32 s{S_FL}, 0\ns_nop 1\ns_branch {name}_rsr{tag}")
    def step(par, mask, do_s, tag, nxt, extra=None):
        vf = vfr(A_VP, 1) if par == 0 else vfr(A_KC, 0)
        kf = kfr(A_KC, 1) if par == 0 else kfr(A_KN, 0)
        g = pv_mm(PB[1 - par], 0)
        g[-1] += [f"s_cmp_eq_u32 s{S_FL}, 0", f"s_cbranch_scc0 {name}_rs{tag}", f"{name}_rsr{tag}:"]
        if do_s:
            g += s_mm(SB[1 - par], 8)
            add_reads(g, vf[LEAD:] + kf + nxt)
        else:
            add_reads(g, vf[LEAD:] + nxt)
        if extra:
            for i, e in enumerate(extra): g[2*i + 1] += e
        va = softmax(par, mask, tag)
        npre = va.index(f"{name}_upr{tag}:") + 1
        if mask is None:
            out = merge(g, va, skip=2)
        else:
            out = merge(g[:14], va[:npre], skip=2) + merge(g[14:], va[npre:])
        assert out.index(f"{name}_upr{tag}:") < out.index(f"{name}_rsr{tag}:")
        for x in out: A(x)
        cold.append(tag)
    rot = [f"v_mov_b32 v{A_VP}, v{A_KC}", f"v_mov_b32 v{A_KC}, v{A_KN}", f"v_add_u32 v{A_KN}, {G.BUFSZ}, v{A_KN}", f"v_and_b32 v{A_KN}, {4*G.BUFSZ-1}, v{A_KN}"]
    A(f"s_cmp_eq_u32 s{S_TD}, 0\ns_cbranch_scc1 {name}_last")
    A(".p2align 3")
    A.label(f"{name}_loop")
    step(0, None, True, "a", vfr(A_KC, 0)[:LEAD], [sel])
    A("s_waitcnt vmcnt(8)\ns_barrier")
    step(1, None, True, "b", vfr(A_KC, 1)[:LEAD], dma())
    for x in rot: A(x)
    A(f"s_add_u32 s{S_T}, s{S_T}, 1\ns_cmp_lt_u32 s{S_T}, s{S_TD}\ns_cbranch_scc1 {name}_loop")
    A.label(f"{name}_last")
    step(0, 0, True, "c", vfr(A_KC, 0)[:LEAD], [sel])
    A("s_waitcnt vmcnt(8)\ns_barrier")
    d = dma()
    step(1, 1, False, "d", vfr(A_KC, 1)[:LEAD], [d[0] + ["s_nop 0"] + d[1]] + d[2:])
    g = pv_mm(PB[1], 0)
    vf = vfr(A_KC, 1)
    for i in range(8):
        g[2*i].insert(0, f"s_waitcnt lgkmcnt({min(LEAD - 1, 7 - i)})")
        if i + LEAD < 8: g[2*i].append(rd(i + LEAD, vf[i + LEAD]))
    for x in sum(g, []): A(x)
    A.label(f"{name}_idle")
    A(f"s_add_u32 s{S_T}, s{S_T}, 1\ns_cmp_ge_u32 s{S_T}, s{S_NT}\ns_cbranch_scc1 {name}_fin")
    A(f"s_waitcnt vmcnt(0)\ns_barrier\ns_branch {name}_idle")
    for tag in cold: update(tag)
    A.label(f"{name}_fin")
    A(f"""s_lshl_b32 s{S_T2}, s{S_J}, 4
    s_lshl_b32 s{S_T3}, s{S_WV}, 2
    s_add_u32 s{S_T2}, s{S_T2}, s{S_T3}
    s_lshl_b32 s{S_T2}, s{S_T2}, 17
    s_lshl_b32 s{S_T3}, s{S_H}, 12
    s_add_u32 s{S_T2}, s{S_T2}, s{S_T3}
    s_add_u32 s{S_T2}, s{S_T2}, {CTXA}
    s_add_u32 s{S_T3}, s{S_T2}, {2 << 17}""")
    ctx_store(A, 0, S_T2, L_)
    ctx_store(A, 1, S_T3, L_ + 1)

def emit_B(A, name, L_fail):
    lane_regs(A)
    L16, KM_A, VM_A, FA = 1, 2, 3, 4
    KX, VX, KM, VM = FR, FR + 64, 96, 8
    A(f"""v_and_b32 v{L16}, 63, v{TID}
    v_lshlrev_b32 v{L16}, 4, v{L16}
    v_bfe_u32 v{TM}, v{TID}, 5, 1
    v_and_b32 v{TM+1}, 7, v{TID}
    v_xor_b32 v{TM+1}, v{TM+1}, v{TM}
    v_lshlrev_b32 v{TM+1}, 4, v{TM+1}
    v_lshl_add_u32 v{KM_A}, v{TM}, 7, v{TM+1}
    v_xor_b32 v{7}, 64, v{KM_A}
    v_and_b32 v{TM+1}, 31, v{TID}
    v_lshlrev_b32 v{TM+1}, 2, v{TM+1}
    v_lshl_add_u32 v{VM_A}, v{TM}, 8, v{TM+1}
    v_mov_b32 v{FA}, 0""")
    A(f"""s_lshl_b32 s{S_T}, s{S_J}, 3
    s_lshl_b32 s{S_T0}, s{S_WV}, 1
    s_add_u32 s{S_T}, s{S_T}, s{S_T0}
    s_lshl_b32 s{S_SO}, s{S_H}, 6
    s_add_u32 s{S_SO}, s{S_SO}, s{S_T}
    s_lshl_b32 s{S_SO}, s{S_SO}, 14
    s_add_u32 s{S_SO}, s{S_SO}, {KVB}""")
    for a in range(2):
        for part, dst in ((0, KX + 32*a), (1, VX + 32*a)):
            for q in range(2):
                A(f"s_add_u32 s{S_T0}, s{S_SO}, {a*16384 + part*8192 + q*4096}")
                for i in range(4): A(f"buffer_load_dwordx4 {R(dst + 16*q + 4*i, 4)}, v{L16}, {buf(S_WS, s(S_T0))} offset:{1024*i} sc1")
    A("s_waitcnt vmcnt(0)")
    for a in range(2):
        S = SB[0] + 16*a
        for ks in range(8): A(mf32(S, KX + 32*a + 4*ks, QA + 32*a + 4*ks, "0" if ks == 0 else R(S, 16)))
    for a in range(2):
        S = SB[0] + 16*a
        for x in diag_mask(S): A(x)
        t = M_ + a
        A(f"v_max3_f32 v{t}, v{S}, v{S+1}, v{S+2}")
        for i in range(3, 15, 2): A(f"v_max3_f32 v{t}, v{t}, v{S+i}, v{S+i+1}")
        A(f"v_max_f32 v{t}, v{t}, v{S+15}")
    for a in range(2):
        S, SM, P = SB[0] + 16*a, SB[1], SB[1] + 16
        A(f"s_lshl_b32 s{S_T1}, s{S_H}, 7\ns_add_u32 s{S_T1}, s{S_T1}, {F_TEAM}")
        poll(A, FA, TM, s(S_T1), f"v_cmp_ge_u32 vcc, s{S_T}, v{TM}", L_fail)
        A(f"""s_lshl_b32 s{S_T0}, s{S_T}, 5
        s_add_u32 s{S_T0}, s{S_T0}, s{S_H}
        s_lshl_b32 s{S_T0}, s{S_T0}, 12
        s_add_u32 s{S_T0}, s{S_T0}, {KVM}""")
        for ks in range(8):
            A(f"buffer_load_dwordx4 {v(KM + 4*ks, 4)}, v{KM_A if ks % 2 == 0 else 7}, {buf(S_WS, s(S_T0))} offset:{(ks >> 1)*512 + (ks & 1)*256} sc1")
        for T in range(4):
            for j in range(2):
                A(f"buffer_load_dword v{VM + 2*T + j}, v{VM_A}, {buf(S_WS, s(S_T0))} offset:{2048 + T*512 + j*128} sc1")
        for ks in range(8):
            A(f"s_waitcnt vmcnt({15 - ks})")
            A(mf32(SM, KM + 4*ks, QA + 32*a + 4*ks, "0" if ks == 0 else R(SM, 16)))
        t, u = M_ + a, TM
        A(f"""v_max3_f32 v{t}, v{t}, v{SM}, v{SM+1}
        v_max3_f32 v{t}, v{t}, v{SM+2}, v{SM+3}
        v_mov_b32 v{u}, v{t}
        v_permlane32_swap_b32 v{u}, v{t}
        v_max_f32 v{t}, v{t}, v{u}
        v_mul_f32 v{t}, s{S_C}, v{t}""")
        regs = [SM + i for i in range(4)] + [S + i for i in range(16)]
        for r in regs: A(f"v_fma_f32 v{r}, v{r}, s{S_C}, -v{t}")
        for r in regs: A(f"v_exp_f32 v{r}, v{r}")
        for i in range(2): A(f"v_cvt_pk_bf16_f32 v{P + 8 + i}, v{SM+2*i}, v{SM+2*i+1}")
        for i in range(8): A(f"v_cvt_pk_bf16_f32 v{P + i}, v{S+2*i}, v{S+2*i+1}")
        A("s_waitcnt vmcnt(0)")
        g = []
        for T in range(4):
            o = Oa(T, a)
            g.append([f"v_mfma_f32_32x32x8_bf16 {v(o,16)}, {v(VM + 2*T, 2)}, {v(P + 8, 2)}, 0"])
            for k in range(2): g.append([mf32(o, VX + 32*a + 8*T + 4*k, P + 4*k, R(o, 16))])
        adds = [f"v_add_f32 v{L_}, v{regs[0]}, v{regs[1]}"] + [f"v_add_f32 v{L_}, v{L_}, v{r}" for r in regs[2:]]
        for x in merge(g, adds): A(x)
        A(f"""s_lshl_b32 s{S_T2}, s{S_T}, 18
        s_lshl_b32 s{S_T3}, s{S_H}, 12
        s_add_u32 s{S_T2}, s{S_T2}, s{S_T3}
        s_add_u32 s{S_T2}, s{S_T2}, {CTXB}""")
        ctx_store(A, a, S_T2, L_)
        A(f"""s_lshl_b32 s{S_T2}, s{S_T}, 7
        s_lshl_b32 s{S_T3}, s{S_H}, 2
        s_add_u32 s{S_T2}, s{S_T2}, s{S_T3}
        s_add_u32 s{S_T2}, s{S_T2}, {F_CTXB}
        v_mov_b32 v{TM}, 1
        s_waitcnt vmcnt(0)
        s_mov_b64 exec, 1
        buffer_store_dword v{TM}, v{FA}, {buf(S_WS, s(S_T2))} sc1
        s_mov_b64 exec, -1
        s_add_u32 s{S_T}, s{S_T}, 1""")
```

```python
from asmlib import *
from layout import *

S_WS = 8
S_X  = 12
S_W  = 20
S_DBG = 56
S_RANK, S_WV = 16, 17
S_XCC = 3
S_P = 4
S_T0, S_T1, S_T2, S_T3 = 24, 25, 26, 27
S_SPIN = 28
SPIN_MAX = 40000
TID = 0

def srd_arg(A, d, slot, nbytes):
    A(f"s_load_dwordx2 s[{S_P}:{S_P+1}], s[0:1], {slot*8}\ns_waitcnt lgkmcnt(0)")
    A.srd(d, S_P, nbytes)

def buf(srd, off): return f"s[{srd}:{srd+3}], {off} offen"

def poll(A, vaddr, vtmp, soff, cmp, L_fail, srd=S_WS, sleep=1):
    L = A.uniq("L_poll"); Ld = A.uniq("L_pd")
    A(f"s_mov_b32 s{S_SPIN}, 0")
    A.label(L)
    A(f"""buffer_load_dword v{vtmp}, v{vaddr}, {buf(srd, soff)} sc1
    s_add_u32 s{S_SPIN}, s{S_SPIN}, 1
    s_cmp_gt_u32 s{S_SPIN}, {SPIN_MAX}
    s_cbranch_scc1 {L_fail}
    s_waitcnt vmcnt(0)
    {cmp}
    s_cbranch_vccz {Ld}""")
    if sleep: A(f"s_sleep {sleep}")
    A(f"s_branch {L}")
    A.label(Ld)

def cost(x):
    op = x.split()[0]
    if not op.startswith("v_"): return 2
    if op.startswith(("v_exp", "v_rcp", "v_permlane", "v_log")): return 8
    return 4

def merge(groups, valu, skip=0, tail=0):
    n = len(groups) - skip - tail
    total = sum(cost(x) for x in valu)
    out = []; k = 0; acc = 0
    for i, g in enumerate(groups):
        out += g
        if skip <= i < len(groups) - tail:
            target = total * (i - skip + 1) / n
            while k < len(valu) and acc + cost(valu[k]) / 2 <= target:
                out.append(valu[k]); acc += cost(valu[k]); k += 1
    return out + valu[k:]
```

```python
from common import *

BUFSZ = 32768
LW = 16384
G_XD, G_WD, G_XR, G_WR = 1, 5, 9, 11
G_T = 15
S_ST, S_NS, S_XO, S_WO, S_M0X, S_M0W, S_XB, S_MX0, S_MW0 = 30, 31, 32, 33, 34, 35, 36, 37, 38

def setup(A, kv, xstride, s_col):
    t = G_T
    A(f"""v_lshrrev_b32 v{t}, 6, v{TID}
    v_lshlrev_b32 v{t}, 6, v{t}
    v_bfe_u32 v{t+1}, v{TID}, 2, 4
    v_add_u32 v{t}, v{t}, v{t+1}
    v_mul_u32_u24 v{t}, {xstride}, v{t}
    v_bfe_u32 v{t+1}, v{TID}, 4, 2
    v_and_b32 v{t+2}, 3, v{TID}
    v_xor_b32 v{t+2}, v{t+2}, v{t+1}
    v_lshl_add_u32 v{G_XD}, v{t+2}, 4, v{t}""")
    for j in range(1, 4): A(f"v_add_u32 v{G_XD+j}, {j*(16*xstride - 1024)}, v{G_XD}")
    nw = 4 if kv else 2
    A(f"""v_bfe_u32 v{t}, v{TID}, 2, 2
    v_xor_b32 v{t}, v{t}, v{t+1}
    v_lshlrev_b32 v{t}, 6, v{t}
    v_and_b32 v{t+2}, 3, v{TID}
    v_lshl_add_u32 v{t}, v{t+2}, 4, v{t}
    v_lshl_add_u32 v{t}, v{t+1}, 13, v{t}""")
    if kv: A(f"s_and_b32 s{S_T0}, s{S_WV}, 1\ns_lshl_b32 s{S_T0}, s{S_T0}, 17")
    else: A(f"s_lshl_b32 s{S_T0}, s{S_WV}, 16")
    A(f"s_add_u32 s{S_T0}, s{S_T0}, s{s_col}\nv_add_u32 v{G_WD}, s{S_T0}, v{t}")
    for j in range(1, nw): A(f"v_add_u32 v{G_WD+j}, {j*(4*8192 - 1024)}, v{G_WD}")
    A(f"s_lshl_b32 s{S_MX0}, s{S_WV}, 12\ns_lshl_b32 s{S_MW0}, s{S_WV}, {12 if kv else 11}\ns_add_u32 s{S_MW0}, s{S_MW0}, {LW}")

def read_addrs(A, kv):
    t = G_T
    A(f"""v_and_b32 v{t}, 31, v{TID}
    v_lshlrev_b32 v{t}, 6, v{t}
    v_bfe_u32 v{t+1}, v{TID}, 2, 2
    v_bfe_u32 v{t+2}, v{TID}, 5, 1
    v_xor_b32 v{t+1}, v{t+1}, v{t+2}
    v_lshl_add_u32 v{t}, v{t+1}, 4, v{t}""")
    if kv: A(f"s_and_b32 s{S_T0}, s{S_WV}, 1\ns_lshl_b32 s{S_T0}, s{S_T0}, 13")
    else: A(f"s_lshl_b32 s{S_T0}, s{S_WV}, 12")
    A(f"v_add_u32 v{G_XR}, s{S_T0}, v{t}\nv_xor_b32 v{G_XR+1}, 32, v{G_XR}")
    A(f"""v_bfe_u32 v{t+1}, v{TID}, 2, 2
    v_mul_u32_u24 v{t}, {256+64}, v{t+1}
    v_lshl_add_u32 v{t}, v{t+2}, 11, v{t}
    v_bfe_u32 v{t+1}, v{TID}, 4, 1
    v_lshl_add_u32 v{t}, v{t+1}, 5, v{t}
    v_and_b32 v{t+1}, 3, v{TID}
    v_lshl_add_u32 v{t}, v{t+1}, 3, v{t}""")
    if kv: A(f"s_lshr_b32 s{S_T0}, s{S_WV}, 1\ns_lshl_b32 s{S_T0}, s{S_T0}, 13\ns_add_u32 s{S_T0}, s{S_T0}, {LW}")
    else: A(f"s_mov_b32 s{S_T0}, {LW}")
    A(f"v_add_u32 v{G_WR}, s{S_T0}, v{t}")
    for T in range(1, 4): A(f"v_xor_b32 v{G_WR+T}, {64*T}, v{G_WR}")

def dma_list(kv):
    nw = 4 if kv else 2
    l = [[f"s_mov_b32 m0, s{S_M0X}"]]
    l += [[f"buffer_load_dwordx4 v{G_XD+j}, {buf(S_X, s(S_XO))} offset:{1024*j} lds"] for j in range(4)]
    l[-1].append(f"s_mov_b32 m0, s{S_M0W}")
    l += [[f"buffer_load_dwordx4 v{G_WD+j}, {buf(S_W, s(S_WO))} offset:{1024*j} lds"] for j in range(nw)]
    return l

def dma_adv():
    return [f"s_add_u32 s{S_XO}, s{S_XO}, 64", f"s_add_u32 s{S_WO}, s{S_WO}, {32*8192}",
            f"s_add_u32 s{S_M0X}, s{S_M0X}, {BUFSZ}", f"s_and_b32 s{S_M0X}, s{S_M0X}, {4*BUFSZ-1}",
            f"s_add_u32 s{S_M0W}, s{S_M0W}, {BUFSZ}", f"s_and_b32 s{S_M0W}, s{S_M0W}, {4*BUFSZ-1}"]

def run(A, kv, nst, acc0, fr0, name):
    nr = 4 if kv else 2
    nd = 8 if kv else 6
    FS = (nr + 4) * 4
    acc = lambda T, rt: R(acc0 + 16*(nr*T + rt), 16)
    xf = lambda f, rt: R(fr0 + f*FS + 4*rt, 4)
    wf = lambda f, T: R(fr0 + f*FS + 4*nr + 4*T, 4)
    def reads(f, ks):
        xr = [f"ds_read_b128 {xf(f, rt)}, v{G_XR+ks} offset:{rt*2048}" for rt in range(nr)]
        wr = [[f"ds_read_b64_tr_b16 {R(fr0 + f*FS + 4*nr + 4*T + 2*j, 2)}, v{G_WR+T} offset:{ks*4096 + j*1024}" for j in range(2)] for T in range(4)]
        return wr[0] + xr + wr[1] + wr[2] + wr[3]
    A(f"s_mov_b32 s{S_XO}, s{S_XB}\ns_mov_b32 s{S_WO}, 0\ns_mov_b32 s{S_M0X}, s{S_MX0}\ns_mov_b32 s{S_M0W}, s{S_MW0}")
    for st in range(4):
        for g in dma_list(kv):
            for x in g: A(x)
        for x in dma_adv(): A(x)
    read_addrs(A, kv)
    for r in range(acc0, acc0 + 64*nr):
        A(f"v_accvgpr_write_b32 a{r-256}, 0" if r >= 256 else f"v_mov_b32 v{r}, 0")
    A(f"s_waitcnt vmcnt({3*nd})\ns_barrier")
    for x in reads(0, 0): A(x)
    A(f"s_mov_b32 s{S_ST}, 0")
    variants = [("k", False), ("v", True)] if kv else [("q", False)]
    if kv: A(f"s_cmp_ge_u32 s{S_WV}, 2\ns_cbranch_scc1 {name}_v")
    rot = []
    for r in list(range(G_XR, G_XR+2)) + list(range(G_WR, G_WR+4)):
        rot += [f"v_add_u32 v{r}, {BUFSZ}, v{r}", f"v_and_b32 v{r}, {4*BUFSZ-1}, v{r}"]
    for vn, swap in variants:
        def mm(f):
            l = []
            for T in range(4):
                for rt in range(nr):
                    a, b = (xf(f, rt), wf(f, T)) if swap else (wf(f, T), xf(f, rt))
                    l.append([f"v_mfma_f32_32x32x16_bf16 {acc(T, rt)}, {a}, {b}, {acc(T, rt)}"])
            return l
        def spread(groups, items, per):
            k = 0
            for g in groups:
                for _ in range(per):
                    if k < len(items):
                        g += items[k] if isinstance(items[k], list) else [items[k]]; k += 1
            assert k == len(items)
        per = 1 if kv else 2
        A(".p2align 3")
        A.label(f"{name}_{vn}")
        A("s_waitcnt lgkmcnt(0)")
        g1 = mm(0); spread(g1, reads(1, 1), per)
        g1[-1] += [f"s_add_u32 s{S_T1}, s{S_ST}, 4", f"s_cmp_lt_u32 s{S_T1}, {nst}", f"s_cselect_b32 s{S_XO}, s{S_XO}, {OOB}"]
        n1 = len(g1)
        for x in merge(g1, rot, skip=n1 - (4 if kv else 3)): A(x)
        A(f"s_waitcnt vmcnt({2*nd}) lgkmcnt(0)\ns_barrier")
        g2 = mm(1); spread(g2, reads(0, 0), per)
        dl = dma_list(kv)
        if kv: spread(g2[0::2] + [g2[-1]], dl, 1)
        else: spread(g2, dl, 1)
        g2[-1] += dma_adv() + [f"s_add_u32 s{S_ST}, s{S_ST}, 1", f"s_cmp_lt_u32 s{S_ST}, {nst}"]
        for g in g2:
            for x in g: A(x)
        A(f"s_cbranch_scc1 {name}_{vn}")
        if vn == "k": A(f"s_branch {name}_end")
    A.label(f"{name}_end")
    A("s_waitcnt vmcnt(0) lgkmcnt(0)")

def kv_epilogue(A, s_out):
    AD, T0 = G_T, 32
    A(f"""v_and_b32 v{AD}, 63, v{TID}
    v_lshlrev_b32 v{AD}, 4, v{AD}
    s_and_b32 s{S_T0}, s{S_WV}, 1
    s_lshl_b32 s{S_T0}, s{S_T0}, 16
    s_lshr_b32 s{S_T1}, s{S_WV}, 1
    s_lshl_b32 s{S_T1}, s{S_T1}, 13
    s_add_u32 s{S_T0}, s{S_T0}, s{S_T1}
    s_add_u32 s{S_T0}, s{S_T0}, s{s_out}""")
    k = 0
    for rt in range(4):
        for T in range(4):
            if T % 2 == 0: A(f"s_add_u32 s{S_T1}, s{S_T0}, {rt*16384 + T*2048}")
            for hf in range(2):
                a = 16*(4*T + rt) + 8*hf; t = T0 + 8*(k % 8); k += 1
                for i in range(8): A(f"v_accvgpr_read_b32 v{t+i}, a{a+i}")
                for i in range(4): A(f"v_cvt_pk_bf16_f32 v{t+i}, v{t+2*i}, v{t+2*i+1}")
                A(f"buffer_store_dwordx4 {v(t,4)}, v{AD}, {buf(S_WS, s(S_T1))} offset:{(T % 2)*2048 + hf*1024} sc1")
```

```python
WS_BYTES = 0x10000000
KVA   = 0x0000000
KVB   = 0x2000000
CTXA  = 0x4000000
CTXB  = 0x5000000
KVM   = 0x6000000
PART  = 0x6800000
PART_SZ = 72 * 4096
MEMI  = 0x6900000
BELL  = 0x6980000
FLAGS = 0x6A00000
STAMP = 0x6B00000
OOB   = 0x20000000
A_X, A_CKV, A_WQ, A_WUK, A_WUV, A_WO, B_X, B_MEM0, B_WQ, B_WK, B_WV, B_WO, B_SEG, OUT, DBG, WS = range(16)
import math
SCALE_LOG2E = (128 ** -0.5) * math.log2(math.e)
import struct
def f32bits(x): return struct.unpack("<I", struct.pack("<f", x))[0]
F_BKV  = FLAGS
F_TEAM = FLAGS + 0x1000
F_CTXB = FLAGS + 0x2000
F_AKV  = FLAGS + 0x4000
F_CTXA = FLAGS + 0x5000
F_SIZE = 0x8000
D_TEAM, D_INIT = 64, 128
```

```python
from common import *

W0 = 128
CF = 16
NC = 24
AC = 112
L16, SRC, TRA, OUTA, FLA, TMP, RDA = 1, 2, 3, 4, 5, 6, 7
S_SL, S_U, S_UE, S_US, S_CTX, S_FLG, S_FSH, S_COL, S_PAR = 40, 41, 42, 43, 44, 45, 46, 47, 48

def load_weights(A):
    D = 12
    t = 8
    A(f"""v_and_b32 v{L16}, 63, v{TID}
    v_lshlrev_b32 v{TRA}, 3, v{L16}
    v_lshlrev_b32 v{L16}, 4, v{L16}
    v_bfe_u32 v{t}, v{TID}, 1, 3
    v_bfe_u32 v{t+1}, v{TID}, 4, 1
    v_lshl_add_u32 v{t}, v{t+1}, 4, v{t}
    v_bfe_u32 v{t+1}, v{TID}, 5, 1
    v_lshl_add_u32 v{t}, v{t+1}, 3, v{t}
    v_mul_u32_u24 v{t}, 1152, v{t}
    v_and_b32 v{t+1}, 1, v{TID}
    v_lshl_add_u32 v{t}, v{t+1}, 4, v{t}
    s_mul_i32 s{S_T0}, s{S_WV}, {1024*1152}
    s_mul_i32 s{S_T1}, s{S_SL}, 96
    s_add_u32 s{S_T0}, s{S_T0}, s{S_T1}
    v_add_u32 v{SRC}, s{S_T0}, v{t}
    s_mul_i32 s{S_T2}, s{S_WV}, {D*3072}
    v_add_u32 v{TRA}, s{S_T2}, v{TRA}""")
    def issue(k):
        for tt in range(3):
            A(f"s_add_u32 m0, s{S_T2}, {(k % D)*3072 + tt*1024}\ns_mov_b32 s{S_T0}, {k*32*1152 + tt*32}")
            A(f"buffer_load_dwordx4 v{SRC}, {buf(S_W, s(S_T0))} lds")
    for k in range(D): issue(k)
    for k in range(32):
        A(f"s_waitcnt vmcnt({3*(min(32, k + D) - k - 1)})")
        for tt in range(3):
            for j in range(2):
                A(f"ds_read_b64_tr_b16 {R(W0 + 12*k + 4*tt + 2*j, 2)}, v{TRA} offset:{(k % D)*3072 + tt*1024 + j*512}")
        if k + D < 32:
            A("s_waitcnt lgkmcnt(0)")
            issue(k + D)
    A("s_waitcnt lgkmcnt(0)")

def run(A, name, L_fail):
    t = 8
    A(f"""v_and_b32 v{t}, 15, v{TID}
    v_mul_u32_u24 v{t}, 2304, v{t}
    v_bfe_u32 v{t+1}, v{TID}, 4, 2
    v_lshl_add_u32 v{t}, v{t+1}, 3, v{t}
    s_mul_i32 s{S_T0}, s{S_SL}, 96
    s_lshl_b32 s{S_T1}, s{S_WV}, 5
    s_add_u32 s{S_T0}, s{S_T0}, s{S_T1}
    s_add_u32 s{S_T0}, s{S_T0}, s{S_COL}
    v_add_u32 v{OUTA}, s{S_T0}, v{t}
    v_and_b32 v{FLA}, 31, v{TID}
    v_lshlrev_b32 v{FLA}, 2, v{FLA}
    v_lshlrev_b32 v{TRA}, 4, v{TID}
    s_lshl_b32 s{S_T0}, s{S_WV}, 12
    v_add_u32 v{RDA}, s{S_T0}, v{L16}
    s_lshl_b32 s{S_T0}, s{S_WV}, 15
    s_add_u32 s{S_CTX}, s{S_CTX}, s{S_T0}
    s_barrier""")
    A.label(name)
    A(f"s_lshr_b32 s{S_T1}, s{S_U}, s{S_FSH}\ns_lshl_b32 s{S_T1}, s{S_T1}, 7\ns_add_u32 s{S_T1}, s{S_T1}, s{S_FLG}")
    poll(A, FLA, TMP, s(S_T1), f"v_cmp_ne_u32 vcc, 1, v{TMP}", L_fail)
    A(f"s_lshl_b32 s{S_T2}, s{S_U}, 17\ns_add_u32 s{S_T2}, s{S_T2}, s{S_CTX}")
    def ld(k):
        if k % 4 == 0: A(f"s_add_u32 s{S_T0}, s{S_T2}, {k*1024}")
        A(f"buffer_load_dwordx4 {v(CF + 4*(k % NC), 4)}, v{L16}, {buf(S_WS, s(S_T0))} offset:{(k % 4)*1024} sc1")
    for k in range(NC): ld(k)
    for k in range(32):
        A(f"s_waitcnt vmcnt({min(32, k + NC) - k - 1})")
        for tt in range(3):
            a = v(AC + 4*tt, 4)
            A(f"v_mfma_f32_16x16x32_bf16 {a}, {R(W0 + 12*k + 4*tt, 4)}, {v(CF + 4*(k % NC), 4)}, {'0' if k == 0 else a}")
        if k + NC < 32: ld(k + NC)
    for tt in range(3): A(f"ds_write_b128 v{TRA}, {v(AC + 4*tt, 4)} offset:{tt*4096}")
    A(f"s_waitcnt lgkmcnt(0)\ns_barrier\ns_cmp_eq_u32 s{S_WV}, 3\ns_cbranch_scc1 {name}_n")
    for i in range(4): A(f"ds_read_b128 {v(CF + 4*i, 4)}, v{RDA} offset:{i*1024}")
    A(f"s_mul_i32 s{S_T0}, s{S_U}, {16*2304}")
    for i in range(1, 4):
        A(f"s_waitcnt lgkmcnt({3 - i})")
        A(f"v_pk_add_f32 {v(CF,2)}, {v(CF,2)}, {v(CF+4*i,2)}\nv_pk_add_f32 {v(CF+2,2)}, {v(CF+2,2)}, {v(CF+4*i+2,2)}")
    A(f"""v_cvt_pk_bf16_f32 v{AC}, v{CF}, v{CF+1}
    v_cvt_pk_bf16_f32 v{AC+1}, v{CF+2}, v{CF+3}
    buffer_store_dwordx2 {v(AC,2)}, v{OUTA}, {buf(S_X, s(S_T0))}""")
    A.label(f"{name}_n")
    A(f"""v_xor_b32 v{TRA}, 16384, v{TRA}
    v_xor_b32 v{RDA}, 16384, v{RDA}
    s_add_u32 s{S_U}, s{S_U}, s{S_US}
    s_cmp_lt_u32 s{S_U}, s{S_UE}
    s_cbranch_scc1 {name}""")
```

```python
from asmlib import *
from layout import *

L_X   = 0
XRB   = 2048 + 128
L_O   = 4224
L_JUNK = L_O + 2048
L_ZERO = L_JUNK + 256
L_MEM = 6656
L_KX  = L_MEM + 9216
L_W   = 24576
NLDS = 17
IDX, T16, WA, XW2, XW, XR, WRM, OW, T4R, PS, PS1, MS = range(12)
MR, ACC, STG, VACC, VX = 12, 24, 40, 56, 64
WREG0 = 72
S_WS = 8
S_W  = 12
S_H, S_WV, S_C, S_STEP, S_T0, S_T1, S_SPIN = 16, 17, 18, 19, 20, 21, 22
S_JOBLD, S_JOBST, S_RST0, S_RST1, S_RST2 = 23, 24, 25, 26, 27
S_PB, S_PO = 28, 29
S_KV, S_KVM = 30, 31
S_GA, S_ST, S_PF = 33, 34, 35
S_MK = 36
S_P0, S_P1 = 46, 47
S_HASJOB = 48
S_A, S_B, S_D, S_E = 49, 50, 51, 52
S_F = 53
S_G1, S_G2 = 6, 7
S_BP, S_BR, S_EV = 82, 83, 84
S_KM = 86
S_CNT1, S_CNT2, S_CNT3 = 54, 55, 32
S_TS = 60

NREP = 4
TORD = [8, 0, 1, 2, 3, 4, 5, 6, 7]
def frag_map():
    order = []
    for c in range(9):
        for m in "qk":
            for t in range(2): order.append((m, c, t))
    for c in range(9):
        for t in range(2): order.append(("v", c, t))
    for T in range(9):
        for co in range(2): order.append(("o", T, co))
    lds = [("k", c, 1) for c in range(9)] + [("o", T, 1) for T in TORD[:8]]
    fm = {f: ("l", i) for i, f in enumerate(lds)}
    r = WREG0
    for f in order:
        if f in fm: continue
        fm[f] = ("r", r); r += 8
    assert r == 512
    return fm
FM = frag_map()

def emit_loader(A):
    VA, VB, VL = 1, 2, 3
    RING, NP, TMP = 4, 30, 64
    A(f"s_mov_b32 s{S_P0}, 0x05040100\ns_mov_b32 s{S_P1}, 0x07060302")
    A(f"""v_and_b32 v{VL}, 63, v0
    v_lshlrev_b32 v{VL}, 4, v{VL}
    s_mul_i32 s{S_T0}, s{S_WV}, {NLDS*2048}
    s_add_u32 s{S_T0}, s{S_T0}, {L_W}
    v_add_u32 v{VL}, s{S_T0}, v{VL}""")
    A(f"""v_bfe_u32 v{TMP}, v0, 5, 1
    v_bfe_u32 v{TMP+1}, v0, 4, 1
    v_and_b32 v{TMP+2}, 15, v0
    v_lshlrev_b32 v{VA}, 17, v{TMP}
    v_lshl_add_u32 v{VA}, v{TMP+1}, 14, v{VA}
    v_lshl_add_u32 v{VA}, v{TMP+2}, 2, v{VA}
    s_lshl_b32 s{S_T0}, s{S_H}, 8
    s_lshl_b32 s{S_T1}, s{S_WV}, 6
    s_add_u32 s{S_T0}, s{S_T0}, s{S_T1}
    v_add_u32 v{VA}, s{S_T0}, v{VA}""")
    A(f"""v_lshlrev_b32 v{VB}, 4, v{TMP}
    v_lshl_add_u32 v{VB}, v{TMP+1}, 2, v{VB}
    v_mul_u32_u24 v{VB}, 1152, v{VB}
    s_mul_i32 s{S_T0}, s{S_H}, 147456
    v_add_u32 v{VB}, s{S_T0}, v{VB}""")
    jobs = []
    for m, slot in (("q", B_WQ), ("k", B_WK), ("v", B_WV)):
        first = True
        for c in range(9):
            for b in range(8):
                k0 = 64*c + 32*(b >> 2) + 8*(b & 1) + ((b >> 1) & 1)
                pre = ("srd", slot) if first else None
                first = False
                jobs.append((pre, "dword", VA, k0*8192, (k0+4)*8192, [((m, c, 0), b, S_P0), ((m, c, 1), b, S_P1)]))
    first = True
    for pp in range(4):
        for co in range(2):
            for b in range(8):
                e0 = 64*co + 32*(b >> 2) + 8*(b & 1) + 2*((b >> 1) & 1)
                pre = ("wo", B_WO) if first else None
                first = False
                jobs.append((pre, "dword", VA, e0*1152 + pp*256, (e0+1)*1152 + pp*256, [(("o", 2*pp, co), b, S_P0), (("o", 2*pp+1, co), b, S_P1)]))
    for co in range(2):
        for b in range(8):
            e0 = 64*co + 32*(b >> 2) + 8*(b & 1) + 2*((b >> 1) & 1)
            jobs.append((None, "ushort", VB, e0*1152 + 1024, (e0+1)*1152 + 1024, [(("o", 8, co), b, S_P0)]))
    def issue(i):
        pre, op, va, o0, o1, outs = jobs[i]
        if pre:
            A(f"s_load_dwordx2 s[{S_B}:{S_B+1}], s[0:1], {pre[1]*8}")
            A("s_waitcnt lgkmcnt(0)")
            A.srd(S_W, S_B, 576*4096*2)
            if pre[0] == "wo":
                A(f"""v_and_b32 v{VA}, 15, v0
                s_lshl_b32 s{S_T0}, s{S_WV}, 4
                v_add_u32 v{VA}, s{S_T0}, v{VA}
                v_lshlrev_b32 v{VA}, 1, v{VA}
                v_add_u32 v{VB}, v{VB}, v{VA}
                v_add_u32 v{VA}, v{VB}, v{VA}""")
        r = RING + 2*(i % NP)
        A(f"s_mov_b32 s{S_T0}, {o0}\nbuffer_load_{op} v{r}, v{va}, s[{S_W}:{S_W+3}], s{S_T0} offen")
        A(f"s_mov_b32 s{S_T1}, {o1}\nbuffer_load_{op} v{r+1}, v{va}, s[{S_W}:{S_W+3}], s{S_T1} offen")
    def consume(i, outstanding):
        pre, op, va, o0, o1, outs = jobs[i]
        r = RING + 2*(i % NP)
        A(f"s_waitcnt vmcnt({outstanding})")
        for k, (f, b, sel) in enumerate(outs):
            kind, x = FM[f]
            t = TMP + 4*k + (b & 3)
            if kind == "r" and x < 256:
                A(f"v_perm_b32 v{x+b}, v{r+1}, v{r}, s{sel}")
            elif kind == "r":
                A(f"v_perm_b32 v{t}, v{r+1}, v{r}, s{sel}\nv_accvgpr_write_b32 a{x-256+b}, v{t}")
            else:
                A(f"v_perm_b32 v{t}, v{r+1}, v{r}, s{sel}")
                if b & 3 == 3:
                    A(f"ds_write_b128 v{VL}, {v(TMP+4*k, 4)} offset:{x*2048 + (b >> 2)*1024}\ns_waitcnt lgkmcnt(0)")
    n = len(jobs)
    for i in range(n + NP - 1):
        if i < n: issue(i)
        j = i - (NP - 1)
        if j >= 0:
            consume(j, 2*(min(n, i+1) - j - 1))

def emit_setup(A):
    t = MR
    TID, N, G, I1 = t, t+1, t+2, t+3
    A(f"""v_mov_b32 v{TID}, v0
    v_and_b32 v{N}, 15, v0
    v_bfe_u32 v{G}, v0, 4, 2
    v_lshlrev_b32 v{T16}, 4, v{TID}
    v_and_b32 v{WA}, 0x3f0, v{T16}
    s_mul_i32 s{S_T0}, s{S_WV}, {NLDS*2048}
    s_add_u32 s{S_T0}, s{S_T0}, {L_W}
    v_add_u32 v{WA}, s{S_T0}, v{WA}""")
    A(f"""v_and_b32 v{I1}, 1, v{TID}
    v_mul_u32_u24 v{IDX}, 0xaaaa, v{I1}
    v_add_u32 v{IDX}, 0xffff4444, v{IDX}""")
    x, y = t+4, t+5
    ROW, ISQ = t+6, t+7
    A(f"""v_lshrrev_b32 v{ROW}, 2, v{N}
    v_lshl_add_u32 v{ROW}, v{ROW}, 1, v{I1}
    v_bfe_u32 v{ISQ}, v{N}, 1, 1""")
    A(f"""v_lshrrev_b32 v{x}, 5, v{TID}
    v_lshlrev_b32 v{x}, 8, v{x}
    v_lshl_add_u32 v{x}, v{ROW}, 5, v{x}
    v_and_b32 v{y}, 1, v{G}
    v_lshl_add_u32 v{x}, v{y}, 4, v{x}
    v_and_b32 v{y}, 0x7f, v{x}
    v_xor_b32 v{y}, 16, v{y}
    v_add_u32 v{x}, {L_O}, v{x}
    v_add_u32 v{y}, {L_JUNK}, v{y}
    v_cmp_eq_u32 vcc, 1, v{ISQ}
    v_cndmask_b32 v{OW}, v{y}, v{x}, vcc""")
    A(f"""v_and_b32 v{x}, 1, v{G}
    v_xor_b32 v{x}, v{ROW}, v{x}
    v_and_b32 v{y}, 2, v{G}
    v_lshlrev_b32 v{y}, 1, v{y}
    v_xor_b32 v{x}, v{x}, v{y}
    v_lshlrev_b32 v{x}, 4, v{x}
    v_lshl_add_u32 v{x}, v{G}, 7, v{x}
    v_mul_u32_u24 v{y}, {XRB}, v{ISQ}
    v_add_u32 v{x}, v{x}, v{y}
    v_add_u32 v{XR}, {L_X}, v{x}""")
    g1, g0 = t+8, t+9
    A(f"""v_bfe_u32 v{g1}, v{N}, 3, 1
    v_bfe_u32 v{g0}, v{N}, 1, 1
    v_lshlrev_b32 v{x}, 1, v{G}
    v_xor_b32 v{x}, v{x}, v{g0}
    v_lshlrev_b32 v{y}, 2, v{g1}
    v_xor_b32 v{x}, v{x}, v{y}
    v_lshlrev_b32 v{x}, 4, v{x}
    v_lshl_add_u32 v{x}, v{g1}, 8, v{x}
    v_lshl_add_u32 v{x}, v{g0}, 7, v{x}
    v_bfe_u32 v{y}, v{N}, 2, 1
    v_lshl_add_u32 v{x}, v{y}, 3, v{x}
    v_lshl_add_u32 v{x}, v{I1}, 2, v{x}
    s_lshl_b32 s{S_T0}, s{S_WV}, 9
    s_add_u32 s{S_T0}, s{S_T0}, {L_X}
    v_add_u32 v{XW}, s{S_T0}, v{x}
    v_xor_b32 v{XW2}, 16, v{XW}""")
    A(f"""v_lshrrev_b32 v{x}, 4, v{TID}
    v_xor_b32 v{y}, s{S_H}, v{x}
    v_lshlrev_b32 v{x}, 12, v{x}
    v_lshl_add_u32 v{x}, v{y}, 7, v{x}
    v_lshl_add_u32 v{PS}, v{N}, 3, v{x}""")
    A(f"""s_lshr_b32 s{S_T0}, s{S_WV}, 1
    s_lshl_b32 s{S_T0}, s{S_T0}, 2
    v_add_u32 v{x}, s{S_T0}, v{G}
    v_xor_b32 v{y}, s{S_H}, v{x}
    v_lshlrev_b32 v{x}, 12, v{x}
    v_lshl_add_u32 v{x}, v{y}, 7, v{x}
    v_lshl_add_u32 v{x}, v{N}, 2, v{x}
    s_and_b32 s{S_T0}, s{S_WV}, 1
    s_lshl_b32 s{S_T0}, s{S_T0}, 6
    s_add_u32 s{S_T0}, s{S_T0}, {64*4096}
    v_add_u32 v{PS1}, s{S_T0}, v{x}""")
    A(f"""v_bfe_u32 v{x}, v{N}, 2, 1
    v_lshlrev_b32 v{x}, 5, v{x}
    v_and_b32 v{y}, 1, v{G}
    v_lshl_add_u32 v{x}, v{y}, 8, v{x}
    v_lshrrev_b32 v{y}, 1, v{G}
    v_lshl_add_u32 v{x}, v{y}, 4, v{x}
    v_and_b32 v{y}, 3, v{N}
    v_lshl_add_u32 v{MS}, v{y}, 2, v{x}""")
    A(f"v_lshlrev_b32 v{WRM}, 6, v{TID}\nv_lshlrev_b32 v{T4R}, 2, v{TID}")
    for r in range(4):
        m = 0x11111111 << r
        A(f"s_mov_b32 s{S_MK+2*r}, {m:#x}\ns_mov_b32 s{S_MK+2*r+1}, {m:#x}")
    A(f"s_mov_b32 s{S_MK+8}, 0xf0f0f0f0\ns_mov_b32 s{S_MK+9}, 0xf0f0f0f0")
    A(f"s_mov_b32 s{S_C}, {f32bits(SCALE_LOG2E):#x}")
    A(f"""s_lshl_b32 s{S_T0}, s{S_WV}, 5
    s_add_u32 s{S_T0}, s{S_T0}, s{S_H}
    s_cmp_lt_u32 s{S_T0}, 72
    s_cselect_b32 s{S_HASJOB}, 1, 0
    s_lshl_b32 s{S_JOBLD}, s{S_T0}, 12
    s_lshl_b32 s{S_T1}, s{S_WV}, 10
    s_sub_u32 s{S_JOBLD}, s{S_JOBLD}, s{S_T1}
    s_lshr_b32 s{S_JOBST}, s{S_T0}, 2
    s_lshl_b32 s{S_JOBST}, s{S_JOBST}, 9
    s_and_b32 s{S_T1}, s{S_T0}, 3
    s_lshl_b32 s{S_T1}, s{S_T1}, 6
    s_add_u32 s{S_JOBST}, s{S_JOBST}, s{S_T1}
    s_add_u32 s{S_JOBST}, s{S_JOBST}, {MEMI}
    s_cmp_lt_u32 s{S_T0}, 72
    s_cselect_b32 s{S_JOBST}, s{S_JOBST}, {OOB}
    s_lshl_b32 s{S_RST0}, s{S_H}, 12
    s_add_u32 s{S_RST1}, s{S_RST0}, {32*4096}
    s_add_u32 s{S_RST2}, s{S_RST0}, {64*4096}
    s_cmp_lt_u32 s{S_H}, 8
    s_cselect_b32 s{S_RST2}, s{S_RST2}, {OOB}
    s_mov_b32 s{S_PB}, {PART}
    s_mov_b32 s{S_PO}, {PART + PART_SZ}
    s_lshl_b32 s{S_KV}, s{S_H}, 20
    s_add_u32 s{S_KV}, s{S_KV}, {KVB}
    s_lshl_b32 s{S_KVM}, s{S_H}, 12
    s_add_u32 s{S_KVM}, s{S_KVM}, {KVM}
    s_add_u32 s{S_PF}, s{S_JOBST}, {2*16384}
    s_mov_b32 s{S_F}, 0x3f803f80
    s_mov_b32 s{S_KM}, 0x33333333
    s_mov_b32 s{S_KM+1}, 0x33333333
    s_lshl_b32 s{S_BP}, s{S_H}, 7
    s_add_u32 s{S_BR}, s{S_BP}, {F_TEAM - 768}
    s_add_u32 s{S_BP}, s{S_BP}, {F_BKV - 768}
    s_mov_b32 s{S_STEP}, 0""")

def ws(off): return f"s[{S_WS}:{S_WS+3}], {off} offen"

def emit_init_sentinels(A):
    for i in range(4): A(f"v_mov_b32 v{VX+i}, -1")
    for buf in (S_PB, S_PO):
        for r in (S_RST0, S_RST1, S_RST2):
            A(f"s_add_u32 s{S_T0}, s{buf}, s{r}\nbuffer_store_dwordx4 {v(VX,4)}, v{T16}, {ws(s(S_T0))}")
    A(f"s_add_u32 s{S_T0}, s{S_JOBST}, {1*16384}\nbuffer_store_dword v{VX}, v{MS}, {ws(s(S_T0))}")


def emit_mem0(A):
    A(f"s_load_dwordx2 s[{S_B}:{S_B+1}], s[0:1], {B_MEM0*8}\ns_waitcnt lgkmcnt(0)")
    A.srd(S_W, S_B, 9216)
    x, y = VX, VX+1
    A(f"""v_bfe_u32 v{x}, v{T16}, 5, 3
    v_mul_u32_u24 v{x}, 1152, v{x}
    v_lshrrev_b32 v{y}, 8, v{T16}
    v_lshl_add_u32 v{x}, v{y}, 5, v{x}
    v_and_b32 v{y}, 16, v{T16}
    v_add_u32 v{x}, v{x}, v{y}""")
    for j in range(3):
        A(f"buffer_load_dwordx4 {v(ACC+4*j,4)}, v{x}, s[{S_W}:{S_W+3}], 0 offen offset:{j*512}")
    A("s_waitcnt vmcnt(0)")
    for j in range(3):
        a = ACC + 4*j; d = MR + 4*j
        A(f"""v_perm_b32 v{d}, v{a+2}, v{a}, s{S_P0}
        v_perm_b32 v{d+1}, v{a+2}, v{a}, s{S_P1}
        v_perm_b32 v{d+2}, v{a+3}, v{a+1}, s{S_P0}
        v_perm_b32 v{d+3}, v{a+3}, v{a+1}, s{S_P1}""")
        for i in range(4): A(f"v_min_u32 v{d+i}, 0xfffeffff, v{d+i}")
    L = A.uniq("L_m0")
    A(f"s_cmp_lg_u32 s{S_WV}, 0\ns_cbranch_scc1 {L}")
    A(f"ds_write_b128 v{T16}, {v(MR+8,4)} offset:{L_MEM+8192}")
    A(f"v_mov_b32 v{x}, {L_ZERO}")
    for i in range(4): A(f"v_mov_b32 v{VACC+i}, 0")
    A(f"ds_write_b128 v{x}, {v(VACC,4)}")
    A.label(L)
    A(f"s_waitcnt lgkmcnt(0)\ns_barrier\nds_read_b32 v{MR+8}, v{T4R} offset:{L_MEM+8192}\ns_waitcnt lgkmcnt(0)")
    A(f"s_mov_b32 s{S_GA}, {MEMI}\ns_mov_b32 s{S_G1}, {MEMI}\ns_mov_b32 s{S_G2}, {MEMI}")

def wread(dst, slot):
    return [f"ds_read_b128 {v(dst,4)}, v{WA} offset:{slot*2048}", f"ds_read_b128 {v(dst+4,4)}, v{WA} offset:{slot*2048+1024}"]

def smf(acc, areg, f, stg=None):
    kind, x = FM[f]
    b = R(x, 8) if kind == "r" else v(stg, 8)
    return f"v_smfmac_f32_16x16x64_bf16 {v(acc,4)}, {v(areg,4)}, {b}, v{IDX}"

class LG:
    def __init__(self, A): self.A = A; self.q = []
    def op(self, text, tag=None): self.A(text); self.q.append(tag)
    def wait(self, tag, extra=""):
        idx = [i for i, t in enumerate(self.q) if t == tag]
        if not idx:
            if extra: self.A("s_waitcnt" + extra)
            return
        n = len(self.q) - 1 - idx[-1]
        assert n <= 15, n
        self.A(f"s_waitcnt lgkmcnt({n})" + extra); self.q = self.q[idx[-1]+1:]
    def all(self, extra=""):
        self.A("s_waitcnt lgkmcnt(0)" + extra); self.q = []


KXS, VXA = VX+5, VX+6
NEG = IDX
cmp_sent = lambda r: f"v_cmp_le_u32 vcc, 0xffff0000, v{r}"
def corder(w): return [w, 4 + w] + [c for c in range(9) if c not in (w, 4 + w)]

def pre_gemm_list(w):
    early = [f"v_mov_b64 {v(r,2)}, 0" for r in range(ACC, ACC+8, 2)]
    early += [f"v_and_b32 v{KXS}, 0x380, v{T16}", f"v_add_u32 v{KXS}, v{KXS}, v{T16}", f"v_lshlrev_b32 v{VXA}, 1, v{T16}"]
    early += [f"v_mov_b64 {v(VX,2)}, -1", f"v_mov_b64 {v(VX+2,2)}, -1", f"v_xor_b32 v{XW2}, 16, v{XW}"]
    early += wread(STG+8, 4 + w)
    late = wread(STG, w) + [f"v_mov_b64 {v(r,2)}, 0" for r in list(range(ACC+8, ACC+16, 2)) + list(range(VACC, VACC+8, 2))]
    return early, late

def side_consts(w, kvstep, vxd):
    return [f"s_add_u32 s{S_T0}, s{S_KV}, {w*1024}", f"s_add_u32 s{S_T1}, s{S_KV}, 8192",
            f"s_add_u32 s{S_A}, s{S_PO}, s{S_RST0}", f"s_add_u32 s{S_B}, s{S_PO}, s{S_RST1}",
            f"s_add_u32 s{S_D}, s{S_PO}, s{S_RST2}", f"s_add_u32 s{S_E}, s{S_KV}, {16384 if kvstep else 0}",
            f"s_mov_b32 m0, {L_KX + w*2048}"]

def delay(A, n):
    while n > 0:
        k = min(n, 16); A(f"s_nop {k-1}"); n -= k

def emit_loop(A, w, L_exit, L_fail, stamps=False, spin=20000, dA=0, d1=0, kvstep=True, nA=1,
              vxd=False, pubflag="sc1", nocomm=False, marks=None, nv1=3, norst=False, rstpos=1, wstride=64, keep=True, lag=4, pub=True, gv=0, vper=2, win=False, flags=False):
    nve = 2
    def mark(name):
        if marks and name in marks:
            i = marks.index(name); A(f"s_memtime s[{S_TS+2*i}:{S_TS+2*i+1}]")
    cnt = lambda r: A(f"s_add_u32 s{r}, s{r}, 1") if stamps else None
    lg = LG(A)
    L_step, L_ent, L_last, L_gr = f"L_step{w}", f"L_ent{w}", f"L_last{w}", f"L_gr{w}"
    spin_chk = f"s_add_u32 s{S_SPIN}, s{S_SPIN}, 1\ns_cmp_gt_u32 s{S_SPIN}, {spin}\ns_cbranch_scc1 {L_fail}"
    pe, pl = pre_gemm_list(w)
    sc = side_consts(w, kvstep, vxd)
    rst = [f"buffer_store_dwordx4 {v(VX,4)}, v{T16}, {ws(s(sr))} ;st" for sr in (S_A, S_B, S_D)]
    pf = f"buffer_store_dword v{NEG}, v{MS}, {ws(s(S_PF))} ;st"
    if norst: rst = []
    r0 = rst if rstpos == 0 else []
    A.label(L_ent)
    if wstride == 128: A(f"v_lshlrev_b32 v{WRM}, 3, v{T16}")
    for x in pe + pl + sc + r0: A(x)
    A(f"s_waitcnt vmcnt(0) lgkmcnt(0)\ns_branch {L_step}")
    co = corder(w)
    gl = f"""buffer_load_dwordx4 {v(MR,4)}, v{T16}, {ws(s(S_GA))} sc1
    buffer_load_dword v{MR+8}, v{T4R}, {ws(s(S_G2))} sc1
    buffer_load_dwordx4 {v(MR+4,4)}, v{T16}, {ws(s(S_G1))} sc1"""
    A.label(L_gr)
    A(gl)
    cnt(S_CNT2)
    A(spin_chk)
    for r in list(range(ACC, ACC+16, 2)) + list(range(VACC, VACC+8, 2)): A(f"v_mov_b64 {v(r,2)}, 0")
    if r0: A("s_waitcnt vmcnt(0)")
    A(f"s_waitcnt lgkmcnt(0)\ns_branch {L_step}")
    A(".p2align 3")
    A.label(f"L_gat{w}")
    mark("tg")
    A(gl)
    for x in sc + r0: A(x)
    if win:
        A(f"s_cmp_eq_u32 s{S_STEP}, 8\ns_cbranch_scc0 L_win{w}\ns_memtime s[94:95]\ns_memrealtime s[88:89]\nL_win{w}:")
    A("s_waitcnt lgkmcnt(0)")
    A.label(L_step)
    n0 = len(r0)
    uses = co + co[nve:]
    mslot = lambda u: MR + 4*(u % 3)
    dsq, held, barred = [], [], [False]
    def mread(u):
        if u < len(uses): (dsq if barred[0] else held).append((f"ds_read_b128 {v(mslot(u),4)}, v{T16} offset:{L_MEM - w*1024 + 1024*uses[u]}", ("m", u)))
    def ds1():
        if dsq: lg.op(*dsq.pop(0))
    def need(tag):
        while any(t == tag for _, t in dsq): ds1()
        lg.wait(tag)
    CK = MR + 9
    w0 = f"ds_write_b128 v{T16}, {v(MR,4)} offset:{L_MEM}"
    w1 = f"ds_write_b32 v{T4R}, v{MR+8} offset:{L_MEM+8192}"
    w2 = f"ds_write_b128 v{T16}, {v(MR+4,4)} offset:{L_MEM+4096}"
    k_ = [f"v_max3_u32 v{CK}, v{MR}, v{MR+1}, v{MR+2}", f"v_max3_u32 v{CK}, v{CK}, v{MR+3}, v{MR+8}",
          f"v_max3_u32 v{CK}, v{CK}, v{MR+4}, v{MR+5}", f"v_max3_u32 v{CK}, v{CK}, v{MR+6}, v{MR+7}", cmp_sent(CK)]
    br = f"s_cbranch_vccnz {L_gr}" if not nocomm else "s_nop 0"
    wv = lambda n: f"s_waitcnt vmcnt({n0+n})"
    if gv == 0: side = [[w0], [wv(1), w1], [wv(0), w2], k_[0:2], k_[2:4], [k_[4]], [br], ["BAR"]]
    if gv == 1: side = [[w0], [wv(1), w1], [wv(0), w2], [k_[0]], [k_[1]], [k_[2]], [k_[3]], [k_[4]], [br, "BAR"]]
    if gv == 2: side = [[w0], [wv(1), w1], [wv(0), w2], [], [], [], ["BAR"]]
    if gv == 3: side = [[w0], [wv(0), w2], [w1], k_[0:2], k_[2:5], [br], ["BAR"]]
    if gv == 4: side = [[w0, wv(1), w1, wv(0), w2], [k_[0]], [k_[1]], [k_[2]], [k_[3]], [k_[4]], [br, "BAR"]]
    gap = [[], [], []]
    side += [[f"buffer_load_dwordx4 v{KXS}, {ws(s(S_T0))} sc1 lds ;kx"], [f"s_mov_b32 m0, {L_KX + w*2048 + 1024 - 128}"], [], [],
        [f"buffer_load_dwordx4 v{KXS}, {ws(s(S_T0))} offset:128 sc1 lds ;kx"], [f"s_mov_b32 m0, {L_JUNK}"], [pf] if w < 3 else [], []]
    if rstpos == 1:
        for x in rst: side += [[]]*w + [[x]] + [[]]*(3-w)
    side += [[f"buffer_load_dwordx4 {v(VX,4)}, v{VXA}, {ws(s(S_T1))} sc1 ;vx"]] + gap
    side += [[f"buffer_load_dwordx4 {v(VX+4,4)}, v{VXA}, {ws(s(S_T1))} offset:16 sc1 ;vx"]] + gap + [[]]
    if w < (8192 if vxd else 16384) // (64*wstride): side += [[f"buffer_load_dword v{WRM}, {ws(s(S_E))} sc1 lds ;warm"]]
    if flags and w == 3:
        side[-2] = [f"v_mov_b32 v{MS}, s{S_STEP}"]
        side += [["s_mov_b64 exec, 1", f"buffer_store_dword v{MS}, v{T4R}, {ws(s(S_BR))} sc1 ;fl",
                  f"buffer_load_dword v{MS}, v{T4R}, {ws(s(S_BP))} sc1 ;fl", "s_mov_b64 exec, -1"]]
    vm = []
    def side_next():
        if side:
            for x in side.pop(0):
                if x == "BAR":
                    lg.wait("gw"); A("s_barrier"); mark("bar"); barred[0] = True
                    dsq[:0] = held; held.clear(); ds1()
                elif x.startswith("ds_"): lg.op(x, "gw")
                else: A(x)
                if x.startswith("buffer"): vm.append(x.split(";")[1])
    def vmwait(tag):
        idx = [i for i, t in enumerate(vm) if t == tag]
        return len(vm) - 1 - idx[-1]
    mread(2)
    A(f"s_waitcnt vmcnt({n0+2})")
    for u in range(9):
        c = uses[u]; a = mslot(u)
        seq = [(ACC, ("q", c, 0)), (ACC+4, ("q", c, 1)), (ACC+8, ("k", c, 0))]
        if u < nve: seq += [(VACC, ("v", c, 0)), (VACC+4, ("v", c, 1))]
        seq += [(ACC+12, ("k", c, 1))]
        for j, (acc, f) in enumerate(seq):
            last = j == len(seq) - 1
            if j == 0:
                while u == 2 and not barred[0]: side_next()
                need(("m", u)); mark(f"c{u}")
            if last: need(("w", u))
            A(smf(acc, a, f, STG + 8*(u & 1)))
            if last:
                mread(u + 3)
                if u + 2 < 9: (dsq if barred[0] else held).extend((x, ("w", u + 2)) for x in wread(STG + 8*(u & 1), uses[u + 2]))
            ds1()
            side_next()
    mark("qk")
    q0, q1, k0, k1 = ACC, ACC+4, ACC+8, ACC+12
    add2 = lambda r: f"v_add_f32 v{r}, v{r}, v{r+1}\nv_add_f32 v{r+2}, v{r+2}, v{r+3}"
    vs = [(u, t) for u in range(9, len(uses)) for t in range(2)]
    def vsm(ds=True):
        if not vs: return
        u, t = vs.pop(0)
        if t == 0: need(("m", u))
        A(smf(VACC + 4*t, mslot(u), ("v", uses[u], t)))
        if t == 1: mread(u + 3)
        if ds: ds1()
        side_next()
    vsm()
    A(add2(q0)); A(add2(q1))
    A(f"v_cvt_pk_bf16_f32 v{q0}, v{q0}, v{q1}\nv_cvt_pk_bf16_f32 v{q0+2}, v{q0+2}, v{q1+2}")
    lg.op(f"ds_write_b32 v{XW}, v{q0} offset:{XRB}", "xw")
    A(add2(k0)); A(add2(k1))
    lg.op(f"ds_write_b32 v{XW2}, v{q0+2} offset:{XRB}", "xw")
    A(f"v_cvt_pk_bf16_f32 v{k0}, v{k0}, v{k1}\nv_cvt_pk_bf16_f32 v{k0+2}, v{k0+2}, v{k1+2}")
    lg.op(f"ds_write_b32 v{XW}, v{k0}", "xw")
    vsm(False)
    lg.op(f"ds_write_b32 v{XW2}, v{k0+2}", "xw")
    mark("xw")
    for i in range(nv1): vsm()
    u_, t_ = vs[0]
    vsm(False)
    lg.wait("xw", f" vmcnt({vmwait('kx')})")
    A("s_barrier")
    mark("b1")
    kxr = lambda d, m, tk: f"ds_read_b128 {v(d,4)}, v{T16} offset:{L_KX - w*1024 + m*2048 + tk*1024}"
    mo = [(w + i) & 3 for i in range(4)]
    post = []
    for m in mo:
        post += [(f"ds_read_b128 {v(ACC+4*m,4)}, v{XR} offset:{m*512}", ("x", m)), (kxr(STG+4*m, m, 0), ("kx", m, 0))]
    lg.op(*post.pop(0))
    kpub = f"s_mov_b64 exec, s[{S_KM}:{S_KM+1}]\nbuffer_store_dwordx4 {v(ACC+4*w,4)}, v{XR}, {ws(s(S_KVM))} offset:{w*512} {pubflag}\ns_mov_b64 exec, -1"
    while vs:
        if not dsq and post and not (vs[0][1] == 1 and vs[0][0] + 3 < len(uses)): dsq.append(post.pop(0))
        vsm()
        if len(vs) == 3 - w and pub:
            lg.wait(("x", w)); A(kpub); vm.append("pub")
    dsq += post
    assert not side
    mark("v")
    T0, T1, T2 = mslot(len(uses)), mslot(len(uses)+2), mslot(len(uses)+1)
    mf = lambda d, a, b, c: f"v_mfma_f32_16x16x32_bf16 {v(d,4)}, {v(a,4)}, {v(b,4)}, {c}"
    v0_, v1_ = VACC, VACC+4
    ONES = VACC + 4
    M = VACC + 3
    one = lambda i: f"v_mov_b32 v{ONES+i}, s{S_F}"
    for i, m in enumerate(mo):
        need(("kx", m, 0))
        A(mf(T0, STG+4*m, ACC+4*m, "0" if i == 0 else v(T0,4)))
        dsq.append((kxr(STG+4*m, m, 1), ("kx", m, 1)))
        ds1()
    vepi = [add2(v0_), add2(v1_),
            f"v_cvt_pk_bf16_f32 v{v0_}, v{v0_}, v{v0_+2}\nv_cvt_pk_bf16_f32 v{v0_+1}, v{v1_}, v{v1_+2}",
            f"v_lshrrev_b32 v{VACC+2}, 1, v{T16}\nv_max3_f32 v{M}, v{T0}, v{T0+1}, v{T0+2}"]
    for i, m in enumerate(mo):
        A(mf(T2, ACC+4*m, ACC+4*m, "0" if i == 0 else v(T2,4)))
        ds1()
        A(vepi[i])
    WB = [STG, STG+8, ACC+8]
    wq = {}
    for j in range(3):
        for hh, x in enumerate(wread(WB[j], 9 + j)): wq[WB[j] + 4*hh] = (x, ("wo", j))
    for i, m in enumerate(mo):
        need(("kx", m, 1))
        A(mf(T1, STG+4*m, ACC+4*m, "0" if i == 0 else v(T1,4)))
        dsq.append(wq.pop(STG+4*m))
        ds1()
        if i == w and pub:
            A(f"buffer_store_dwordx2 {v(VACC,2)}, v{VACC+2}, {ws(s(S_KVM))} offset:2048 {pubflag}"); vm.append("pub")
        if i == (2 if w != 2 else 3): A(f"v_max3_f32 v{M}, v{M}, v{T0+3}, v{T2}\nv_max_f32 v{M}, v{M}, v{T2+1}")
    mark("s")
    dsq.extend(wq.values())
    TM = T2 + 2
    so = [S_PB, S_B, S_D, S_E]
    sal = [f"s_add_u32 s{S_A}, s{S_PB}, s{S_JOBLD}"] + [f"s_add_u32 s{so[pp]}, s{S_PB}, {pp*16*4096}" for pp in range(1, 4)]
    A(one(0)); A(sal[0]); A(one(1)); A(sal[1]); A(one(2)); ds1(); A(one(3))
    A(f"""v_max3_f32 v{M}, v{M}, v{T1}, v{T1+1}
    v_max3_f32 v{TM}, v{M}, v{T1+2}, v{T1+3}
    v_max3_f32 v{M}, v{M}, v{T1+2}, v{T1+3}
    {sal[2]}
    {sal[3]}
    v_permlane32_swap_b32 v{TM}, v{M}
    v_max_f32 v{T2+3}, v{M}, v{TM}
    v_max_f32 v{M}, v{M}, v{TM}
    v_mov_b32 v{T2+2}, 0""")
    ds1()
    A(f"""v_permlane16_swap_b32 v{T2+3}, v{M}
    v_max_f32 v{M}, v{M}, v{T2+3}
    v_mul_f32 v{VACC+2}, s{S_C}, v{M}""")
    assert not dsq
    mark("max")
    for r in (T2, T0, T0+2, T1, T1+2):
        A(f"v_pk_fma_f32 {v(r,2)}, {v(r,2)}, s[{S_C}:{S_C+1}], {v(VACC+2,2)} op_sel_hi:[1,0,0] neg_lo:[0,0,1] neg_hi:[0,0,1]")
    ex = lambda r: A(f"v_exp_f32 v{r}, v{r}")
    ex(T2); ex(T2+1); ex(T0)
    A(f"v_cvt_pk_bf16_f32 v{T2+3}, v{T2}, v{T2+1}\nv_cvt_pk_bf16_f32 v{T2}, v{T2}, v{T2+1}\nv_mov_b32 v{T2+1}, 0")
    O0, O1, LA = ACC, ACC+4, T1
    m16 = lambda d, a, b, c: f"v_mfma_f32_16x16x16_bf16 {v(d,4)}, {v(a,2)}, {v(b,2)}, {c}"
    ex(T0+1); ex(T0+2)
    A(m16(O0, VACC, T2, "0"))
    ex(T0+3)
    A(m16(O1, VACC, T2+2, "0"))
    ex(T1); ex(T1+1)
    A(f"v_cvt_pk_bf16_f32 v{T0}, v{T0}, v{T0+1}\nv_cvt_pk_bf16_f32 v{T0+1}, v{T0+2}, v{T0+3}")
    ex(T1+2); ex(T1+3)
    A(f"v_cvt_pk_bf16_f32 v{T0+2}, v{T1}, v{T1+1}\nv_cvt_pk_bf16_f32 v{T0+3}, v{T1+2}, v{T1+3}")
    mark("exp")
    A(m16(LA, ONES, T2, "0"))
    A(f"s_waitcnt vmcnt({vmwait('vx')})")
    A(mf(LA, ONES, T0, v(LA,4)))
    RL = LA
    mz = lambda r: A(f"v_mov_b32 v{r}, 0")
    mz(T2); mz(T2+3)
    A(mf(O0, VX, T0, v(O0,4)))
    A("s_nop 1")
    A(mf(O1, VX+4, T0, v(O1,4)))
    mz(T0); mz(T0+1)
    A(f"v_rcp_f32 v{RL}, v{LA}")
    mz(T0+2); mz(T0+3)
    pkm = lambda r: A(f"v_pk_mul_f32 {v(r,2)}, {v(r,2)}, {v(RL,2)} op_sel_hi:[1,0]")
    pkm(O0); pkm(O0+2); mz(T1+3); pkm(O1); pkm(O1+2)
    for r in range(4): A(f"v_cvt_pk_bf16_f32 v{O0+r}, v{O0+r}, v{O1+r}")
    z16 = lambda d: A(mf(d, T2, T2, "0"))
    mark("pv")
    if keep: z16(VACC)
    lg.op(f"ds_write_b128 v{OW}, {v(O0,4)}", "ow")
    if keep:
        z16(VACC+4); mz(T1); mz(T1+1); mz(T1+2); A(f"v_mov_b32 v{XW2}, {L_ZERO}\ns_nop 1"); z16(VX)
    else:
        mz(T1); mz(T1+1); mz(T1+2); A(f"v_mov_b32 v{XW2}, {L_ZERO}")
        for r in range(VACC, VACC+16, 2): A(f"v_mov_b64 {v(r,2)}, 0")
    A(f"s_cmp_eq_u32 s{S_STEP}, 63\ns_cbranch_scc1 {L_exit}")
    lg.all()
    A("s_barrier")
    mark("b2")
    lg.op(f"ds_read_b128 {v(ACC,4)}, v{T16} offset:{L_O - w*1024}", ("o", 0))
    if keep: z16(VX+4)
    lg.op(f"ds_read_b128 {v(ACC+4,4)}, v{T16} offset:{L_O - w*1024 + 1024}", ("o", 1))
    if keep: A("s_nop 2"); z16(VX+4)
    accs = [MR, MR+4, MR+8, VACC, VACC+4, VX, VX+4, MR, MR+8]
    LZ = ACC + 8
    def tepi(P):
        a = accs[P]
        dst = a if (P & 1) or P == 0 else accs[P-1] + 1
        r = [f"v_add_f32 v{a}, v{a}, v{a+1}", f"v_add_f32 v{a+2}, v{a+2}, v{a+3}", f"v_cvt_pk_bf16_f32 v{dst}, v{a}, v{a+2}"]
        if P == 0: r += [f"buffer_store_dword v{a}, v{PS1}, {ws(s(S_PB))}", "Z7"]
        elif not P & 1: r += [f"buffer_store_dwordx2 {v(accs[P-1],2)}, v{PS}, {ws(s(so[(P-1) >> 1]))}"]
        if P == 2: r += ["Z8"]
        return r
    jl = [f"buffer_load_dwordx4 {v(LZ+4*i,4)}, v{T16}, {ws(s(S_A))} offset:{i*1024} sc1" for i in range(4)]
    ZA = XW2
    vq = []
    def vq1(n):
        for _ in range(n):
            if vq: A(vq.pop(0))
            if vq and vq[0][0] == "Z":
                P = int(vq.pop(0)[1]); dsq.append((f"ds_read_b128 {v(accs[P],4)}, v{ZA}", ("z", P)))
    order = [(0, 0), (1, 0), (0, 1), (1, 1)] + [(P, h) for P in range(2, 9) for h in range(2)]
    done = {}
    for hs, (P, half) in enumerate(order):
        T = TORD[P]
        if P == 0: need(("o", half))
        if half == 0: mark(f"t{P}")
        A(smf(accs[P], ACC + 4*half, ("o", T, half), WB[P % 3]))
        if half == 1:
            done[hs + lag - 1] = P
            if P + 3 < 8: dsq.extend([(x, ("wo", P + 3)) for x in wread(WB[P % 3], 9 + P + 3)])
        ds1()
        if hs + 1 < len(order):
            Pn, hn = order[hs + 1]
            if hn == 1 and Pn < 8: need(("wo", Pn))
            if hn == 0 and Pn >= 7: need(("z", Pn))
        if hs in done: vq += tepi(done.pop(hs))
        vq1(vper if vper else (1 + (hs & 1)))
    for hs in sorted(done): vq += tepi(done[hs])
    vq1(len(vq))
    mark("op")
    book = f"""s_add_u32 s{S_STEP}, s{S_STEP}, 1
    s_mov_b32 s{S_T0}, s{S_PB}
    s_mov_b32 s{S_PB}, s{S_PO}
    s_mov_b32 s{S_PO}, s{S_T0}
    s_and_b32 s{S_T0}, s{S_STEP}, 3
    s_lshl_b32 s{S_T0}, s{S_T0}, 14
    s_add_u32 s{S_GA}, s{S_T0}, {MEMI}
    s_add_u32 s{S_ST}, s{S_T0}, s{S_JOBST}
    s_xor_b32 s{S_T0}, s{S_T0}, {2 << 14}
    s_add_u32 s{S_PF}, s{S_T0}, s{S_JOBST}
    s_add_u32 s{S_KV}, s{S_KV}, {16384 if kvstep else 0}
    s_add_u32 s{S_KVM}, s{S_KVM}, {32*4096}
    s_add_u32 s{S_G1}, s{S_GA}, 4096
    s_add_u32 s{S_G2}, s{S_GA}, 8192
    s_mov_b32 s{S_SPIN}, 0""".split("\n")
    SEL, D = VACC+4, VACC
    CK = MR + 4
    L_nojob, L_red, L_red2 = f"L_nojob{w}", f"L_red{w}", f"L_redb{w}"
    selgen = [f"v_mov_b32 v{D}, 0x3f80", f"v_cndmask_b32 v{D}, v{D}, 1.0, s[{S_MK+8}:{S_MK+9}]"]
    selgen += [f"v_cndmask_b32 v{SEL+r}, 0, v{D}, s[{S_MK+2*r}:{S_MK+2*r+1}]" for r in range(4)]
    if w == 3:
        for x in book + pe + pl: A(x)
        if flags:
            A(f"""s_add_u32 s{S_T0}, s{S_STEP}, 1
            s_lshr_b32 s{S_T0}, s{S_T0}, 3
            s_min_u32 s{S_T0}, s{S_T0}, 7
            s_waitcnt vmcnt({vmwait('fl') + 5})
            L_kvw:
            v_readfirstlane_b32 s{S_T1}, v{MS}
            s_cmp_gt_u32 s{S_T1}, s{S_T0}
            s_cbranch_scc0 L_kvp""")
    else:
        if w == 2: A(f"s_cmp_eq_u32 s{S_HASJOB}, 0\ns_cbranch_scc1 {L_nojob}")
        fill = book + pe + selgen
        k = min(d1, len(fill))
        for x in fill[:k]: A(x)
        delay(A, d1 - k)
        mark("jl")
        for r in range(nA):
            for x in jl: A(x)
        for x in fill[k:]: A(x)
        def reduce(extra):
            for i in range(4):
                a = LZ + 4*i
                A(f"s_waitcnt vmcnt({extra+3-i})")
                ck = f"v_max3_u32 v{CK}, v{a}, v{a+1}, v{a+2}\nv_max_u32 v{CK}, v{CK}, v{a+3}" if i == 0 else \
                     f"v_max3_u32 v{CK}, v{CK}, v{a}, v{a+1}\nv_max3_u32 v{CK}, v{CK}, v{a+2}, v{a+3}"
                if extra: A(ck)
                A(mf(D, a, SEL, "0" if i == 0 else v(D,4)))
                if not extra: A(ck)
            A(cmp_sent(CK))
        reduce(4*(nA-1))
        mark("rd")
        if not nocomm: A(f"s_cbranch_vccnz {L_red}")
        A.label(L_red2)
        A(f"""v_permlane32_swap_b32 v{D}, v{D+2}
        v_permlane32_swap_b32 v{D+1}, v{D+3}
        v_pk_add_f32 {v(D,2)}, {v(D,2)}, {v(D+2,2)}
        v_cvt_pk_bf16_f32 v{D}, v{D}, v{D+1}
        buffer_store_dword v{D}, v{MS}, {ws(s(S_ST))}""")
    mark("st")
    A("s_barrier")
    if w < 3:
        if nA > 1: A("s_waitcnt vmcnt(1)")
        for x in pl: A(x)
    delay(A, dA + (10 if w == 3 else 0))
    A(f"s_branch L_gat{w}")
    if w < 3:
        A.label(L_red)
        cnt(S_CNT1)
        for r in range(nA - 1, 0, -1):
            reduce(4*(r-1))
            A(f"s_cbranch_vccz {L_red2}")
        A.label(L_red + "b")
        cnt(S_CNT3)
        for x in jl: A(x)
        A(spin_chk)
        reduce(0)
        A(f"s_cbranch_vccz {L_red2}\ns_branch {L_red}b")
    if w == 3 and flags:
        A(f"L_kvp:\ns_mov_b64 exec, 1\nbuffer_load_dword v{MS}, v{T4R}, {ws(s(S_BP))} sc1\ns_mov_b64 exec, -1\n{spin_chk}\ns_waitcnt vmcnt(0)\ns_branch L_kvw")
    if w == 2:
        A.label(L_nojob)
        for x in book + pe + pl: A(x)
        A("s_barrier")
        delay(A, dA + 10)
        A(f"s_branch L_gat{w}")

def emit_loops(A, L_exit, L_fail, **kw):
    for w in range(4): A(f"s_cmp_eq_u32 s{S_WV}, {w}\ns_cbranch_scc1 L_ent{w}")
    A(f"s_branch {L_fail}")
    for w in range(4): emit_loop(A, w, L_exit, L_fail, **kw)
```

```python
import sys, os
sys.path.insert(0, os.path.dirname(os.path.abspath(__file__)))
from common import *
import gemm as G, attn as AT, oproj as OP, team as T

NAME = "concat_heads__compressed_kv_cla__memory_aug_recurrent_mem_tr__prompt"
S_I = 60
S_OUT = 61

def set_flag(A, s_off, val):
    L = A.uniq("L_sf")
    A(f"s_waitcnt vmcnt(0)\ns_barrier\ns_cmp_lg_u32 s{S_WV}, 0\ns_cbranch_scc1 {L}")
    A(f"v_mov_b32 v20, 0\nv_mov_b32 v21, {val}\ns_mov_b64 exec, 1\nbuffer_store_dword v21, v20, {buf(S_WS, s(s_off))} sc1\ns_mov_b64 exec, -1")
    A.label(L)

def wait_init(A):
    A(f"v_mov_b32 v20, {D_INIT}")
    poll(A, 20, 21, 0, "v_cmp_ne_u32 vcc, 8, v21", "L_end", srd=S_DBG)

def stamp(A, i, on):
    if on: A(f"s_memrealtime s[{64+2*i}:{65+2*i}]")

def gen(stamps=False, roles="tkqoa", team_kw=None):
    A = Asm()
    A(f"""s_cmp_ge_u32 s2, 256
    s_cbranch_scc1 L_end
    s_getreg_b32 s{S_XCC}, hwreg(HW_REG_XCC_ID)
    s_and_b32 s{S_XCC}, s{S_XCC}, 7
    s_load_dwordx2 s[4:5], s[0:1], {WS*8}
    s_load_dwordx2 s[6:7], s[0:1], {DBG*8}
    v_lshrrev_b32 v1, 6, v0
    v_readfirstlane_b32 s{S_WV}, v1""")
    if stamps:
        for r in range(64, 82): A(f"s_mov_b32 s{r}, 0")
    A("s_waitcnt lgkmcnt(0)")
    stamp(A, 0, stamps)
    A.srd(S_WS, 4, WS_BYTES)
    A.srd(S_DBG, 6, 256)
    A(f"""s_cmp_eq_u32 s{S_WV}, 0
    s_cbranch_scc0 L_tk
    s_mov_b64 exec, 1
    v_mov_b32 v1, 1
    s_lshl_b32 s{S_T0}, s{S_XCC}, 2
    v_mov_b32 v2, 0
    buffer_atomic_add v1, v2, {buf(S_DBG, s(S_T0))} sc0
    s_waitcnt vmcnt(0)
    ds_write_b32 v2, v1
    s_waitcnt lgkmcnt(0)
    s_mov_b64 exec, -1
    L_tk:
    s_barrier
    v_mov_b32 v2, 0
    ds_read_b32 v1, v2
    s_waitcnt lgkmcnt(0)
    v_readfirstlane_b32 s{S_RANK}, v1
    s_barrier
    s_cmp_ge_u32 s{S_RANK}, 32
    s_cbranch_scc1 L_end
    s_cmp_eq_u32 s{S_XCC}, 0
    s_cbranch_scc1 {"L_team" if "t" in roles else "L_end"}
    s_cmp_eq_u32 s{S_XCC}, 1
    s_cbranch_scc1 {"L_bkv" if "k" in roles else "L_end"}
    s_cmp_eq_u32 s{S_XCC}, 2
    s_cbranch_scc1 {"L_batt" if "q" in roles else "L_end"}
    s_cmp_eq_u32 s{S_XCC}, 3
    s_cbranch_scc1 L_bout""")
    if "a" not in roles: A("s_branch L_end")
    H, C4 = AT.S_H, 62
    A(f"""s_sub_u32 s{S_T0}, s{S_XCC}, 4
    s_lshl_b32 s{S_T0}, s{S_T0}, 3
    s_lshr_b32 s{H}, s{S_RANK}, 2
    s_add_u32 s{H}, s{H}, s{S_T0}
    s_and_b32 s{C4}, s{S_RANK}, 3""")
    srd_arg(A, S_X, A_CKV, 2048*512*2)
    A(f"s_load_dwordx2 s[4:5], s[0:1], {A_WUK*8}\ns_load_dwordx2 s[6:7], s[0:1], {A_WUV*8}\ns_waitcnt lgkmcnt(0)\ns_cmp_ge_u32 s{S_WV}, 2\ns_cselect_b64 s[4:5], s[6:7], s[4:5]")
    A.srd(S_W, S_P, 512*4096*2)
    A(f"s_lshl_b32 s{S_T2}, s{H}, 8")
    G.setup(A, True, 1024, S_T2)
    A(f"s_mov_b32 s{S_I}, s{C4}")
    A.label("L_akv")
    A(f"s_lshl_b32 s{G.S_XB}, s{S_I}, 18")
    G.run(A, True, 16, 256, 32, "L_ga")
    A(f"s_lshl_b32 s{S_OUT}, s{H}, 3\ns_add_u32 s{S_OUT}, s{S_OUT}, s{S_I}\ns_lshl_b32 s{S_OUT}, s{S_OUT}, 17\ns_add_u32 s{S_OUT}, s{S_OUT}, {KVA}")
    G.kv_epilogue(A, S_OUT)
    wait_init(A)
    A(f"s_lshl_b32 s{S_OUT}, s{H}, 5\ns_add_u32 s{S_OUT}, s{S_OUT}, s{S_I}\ns_lshl_b32 s{S_OUT}, s{S_OUT}, 2\ns_add_u32 s{S_OUT}, s{S_OUT}, {F_AKV}")
    set_flag(A, S_OUT, 1)
    A(f"s_add_u32 s{S_I}, s{S_I}, 4\ns_cmp_lt_u32 s{S_I}, 8\ns_cbranch_scc1 L_akv")
    stamp(A, 1, stamps)
    srd_arg(A, S_X, A_X, 2048*576*2)
    srd_arg(A, S_W, A_WQ, 576*4096*2)
    AT.consts(A)
    A(f"s_sub_u32 s{AT.S_J}, 7, s{C4}\ns_mov_b32 s{S_I}, 0")
    A.label("L_aat")
    A(f"s_mul_i32 s{G.S_XB}, s{AT.S_J}, {256*1152}")
    AT.qproj(A, "L_gqa")
    A(f"v_and_b32 v20, 7, v{TID}\nv_lshlrev_b32 v20, 2, v20\ns_lshl_b32 s{S_T1}, s{H}, 7\ns_add_u32 s{S_T1}, s{S_T1}, {F_AKV}")
    poll(A, 20, 21, s(S_T1), "v_cmp_ne_u32 vcc, 1, v21", "L_end")
    AT.emit_A(A, "L_at", "L_end")
    A(f"s_lshl_b32 s{S_OUT}, s{AT.S_J}, 5\ns_add_u32 s{S_OUT}, s{S_OUT}, s{H}\ns_lshl_b32 s{S_OUT}, s{S_OUT}, 2\ns_add_u32 s{S_OUT}, s{S_OUT}, {F_CTXA}")
    set_flag(A, S_OUT, 1)
    A(f"s_mov_b32 s{AT.S_J}, s{C4}\ns_add_u32 s{S_I}, s{S_I}, 1\ns_cmp_lt_u32 s{S_I}, 2\ns_cbranch_scc1 L_aat")
    stamp(A, 2, stamps)
    A(f"s_cmp_ge_u32 s{S_RANK}, 24\ns_cbranch_scc1 L_done")
    srd_arg(A, S_W, A_WO, 4096*576*2)
    A(f"""s_cmp_ge_u32 s{S_RANK}, 12
    s_cselect_b32 s{S_T0}, 1, 0
    s_mul_i32 s{S_T1}, s{S_T0}, 12
    s_sub_u32 s{OP.S_SL}, s{S_RANK}, s{S_T1}
    s_sub_u32 s{S_T1}, s{S_XCC}, 4
    s_lshl_b32 s{S_T1}, s{S_T1}, 1
    s_add_u32 s{OP.S_U}, s{S_T1}, s{S_T0}
    s_mov_b32 s{OP.S_US}, 8
    s_mov_b32 s{OP.S_CTX}, {CTXA}
    s_mov_b32 s{OP.S_FLG}, {F_CTXA}
    s_mov_b32 s{OP.S_FSH}, 4
    s_mov_b32 s{OP.S_COL}, 0
    s_branch L_op""")
    A.label("L_bout")
    A(f"s_cmp_lt_u32 s{S_RANK}, 24\ns_cbranch_scc1 {'L_bo' if 'o' in roles else 'L_end'}")
    A(f"""v_lshlrev_b32 v1, 4, v0
    v_mov_b64 v[4:5], 0
    v_mov_b64 v[6:7], 0
    s_sub_u32 s{S_T0}, s{S_RANK}, 24
    s_lshl_b32 s{S_T0}, s{S_T0}, 12
    s_add_u32 s{S_T0}, s{S_T0}, {FLAGS}
    buffer_store_dwordx4 v[4:7], v1, {buf(S_WS, s(S_T0))} sc1
    s_waitcnt vmcnt(0)
    s_barrier
    s_cmp_lg_u32 s{S_WV}, 0
    s_cbranch_scc1 L_end
    v_mov_b32 v1, 1
    v_mov_b32 v2, {D_INIT}
    s_mov_b64 exec, 1
    buffer_atomic_add v1, v2, {buf(S_DBG, 0)}
    s_waitcnt vmcnt(0)
    s_endpgm""")
    A.label("L_bo")
    srd_arg(A, S_W, B_WO, 4096*576*2)
    A(f"""s_cmp_ge_u32 s{S_RANK}, 12
    s_cselect_b32 s{OP.S_U}, 1, 0
    s_mul_i32 s{S_T1}, s{OP.S_U}, 12
    s_sub_u32 s{OP.S_SL}, s{S_RANK}, s{S_T1}
    s_mov_b32 s{OP.S_US}, 2
    s_mov_b32 s{OP.S_CTX}, {CTXB}
    s_mov_b32 s{OP.S_FLG}, {F_CTXB}
    s_mov_b32 s{OP.S_FSH}, 1
    s_mov_b32 s{OP.S_COL}, 1152""")
    A.label("L_op")
    A(f"s_mov_b32 s{OP.S_UE}, 128")
    srd_arg(A, S_X, OUT, 2048*1152*2)
    OP.load_weights(A)
    wait_init(A)
    stamp(A, 3, stamps)
    OP.run(A, "L_opl", "L_end")
    A("s_branch L_done")
    A.label("L_bkv")
    srd_arg(A, S_X, B_X, 2048*576*2)
    A(f"s_load_dwordx2 s[4:5], s[0:1], {B_WK*8}\ns_load_dwordx2 s[6:7], s[0:1], {B_WV*8}\ns_waitcnt lgkmcnt(0)\ns_cmp_ge_u32 s{S_WV}, 2\ns_cselect_b64 s[4:5], s[6:7], s[4:5]")
    A.srd(S_W, S_P, 576*4096*2)
    A(f"s_lshl_b32 s{S_T2}, s{S_RANK}, 8")
    G.setup(A, True, 1152, S_T2)
    A(f"s_mov_b32 s{S_I}, 0")
    A.label("L_bkvl")
    A(f"s_mul_i32 s{G.S_XB}, s{S_I}, {256*1152}")
    G.run(A, True, 18, 256, 32, "L_gb")
    A(f"s_lshl_b32 s{S_OUT}, s{S_RANK}, 3\ns_add_u32 s{S_OUT}, s{S_OUT}, s{S_I}\ns_lshl_b32 s{S_OUT}, s{S_OUT}, 17\ns_add_u32 s{S_OUT}, s{S_OUT}, {KVB}")
    G.kv_epilogue(A, S_OUT)
    wait_init(A)
    A(f"s_lshl_b32 s{S_OUT}, s{S_RANK}, 7\ns_add_u32 s{S_OUT}, s{S_OUT}, {F_BKV}\ns_add_u32 s{S_I}, s{S_I}, 1")
    set_flag(A, S_OUT, s(S_I))
    if stamps: A(f"s_cmp_eq_u32 s{S_I}, 1\ns_cbranch_scc0 L_bs\ns_memrealtime s[66:67]\nL_bs:")
    A(f"s_cmp_lt_u32 s{S_I}, 8\ns_cbranch_scc1 L_bkvl\ns_branch L_done")
    A.label("L_batt")
    srd_arg(A, S_X, B_X, 2048*576*2)
    srd_arg(A, S_W, B_WQ, 576*4096*2)
    AT.consts(A)
    A(f"s_mov_b32 s{H}, s{S_RANK}\ns_mov_b32 s{AT.S_J}, 0")
    A.label("L_battl")
    A(f"s_mul_i32 s{G.S_XB}, s{AT.S_J}, {256*1152}\ns_barrier")
    AT.qproj(A, "L_gqb")
    wait_init(A)
    A(f"v_mov_b32 v20, 0\ns_lshl_b32 s{S_T1}, s{H}, 7\ns_add_u32 s{S_T1}, s{S_T1}, {F_BKV}")
    poll(A, 20, 21, s(S_T1), f"v_cmp_ge_u32 vcc, s{AT.S_J}, v21", "L_end")
    AT.emit_B(A, "L_bt", "L_end")
    A(f"s_add_u32 s{AT.S_J}, s{AT.S_J}, 1\ns_cmp_lt_u32 s{AT.S_J}, 8\ns_cbranch_scc1 L_battl\ns_branch L_done")
    A.label("L_team")
    T.emit_setup(A)
    T.emit_init_sentinels(A)
    A(f"""v_lshrrev_b32 v0, 4, v{T.T16}
    s_waitcnt vmcnt(0)
    s_barrier
    s_cmp_eq_u32 s{S_WV}, 0
    s_cbranch_scc0 L_tw
    s_mov_b64 exec, 1
    v_mov_b32 v1, 1
    v_mov_b32 v2, {D_TEAM}
    buffer_atomic_add v1, v2, {buf(S_DBG, 0)}
    s_mov_b64 exec, -1
    L_tw:""")
    T.emit_loader(A)
    stamp(A, 1, stamps)
    A(f"v_mov_b32 v20, {D_TEAM}")
    poll(A, 20, 21, 0, "v_cmp_ne_u32 vcc, 32, v21", "L_end", srd=S_DBG)
    wait_init(A)
    A(f"v_mov_b32 v20, 0\ns_lshl_b32 s{S_T1}, s{S_RANK}, 7\ns_add_u32 s{S_T1}, s{S_T1}, {F_BKV}")
    poll(A, 20, 21, s(S_T1), f"v_cmp_ge_u32 vcc, 0, v21", "L_end")
    T.emit_setup(A)
    T.emit_mem0(A)
    stamp(A, 2, stamps)
    A(f"s_mov_b32 s{T.S_SPIN}, 0")
    kw = dict(nv1=2, wstride=128, d1=40, dA=30, spin=SPIN_MAX, flags=True)
    kw.update(team_kw or {})
    T.emit_loops(A, "L_texit", "L_end", **kw)
    A.label("L_texit")
    A(f"s_lshl_b32 s{S_OUT}, s{S_RANK}, 7\ns_add_u32 s{S_OUT}, s{S_OUT}, {F_TEAM}")
    set_flag(A, S_OUT, 64)
    A.label("L_done")
    if stamps:
        stamp(A, 4, True)
        A(f"""s_waitcnt vmcnt(0) lgkmcnt(0)
        s_lshl_b32 s{S_T0}, s{S_XCC}, 5
        s_add_u32 s{S_T0}, s{S_T0}, s{S_RANK}
        s_lshl_b32 s{S_T0}, s{S_T0}, 5
        s_add_u32 s{S_T0}, s{S_T0}, {STAMP}
        v_mov_b32 v1, 0""")
        for i in range(5): A(f"v_mov_b32 v2, s{64+2*i}\nbuffer_store_dword v2, v1, {buf(S_WS, s(S_T0))} offset:{4*i}")
    A.label("L_end")
    k = NAME + "_kernel"
    ref = open(os.path.join(os.path.dirname(os.path.abspath(__file__)), "..", NAME + ".s.ref")).read()
    hdr = ref[:ref.index("; Override launch geometry")]
    return hdr + f"""; Generated by gen/build.py (hand-written generator; see gen/*.py)
; @launch grid=(256,1,1) block=(256,1,1) lds=163840
.amdgcn_target "amdgcn-amd-amdhsa--gfx950"
.text
.globl {k}
.p2align 8
.type {k},@function
{k}:
{A.text()}s_endpgm
.section .rodata,"a"
.p2align 6
.amdhsa_kernel {k}
  .amdhsa_next_free_vgpr 512
  .amdhsa_next_free_sgpr 102
  .amdhsa_accum_offset 256
  .amdhsa_group_segment_fixed_size 0
  .amdhsa_kernarg_size 128
  .amdhsa_user_sgpr_count 2
  .amdhsa_user_sgpr_kernarg_segment_ptr 1
  .amdhsa_system_sgpr_workgroup_id_x 1
.end_amdhsa_kernel
"""

if __name__ == "__main__":
    out = os.path.join(os.path.dirname(os.path.abspath(__file__)), "..", NAME + ".s")
    open(out, "w").write(gen())
    print("written", out)
```

```python
import re

def v(a, n=1): return f"v{a}" if n == 1 else f"v[{a}:{a+n-1}]"
def a_(a, n=1): return f"a{a}" if n == 1 else f"a[{a}:{a+n-1}]"
def s(a, n=1): return f"s{a}" if n == 1 else f"s[{a}:{a+n-1}]"
def R(r, n=1):
    assert (r < 256) == (r + n - 1 < 256), (r, n)
    return v(r, n) if r < 256 else a_(r - 256, n)

_reg = re.compile(r"^(-|abs\()?([vas])(\d+|\[(\d+):(\d+)\])\)?$")
def regs_of(op):
    op = op.strip()
    if op in ("vcc", "vcc_lo", "vcc_hi"): return {("s", "vcc")}
    if op in ("exec", "exec_lo", "exec_hi"): return {("s", "exec")}
    if op == "m0": return {("s", "m0")}
    m = _reg.match(op)
    if not m: return set()
    k = m.group(2)
    if m.group(4) is not None: lo, hi = int(m.group(4)), int(m.group(5))
    else: lo = hi = int(m.group(3))
    if k == "a": k, lo, hi = "v", lo + 256, hi + 256
    return {(k, i) for i in range(lo, hi + 1)}

TRANS = ("v_exp_f32", "v_log_f32", "v_rcp_f32", "v_rsq_f32", "v_sqrt_f32", "v_sin_f32", "v_cos_f32", "v_rcp_iflag_f32")

class Ins:
    __slots__ = ("text", "op", "ops", "kind", "defs", "uses", "passes", "srcA", "srcB", "srcC", "dpp", "trans",
                 "perm", "stdata", "lds_dma", "label", "target", "states", "rdlane_src", "sread", "lanesel")
    def __init__(self, text):
        self.text = text
        t = text.split(";")[0].strip()
        self.label = None; self.target = None; self.kind = "none"; self.defs = set(); self.uses = set()
        self.passes = 0; self.srcA = self.srcB = self.srcC = set(); self.dpp = False; self.trans = False
        self.perm = False; self.stdata = set(); self.lds_dma = False; self.states = 1; self.rdlane_src = set()
        self.sread = set(); self.lanesel = set(); self.op = ""; self.ops = []
        if not t or t.startswith("."):
            self.states = 0; return
        if t.endswith(":"):
            self.label = t[:-1]; self.states = 0; return
        p = t.split(None, 1)
        op = self.op = p[0]
        rest = p[1] if len(p) > 1 else ""
        bm = " ".join(re.findall(r"\s\w+:\[[^\]]*\]", rest))
        rest = re.sub(r"\s\w+:\[[^\]]*\]", "", rest)
        ops = [x.strip() for x in rest.split(",")] if rest else []
        mods = ""
        if ops:
            q = ops[-1].split(None, 1)
            ops[-1] = q[0]; mods = q[1] if len(q) > 1 else ""
        mods += bm
        self.ops = ops
        ro = [regs_of(x) for x in ops]
        U = lambda l: set().union(*l) if l else set()
        if op.startswith("v_mfma") or op.startswith("v_smfmac"):
            self.kind = "mfma"
            self.passes = 8 if "32x32" in op else 4
            assert "bf16" in op and "4x4" not in op, op
            self.defs = ro[0]; self.srcA = ro[1]; self.srcB = ro[2]
            if op.startswith("v_smfmac"):
                self.srcC = ro[0]; self.srcB = ro[2] | ro[3]
            else:
                self.srcC = ro[3]
            self.uses = self.srcA | self.srcB | self.srcC
        elif op.startswith("v_"):
            self.kind = "valu"
            base = op.replace("_e32", "").replace("_e64", "").replace("_dpp", "").replace("_sdwa", "")
            self.trans = base in TRANS
            self.dpp = "_dpp" in op or "row_" in mods or "quad_perm" in mods
            if base.startswith("v_permlane"):
                self.perm = True; self.defs = ro[0] | ro[1]; self.uses = ro[0] | ro[1]
            elif base.startswith("v_cmpx"):
                self.defs = ro[0] | {("s", "exec")}; self.uses = U(ro[1:])
            elif base in ("v_add_co_u32", "v_sub_co_u32", "v_addc_co_u32", "v_subb_co_u32", "v_mad_u64_u32"):
                self.defs = ro[0] | ro[1]; self.uses = U(ro[2:])
            elif base in ("v_readfirstlane_b32", "v_readlane_b32"):
                self.defs = ro[0]; self.uses = U(ro[1:]); self.rdlane_src = ro[1]
                if len(ro) > 2: self.lanesel = ro[2]
            elif base == "v_writelane_b32":
                self.defs = ro[0]; self.uses = U(ro); self.lanesel = ro[2]
            elif base == "v_nop":
                pass
            else:
                self.defs = ro[0]; self.uses = U(ro[1:])
                if base.startswith("v_fmac") or base.startswith("v_dot2c") or self.dpp: self.uses |= ro[0]
            self.sread = {r for r in self.uses if r[0] == "s"} - self.lanesel
        elif op.startswith("ds_"):
            self.kind = "ds"
            if op.startswith("ds_read") or "permute" in op or "swizzle" in op or "_rtn" in op:
                self.defs = ro[0]; self.uses = U(ro[1:])
            else:
                self.uses = U(ro)
        elif op.startswith("buffer_") or op.startswith("global_"):
            self.kind = "vmem"
            allm = mods.split()
            if op in ("buffer_wbl2", "buffer_inv"):
                pass
            elif "lds" in allm or "load_lds" in op:
                self.lds_dma = True; self.uses = U(ro) | {("s", "m0")}
            elif "_load_" in op:
                self.defs = ro[0]; self.uses = U(ro[1:])
                if "d16" in op: self.uses |= ro[0]
            elif "_store_" in op:
                self.uses = U(ro)
                d = ro[0] if op.startswith("buffer_") else ro[1]
                if "x3" in op or "x4" in op: self.stdata = d
            elif "_atomic_" in op:
                self.uses = U(ro)
                if "sc0" in allm: self.defs = ro[0]
            else:
                raise ValueError(text)
        elif op.startswith("s_"):
            self.kind = "salu"
            if op == "s_nop":
                self.states = int(ops[0], 0) + 1
            elif op.startswith("s_cbranch") or op == "s_branch":
                self.target = ops[0]
            elif op in ("s_waitcnt", "s_barrier", "s_endpgm", "s_sleep", "s_setprio") or op.startswith("s_cmp") or op.startswith("s_bitcmp"):
                self.uses = U(ro)
            elif op.startswith("s_setpc"):
                self.uses = U(ro)
            else:
                self.defs = ro[0] if ro else set(); self.uses = U(ro[1:])
                if "saveexec" in op: self.defs = self.defs | {("s", "exec")}
        else:
            raise ValueError("unknown instr: " + text)

def need(p, c):
    n = 0
    vd = {r for r in p.defs if r[0] == "v"}
    sd = {r for r in p.defs if r[0] == "s"}
    if p.kind == "valu":
        if c.kind == "mfma":
            if vd & c.uses: n = max(n, 2)
            if ("s", "exec") in sd: n = max(n, 4)
        if c.kind == "valu":
            if (c.perm or c.dpp) and vd & c.uses: n = max(n, 2)
            if vd & c.rdlane_src: n = max(n, 1)
            if p.trans and vd & c.uses: n = max(n, 1)
            if sd & c.sread: n = max(n, 2)
            if sd & c.lanesel: n = max(n, 4)
            if ("s", "exec") in sd and (c.perm or c.rdlane_src or c.dpp): n = max(n, 5)
        if c.kind == "vmem" and sd & c.uses: n = max(n, 5)
        if c.kind == "salu" and sd & c.uses and not c.target: n = max(n, 1)
    elif p.kind == "mfma":
        P = p.passes
        if c.kind == "mfma":
            if vd & c.srcC:
                if not (vd == c.srcC and c.passes == P): n = max(n, P + 2)
            if vd & (c.srcA | c.srcB): n = max(n, P + 4)
            if vd & c.defs and not vd & c.srcC and not (vd == c.defs and c.passes == P): n = max(n, P + 2)
        elif c.kind in ("valu", "ds", "vmem"):
            if vd & (c.uses | c.defs): n = max(n, P + 4)
            if p.srcC & c.defs: n = max(n, P - 1)
    elif p.kind == "vmem":
        if p.stdata & c.defs: n = max(n, 2)
    elif p.kind == "salu":
        if ("s", "m0") in sd and c.lds_dma: n = max(n, 1)
    return n

def fix_hazards(lines, verbose=False):
    ins = [Ins(l) for l in lines]
    MAXW = 13
    total = 0
    for it in range(10):
        labels = {x.label: i for i, x in enumerate(ins) if x.label}
        jumps = {}
        for i, x in enumerate(ins):
            if x.target in labels: jumps.setdefault(labels[x.target], []).append(i)
        def preds(i):
            r = list(jumps.get(i, [])) if ins[i].label else []
            if i > 0 and ins[i-1].op not in ("s_branch", "s_endpgm", "s_setpc_b64"): r.append(i - 1)
            return r
        add = {}
        for i, c in enumerate(ins):
            if c.kind in ("none",): continue
            worst = 0
            stack = [(j, 0) for j in preds(i)]
            seen = {}
            while stack:
                j, d = stack.pop()
                if seen.get(j, 99) <= d: continue
                seen[j] = d
                p = ins[j]
                if p.kind != "none":
                    k = need(p, c) - d
                    if k > worst: worst = k
                d2 = d + p.states + add.get(j, 0)
                if d2 < MAXW:
                    stack.extend((q, d2) for q in preds(j))
            if worst > 0: add[i] = worst
        if not add: break
        out = []
        for i, x in enumerate(ins):
            if i in add:
                n = add[i]; total += n
                if verbose: print(f"hazard: +{n} before: {x.text}")
                out.append(Ins(f"s_nop {n-1}"))
            out.append(x)
        ins = out
    return [x.text for x in ins]

def hoist_waits(lines):
    out = []
    for x in lines:
        m = re.fullmatch(r"s_waitcnt lgkmcnt\((\d+)\)", x)
        if m:
            n = int(m.group(1)); j = len(out); k = 0
            while j > 0 and (out[j-1].startswith(("ds_", "buffer_")) or (out[j-1].startswith("v_") and "mfma" not in out[j-1])):
                if out[j-1].startswith("ds_"): k += 1
                j -= 1
            if j > 0 and j < len(out) and "mfma" in out[j-1] and len(out) - j <= 4 and n >= k:
                out.insert(j, f"s_waitcnt lgkmcnt({n - k})"); continue
        out.append(x)
    return out

class Asm:
    def __init__(self):
        self.l = []
        self._u = 0
    def __call__(self, text):
        for t in text.split("\n"):
            t = t.strip()
            if t: self.l.append(t)
    def label(self, name): self.l.append(name + ":")
    def uniq(self, p="L"):
        self._u += 1; return f"{p}_{self._u}"
    def srd(self, d, base, nbytes):
        self(f"s_mov_b32 s{d}, s{base}\ns_and_b32 s{d+1}, s{base+1}, 0xffff\ns_mov_b32 s{d+2}, {nbytes}\ns_mov_b32 s{d+3}, 0x20000")
    def text(self, verbose=False):
        return "\n".join(fix_hazards(self.l, verbose)) + "\n"

def interleave(main, fill, per=1, start=0):
    out = []; k = 0
    for i, m in enumerate(main):
        out.append(m)
        if i >= start:
            for _ in range(per):
                if k < len(fill): out.append(fill[k]); k += 1
    return out + fill[k:]
```

```python
from common import *
BUFSZ = 32768

O0 = 128
SB = [32, 64]
PB = [96, 112]
QA = 256
FR = 256 + 64
M_, L_, AL, TM = 20, 22, 24, 26
A_DM, A_KC, A_KN, A_VP = 1, 2, 3, 4
A_MK, A_CT = 5, 6
S_C, S_J, S_H, S_T, S_TD, S_NT, S_SO, S_M0, S_FL, S_KVH, S_NEG, S_THR = 40, 41, 42, 43, 44, 45, 46, 47, 48, 49, 50, 51
S_RET, S_CT, S_DL = 52, 54, 55
S_SM = 52
Oa = lambda T, a: O0 + 16*(2*T + a)
mf32 = lambda d, a, b, c: f"v_mfma_f32_32x32x16_bf16 {R(d,16)}, {R(a,4)}, {R(b,4)}, {c}"

def consts(A, thr=20.0):
    A(f"s_mov_b32 s{S_C}, {f32bits(SCALE_LOG2E):#x}\ns_mov_b32 s{S_NEG}, {f32bits(-1e30):#x}\ns_mov_b32 s{S_THR}, {f32bits(thr):#x}")

def lane_regs(A):
    A(f"""v_and_b32 v{A_MK}, 31, v{TID}
    v_bfe_u32 v{TM}, v{TID}, 5, 1
    v_lshlrev_b32 v{TM+1}, 2, v{TM}
    v_sub_u32 v{A_MK}, v{A_MK}, v{TM+1}
    v_bfe_u32 v{TM+1}, v{TID}, 4, 1
    v_lshlrev_b32 v{A_CT}, 17, v{TM+1}
    v_lshl_add_u32 v{A_CT}, v{TM}, 8, v{A_CT}
    v_and_b32 v{TM+1}, 15, v{TID}
    v_lshl_add_u32 v{A_CT}, v{TM+1}, 4, v{A_CT}""")

def diag_mask(S):
    l = []
    for r in range(16):
        l += [f"v_cmp_le_i32 vcc, {8*(r >> 2) + (r & 3)}, v{A_MK}", f"v_cndmask_b32 v{S+r}, v{TM+5}, v{S+r}, vcc"]
    return [f"v_mov_b32 v{TM+5}, s{S_NEG}"] + l

def ctx_store(A, a, s_off, lreg, fl='sc1'):
    t = TM
    A(f"""v_mov_b32 v{t}, v{lreg}
    v_permlane32_swap_b32 v{t}, v{lreg}
    v_add_f32 v{t}, v{t}, v{lreg}
    v_rcp_f32 v{t}, v{t}""")
    for T in range(4):
        o = Oa(T, a)
        for i in range(0, 16, 2): A(f"v_pk_mul_f32 {v(o+i,2)}, {v(o+i,2)}, {v(t,2)} op_sel_hi:[1,0]")
        for hf in range(2):
            for i in range(4): A(f"v_cvt_pk_bf16_f32 v{o+8*hf+i}, v{o+8*hf+2*i}, v{o+8*hf+2*i+1}")
            A(f"buffer_store_dwordx4 {v(o+8*hf,4)}, v{A_CT}, {buf(S_WS, s(s_off))} offset:{T*1024 + hf*512} {fl}")

NR = 8
LEAD = 4
OA = 256 + 96
NM = 128
OAa = lambda T, a: OA + 16*(2*T + a)

def emit_A(A, name, L_fail, skip=2):
    lane_regs(A)
    A(f"""v_and_b32 v{A_KC}, 63, v{TID}
    v_lshlrev_b32 v{A_KC}, 4, v{A_KC}
    s_lshl_b32 s{S_T0}, s{S_WV}, 13
    v_add_u32 v{A_DM}, s{S_T0}, v{A_KC}
    v_add_u32 v{A_KN}, {BUFSZ}, v{A_KC}
    v_mov_b32 v{A_VP}, v{A_KC}
    s_lshl_b32 s{S_SO}, s{S_H}, 20
    s_add_u32 s{S_SO}, s{S_SO}, {KVA}
    s_mov_b32 s{S_M0}, s{S_T0}
    s_lshl_b32 s{S_TD}, s{S_J}, 2
    s_add_u32 s{S_NT}, s{S_TD}, 4
    s_add_u32 s{S_TD}, s{S_TD}, s{S_WV}
    s_mov_b32 s{S_T}, 0
    s_mov_b32 s{S_FL}, 0
    s_mov_b32 s{S_CT}, s{S_NEG}
    s_mov_b32 s{S_DL}, s{S_NEG}
    s_barrier""")
    def dma():
        l = [[f"s_mov_b32 m0, s{S_M0}"], [f"s_add_u32 s{S_T0}, s{S_SO}, 4096"]]
        l += [[f"buffer_load_dwordx4 v{A_DM}, {buf(S_WS, s(S_SO))} offset:{1024*j} sc1 lds"] for j in range(4)]
        l += [[f"s_add_u32 m0, s{S_M0}, 4096"]]
        l += [[f"buffer_load_dwordx4 v{A_DM}, {buf(S_WS, s(S_T0))} offset:{1024*j} sc1 lds"] for j in range(4)]
        l += [[f"s_add_u32 s{S_SO}, s{S_SO}, {BUFSZ}"], [f"s_add_u32 s{S_M0}, s{S_M0}, {BUFSZ}"], [f"s_and_b32 s{S_M0}, s{S_M0}, {4*BUFSZ-1}"]]
        return l
    sel = [[f"s_add_u32 s{S_T0}, s{S_T}, 3"], [f"s_cmp_lt_u32 s{S_T0}, s{S_NT}", f"s_cselect_b32 s{S_SO}, s{S_SO}, {OOB}"]]
    A(f"""s_lshr_b32 s{S_T2}, s{S_H}, 1
    s_lshl_b32 s{S_T2}, s{S_T2}, 6
    s_lshl_b32 s{S_T3}, s{S_TD}, 1
    s_add_u32 s{S_T2}, s{S_T2}, s{S_T3}
    s_lshl_b32 s{S_T2}, s{S_T2}, 1
    s_and_b32 s{S_T3}, s{S_H}, 1
    s_add_u32 s{S_T2}, s{S_T2}, s{S_T3}
    s_lshl_b32 s{S_T2}, s{S_T2}, 13
    s_add_u32 s{S_T2}, s{S_T2}, {QA_}""")
    for a in range(2):
        for q in range(2):
            A(f"s_add_u32 s{S_T3}, s{S_T2}, {a*16384 + q*4096}")
            for i in range(4): A(f"buffer_load_dwordx4 {R(QA + 32*a + 16*q + 4*i, 4)}, v{A_KC}, {buf(S_WS, s(S_T3))} offset:{1024*i} sc1")
    for t in range(3):
        for g in dma():
            for x in g: A(x)
    for r in range(OA, OA + 128): A(f"v_accvgpr_write_b32 a{r-256}, 0")
    for r in list(range(PB[1], PB[1] + 16, 2)) + list(range(NM, NM + 32, 2)) + [L_]: A(f"v_mov_b64 {v(r,2)}, 0")
    kfr = lambda ad, blk: [(ad, blk*16384 + ks*1024) for ks in range(8)]
    vfr = lambda ad, blk: [(ad, blk*16384 + 8192 + i*1024) for i in range(8)]
    rd = lambda i, f: f"ds_read_b128 {R(FR + 4*(i % NR), 4)}, v{f[0]} offset:{f[1]}"
    def s_mm(S, fi):
        return [[mf32(S + 16*a, FR + 4*((fi + ks) % NR), QA + 32*a + 4*ks, R(NM + 16*a if ks == 0 else S + 16*a, 16))] for ks in range(8) for a in range(2)]
    def pv_mm(P, fi):
        return [[mf32(OAa(i >> 1, a), FR + 4*((fi + i) % NR), P + 8*a + 4*(i & 1), R(OAa(i >> 1, a), 16))] for i in range(8) for a in range(2)]
    def add_reads(groups, frs):
        for i, f in enumerate(frs):
            groups[2*i].insert(1, rd(i + LEAD, f))
            groups[2*i + 1].insert(1, f"s_waitcnt lgkmcnt({LEAD-1})")
    prof(A, "at0")
    A("s_waitcnt vmcnt(16)\ns_barrier")
    prof(A, "at1")
    k0 = kfr(A_KC, 0); vp = vfr(A_VP, 1)
    for i in range(LEAD): A(rd(i, k0[i]))
    A(f"s_waitcnt lgkmcnt({LEAD-1})")
    g = s_mm(SB[0], 0); add_reads(g, k0[LEAD:] + vp[:LEAD])
    for x in sum(g, []): A(x)
    def softmax(par, mask, tag):
        S, P = SB[par], PB[par]
        pre = []
        if mask == 0: pre += diag_mask(S)
        if mask == 1: pre += diag_mask(S + 16) + [f"v_mov_b32 v{S+r}, v{TM+5}" for r in range(16)]
        t = TM
        pre.append(f"v_max3_f32 v{t}, v{S}, v{S+1}, v{S+2}")
        for i in range(3, 31, 2): pre.append(f"v_max3_f32 v{t}, v{t}, v{S+i}, v{S+i+1}")
        pre += [f"v_max_f32 v{t}, v{t}, v{S+31}", f"v_cmp_lt_f32 vcc, s{S_CT}, v{t}", "BR"]
        st = [[], []]
        for a in range(2):
            for i in range(0, 16, 2):
                r = S + 16*a + i
                st[0].append([f"v_exp_f32 v{r}, v{r}", f"v_exp_f32 v{r+1}, v{r+1}"])
                st[1].append([f"v_add_f32 v{L_+a}, v{L_+a}, v{r}", f"v_add_f32 v{L_+a}, v{L_+a}, v{r+1}", f"v_cvt_pk_bf16_f32 v{P + 8*a + i//2}, v{r}, v{r+1}"])
        body = []
        for k in range(17):
            if k < 16: body.append(st[0][k][0])
            if k > 0: body += st[1][k - 1][:2]
            if k < 16: body.append(st[0][k][1])
            if k > 0: body.append(st[1][k - 1][2])
        return pre, body
    cold = []
    def update(tag, par):
        S = SB[par]
        A.label(f"{name}_up{tag}")
        for a in range(2):
            s_ = S + 16*a; t, u = TM, TM + 1
            A(f"v_max3_f32 v{t}, v{s_}, v{s_+1}, v{s_+2}")
            for i in range(3, 15, 2): A(f"v_max3_f32 v{t}, v{t}, v{s_+i}, v{s_+i+1}")
            A(f"""v_max_f32 v{t}, v{t}, v{s_+15}
            v_mov_b32 v{u}, v{t}
            v_permlane32_swap_b32 v{u}, v{t}
            v_max3_f32 v{t}, v{t}, v{u}, s{S_DL}
            v_exp_f32 v{AL+a}, -v{t}""")
            for i in range(16): A(f"v_sub_f32 v{s_+i}, v{s_+i}, v{t}\nv_sub_f32 v{NM+16*a+i}, v{NM+16*a+i}, v{t}")
            A(f"v_min_f32 v{AL+a}, 1.0, v{AL+a}\nv_mul_f32 v{L_+a}, v{L_+a}, v{AL+a}")
        A(f"s_cmp_eq_u32 s{S_DL}, 0\ns_cselect_b32 s{S_FL}, 1, 0\ns_mov_b32 s{S_DL}, 0\ns_mov_b32 s{S_CT}, s{S_THR}\ns_branch {name}_upr{tag}")
        A.label(f"{name}_rs{tag}")
        A(f"s_getpc_b64 s[{S_RET}:{S_RET+1}]\ns_add_u32 s{S_RET}, s{S_RET}, 12\ns_addc_u32 s{S_RET+1}, s{S_RET+1}, 0\ns_branch {name}_rescale\ns_branch {name}_rsr{tag}")
    def step(par, mask, do_s, tag, nxt, extra=None, post=()):
        vf = vfr(A_VP, 1) if par == 0 else vfr(A_KC, 0)
        kf = kfr(A_KC, 1) if par == 0 else kfr(A_KN, 0)
        g = pv_mm(PB[1 - par], 0)
        if do_s:
            g += s_mm(SB[1 - par], 8)
            add_reads(g, vf[LEAD:] + kf + nxt)
        else:
            add_reads(g, vf[LEAD:] + nxt)
        if extra:
            for i, e in enumerate(extra): g[(2*i + 1) if do_s else i] += e
        g[15] += [f"s_cmp_eq_u32 s{S_FL}, 0", f"s_cbranch_scc0 {name}_rs{tag}", f"{name}_rsr{tag}:"]
        pre, body = softmax(par, mask, tag)
        npre = 6 if mask is None else 14
        g[npre] += [f"s_cbranch_vccnz {name}_up{tag}", f"{name}_upr{tag}:"]
        out = merge(g[:npre], pre[:-1], skip=skip) + merge(g[npre:], body + list(post))
        if post: assert out.index(post[0]) > max(i for i, x in enumerate(out) if x.startswith("ds_read"))
        for x in out: A(x)
        cold.append((tag, par))
    rot = [f"v_mov_b32 v{A_VP}, v{A_KC}", f"v_mov_b32 v{A_KC}, v{A_KN}", f"v_add_u32 v{A_KN}, {BUFSZ}, v{A_KN}", f"v_and_b32 v{A_KN}, {4*BUFSZ-1}, v{A_KN}"]
    A(f"s_cmp_eq_u32 s{S_TD}, 0\ns_cbranch_scc1 {name}_last")
    A(".p2align 3")
    A.label(f"{name}_loop")
    step(0, None, True, "a", vfr(A_KC, 0)[:LEAD], sel)
    A("s_waitcnt vmcnt(8)\ns_barrier")
    step(1, None, True, "b", vfr(A_KC, 1)[:LEAD], dma() + [[f"s_add_u32 s{S_T}, s{S_T}, 1"], [f"s_cmp_lt_u32 s{S_T}, s{S_TD}"]], rot)
    A(f"s_cbranch_scc1 {name}_loop")
    A.label(f"{name}_last")
    prof(A, "at2")
    step(0, 0, True, "c", vfr(A_KC, 0)[:LEAD], sel)
    A("s_waitcnt vmcnt(8)\ns_barrier")
    step(1, 1, False, "d", vfr(A_KC, 1)[:LEAD], dma())
    g = pv_mm(PB[1], 0)
    vf = vfr(A_KC, 1)
    for i in range(8):
        if i + LEAD < 8: g[2*i].append(rd(i + LEAD, vf[i + LEAD]))
        if i < 7: g[2*i + 1].append(f"s_waitcnt lgkmcnt({min(LEAD - 1, 6 - i)})")
    for x in sum(g, []): A(x)
    A(f"""s_lshl_b32 s{S_T2}, s{S_TD}, 19
    s_lshl_b32 s{S_T3}, s{S_H}, 12
    s_add_u32 s{S_T2}, s{S_T2}, s{S_T3}
    s_add_u32 s{S_T2}, s{S_T2}, {CTXA}
    s_add_u32 s{S_T3}, s{S_T2}, {2 << 17}""")
    A.label(f"{name}_idle")
    A(f"s_add_u32 s{S_T}, s{S_T}, 1\ns_cmp_ge_u32 s{S_T}, s{S_NT}\ns_cbranch_scc1 {name}_fin")
    A(f"s_waitcnt vmcnt(0)\ns_barrier\ns_branch {name}_idle")
    for tag, par in cold: update(tag, par)
    A.label(f"{name}_rescale")
    A("s_nop 7\ns_nop 3")
    for T in range(4):
        for a in range(2):
            for i in range(0, 16, 8):
                r = OAa(T, a) + i - 256
                for k in range(8): A(f"v_accvgpr_read_b32 v{160+k}, a{r+k}")
                for k in range(8): A(f"v_mul_f32 v{160+k}, v{160+k}, v{AL+a}")
                for k in range(8): A(f"v_accvgpr_write_b32 a{r+k}, v{160+k}")
    A(f"s_mov_b32 s{S_FL}, 0\ns_nop 1\ns_setpc_b64 s[{S_RET}:{S_RET+1}]")
    A.label(f"{name}_fin")
    prof(A, "at3")
    for r in range(128): A(f"v_accvgpr_read_b32 v{O0+r}, a{OA-256+r}")
    ctx_store(A, 0, S_T2, L_)
    ctx_store(A, 1, S_T3, L_ + 1)

def emit_B(A, name, L_fail, fl="sc1", NW=56, early=True):
    lane_regs(A)
    L16, KM_A, VM_A, FA, KM_B, LV, FKV = 1, 2, 3, 4, 7, 16, 17
    SET = [256, 256 + 96]
    KM, VM = 96, 8
    S_IT, S_QO, S_RBK, S_MK, S_HC = S_M0, S_TD, S_NT, 64, S_J
    A(f"""v_and_b32 v{L16}, 63, v{TID}
    v_min_u32 v{FKV}, 47, v{L16}
    v_lshlrev_b32 v{L16}, 4, v{L16}
    v_bfe_u32 v{TM}, v{TID}, 5, 1
    v_and_b32 v{TM+1}, 7, v{TID}
    v_xor_b32 v{TM+1}, v{TM+1}, v{TM}
    v_lshlrev_b32 v{TM+1}, 4, v{TM+1}
    v_lshl_add_u32 v{KM_A}, v{TM}, 7, v{TM+1}
    v_xor_b32 v{KM_B}, 64, v{KM_A}
    v_and_b32 v{TM+1}, 31, v{TID}
    v_lshlrev_b32 v{TM+1}, 2, v{TM+1}
    v_lshl_add_u32 v{VM_A}, v{TM}, 8, v{TM+1}
    v_mov_b32 v{FA}, 0
    v_lshlrev_b32 v{FKV}, 7, v{FKV}
    v_mul_u32_u24 v{TM}, {F_BQ - F_BKV - 32*128}, v{TM}
    v_add_u32 v{FKV}, v{FKV}, v{TM}
    v_add_u32 v{FKV}, {F_BKV}, v{FKV}
    v_bfe_u32 v{TM}, v{TID}, 1, 4
    v_and_b32 v{TM+1}, 1, v{TID}
    v_lshl_add_u32 v{TM}, v{TM+1}, 4, v{TM}
    v_and_or_b32 v{TM}, v{TID}, 32, v{TM}
    v_lshlrev_b32 v{LV}, 4, v{TM}
    v_mov_b32 v{TM+5}, s{S_NEG}
    s_mov_b32 s{S_KVH}, 0
    s_mov_b32 s{S_RBK}, -1""")
    if not PROF["st"]:
        for r in range(16): A(f"v_cmp_le_i32 s[{S_MK+2*r}:{S_MK+2*r+1}], {8*(r >> 2) + (r & 3)}, v{A_MK}")
    def next_addr(it):
        L, L1, L2 = A.uniq("L_nb"), A.uniq("L_nb"), A.uniq("L_nb")
        A(f"""{L1}:
        s_ff1_i32_b64 s{it}, s[{S_SM}:{S_SM+1}]
        s_cmp_lt_u32 s{S_HC}, 32
        s_cbranch_scc1 {L2}
        s_bitset0_b64 s[{S_SM}:{S_SM+1}], s{it}
        s_sub_u32 s{S_HC}, s{S_HC}, 32
        s_branch {L1}
        {L2}:
        s_lshl_b32 s{it}, s{it}, 5
        s_add_u32 s{it}, s{it}, s{S_HC}
        s_add_u32 s{S_HC}, s{S_HC}, {NW}
        s_and_b32 s{S_T0}, s{it}, 31
        s_lshr_b32 s{S_T1}, s{it}, 5
        s_lshl_b32 s{S_SO}, s{S_T0}, 6
        s_add_u32 s{S_SO}, s{S_SO}, s{S_T1}
        s_lshl_b32 s{S_SO}, s{S_SO}, 14
        s_add_u32 s{S_SO}, s{S_SO}, {KVB}
        s_lshr_b32 s{S_QO}, s{S_T0}, 1
        s_lshl_b32 s{S_QO}, s{S_QO}, 6
        s_add_u32 s{S_QO}, s{S_QO}, s{S_T1}
        s_lshl_b32 s{S_QO}, s{S_QO}, 1
        s_and_b32 s{S_T0}, s{S_T0}, 1
        s_add_u32 s{S_QO}, s{S_QO}, s{S_T0}
        s_lshl_b32 s{S_QO}, s{S_QO}, 13
        s_add_u32 s{S_QO}, s{S_QO}, {QB_}
        s_cmp_ge_u32 s{it}, 2048
        s_cselect_b32 s{S_QO}, {OOB}, s{S_QO}
        s_cselect_b32 s{S_SO}, {OOB}, s{S_SO}
        s_cbranch_scc1 {L}
        s_lshr_b32 s{S_T1}, s{it}, 8
        s_lshl_b32 s{S_T1}, s{S_T1}, 2
        s_cmp_eq_u32 s{S_T1}, s{S_RBK}
        s_cbranch_scc1 {L}
        s_mov_b32 s{S_RBK}, s{S_T1}""")
        poll(A, FKV, TM, s(S_RBK), f"v_cmp_ne_u32 vcc, 1, v{TM}", L_fail, sleep=8)
        A.label(L)
    def prefetch(p):
        l = []
        for k, (so, off, ad) in enumerate(((S_QO, 0, L16), (S_SO, 0, L16), (S_SO, 8192, LV))):
            for q in range(2):
                for i in range(4):
                    l.append((f"s_add_u32 s{S_T1}, s{so}, {off + q*4096}\n" if i == 0 else "") +
                             f"buffer_load_dwordx4 {R(SET[p] + 32*k + 16*q + 4*i, 4)}, v{ad}, {buf(S_WS, s(S_T1))} offset:{1024*i} sc1")
        return l
    next_addr(S_IT)
    A(f"s_cmp_ge_u32 s{S_IT}, 2048\ns_cbranch_scc1 {name}_x")
    for x in prefetch(0): A(x)
    A("s_waitcnt vmcnt(0)")
    A.label(name)
    for p in range(2):
        Q, KX, VX = SET[p], SET[p] + 32, SET[p] + 64
        S, SM, P, t, u = SB[0], SB[1], SB[1] + 16, M_, TM
        for ks in range(8): A(mf32(S, KX + 4*ks, Q + 4*ks, "0" if ks == 0 else R(S, 16)))
        A(f"s_and_b32 s{S_H}, s{S_IT}, 31\ns_lshr_b32 s{S_T}, s{S_IT}, 5")
        next_addr(S_FL)
        pf = prefetch(1 - p)
        if early:
            for x in pf: A(x)
            pf = ["s_nop 0"] * 24
        e = 0 if early else 1
        if PROF["st"]:
            for x in diag_mask(S): A(x)
        else:
            for r in range(16): A(f"v_cndmask_b32 v{S+r}, v{TM+5}, v{S+r}, s[{S_MK+2*r}:{S_MK+2*r+1}]")
        A(f"v_max3_f32 v{t}, v{S}, v{S+1}, v{S+2}")
        for i in range(3, 15, 2): A(f"v_max3_f32 v{t}, v{t}, v{S+i}, v{S+i+1}")
        A(f"v_max_f32 v{t}, v{t}, v{S+15}")
        A(f"""s_lshl_b32 s{S_T1}, s{S_H}, 7
        s_add_u32 s{S_T1}, s{S_T1}, {F_TEAM}
        s_lshl_b32 s{S_T0}, s{S_IT}, 12
        s_add_u32 s{S_T0}, s{S_T0}, {KVM}""")
        prof(A, "bt0")
        Lk = A.uniq("L_kn")
        A(f"s_cmp_lt_u32 s{S_T}, s{S_KVH}\ns_cbranch_scc1 {Lk}")
        poll(A, FA, TM, s(S_T1), f"v_cmp_ge_u32 vcc, s{S_T}, v{TM}", L_fail)
        A(f"v_readfirstlane_b32 s{S_KVH}, v{TM}\ns_min_u32 s{S_KVH}, s{S_KVH}, 63\ns_sub_u32 s{S_KVH}, s{S_KVH}, 1")
        A.label(Lk)
        prof(A, "bt1")
        for ks in range(8):
            A(f"buffer_load_dwordx4 {v(KM + 4*ks, 4)}, v{KM_A if ks % 2 == 0 else KM_B}, {buf(S_WS, s(S_T0))} offset:{(ks >> 1)*512 + (ks & 1)*256} sc1")
        for T in range(4):
            for j in range(2):
                A(f"buffer_load_dword v{VM + 2*T + j}, v{VM_A}, {buf(S_WS, s(S_T0))} offset:{2048 + T*512 + j*128} sc1")
        for x in pf[:6*e]: A(x)
        for ks in range(8):
            A(f"s_waitcnt vmcnt({15 - ks + e*(6 + ks//2)})")
            A(mf32(SM, KM + 4*ks, Q + 4*ks, "0" if ks == 0 else R(SM, 16)))
            if ks & 1 and e: A(pf[6 + ks//2])
        prof(A, "bt2")
        A(f"""v_max3_f32 v{t}, v{t}, v{SM}, v{SM+1}
        v_max3_f32 v{t}, v{t}, v{SM+2}, v{SM+3}
        v_mov_b32 v{u}, v{t}
        v_permlane32_swap_b32 v{u}, v{t}
        v_max_f32 v{t}, v{t}, v{u}
        v_mul_f32 v{t}, s{S_C}, v{t}""")
        regs = [SM + i for i in range(4)] + [S + i for i in range(16)]
        for r in regs: A(f"v_fma_f32 v{r}, v{r}, s{S_C}, -v{t}")
        for i, r in enumerate(regs):
            A(f"v_exp_f32 v{r}, v{r}")
            if i % 5 == 0 and e: A(pf[10 + i//5])
        for i in range(2): A(f"v_cvt_pk_bf16_f32 v{P + 8 + i}, v{SM+2*i}, v{SM+2*i+1}")
        for i in range(8): A(f"v_cvt_pk_bf16_f32 v{P + i}, v{S+2*i}, v{S+2*i+1}")
        A(f"s_waitcnt vmcnt({14*e})")
        g = []
        for T in range(4):
            o = Oa(T, 0)
            g.append([f"v_mfma_f32_32x32x8_bf16 {v(o,16)}, {v(VM + 2*T, 2)}, {v(P + 8, 2)}, 0"])
            for k in range(2): g.append([mf32(o, VX + 8*T + 4*k, P + 4*k, R(o, 16))])
        for i, x in enumerate(pf[14:24*e]): g[i].append(x)
        adds = [f"v_add_f32 v{L_}, v{regs[0]}, v{regs[1]}"] + [f"v_add_f32 v{L_}, v{L_}, v{r}" for r in regs[2:]]
        for x in merge(g, adds, tail=4): A(x)
        A(f"""s_lshl_b32 s{S_T2}, s{S_T}, 18
        s_lshl_b32 s{S_T3}, s{S_H}, 12
        s_add_u32 s{S_T2}, s{S_T2}, s{S_T3}
        s_add_u32 s{S_T2}, s{S_T2}, {CTXB}""")
        ctx_store(A, 0, S_T2, L_, fl)
        prof(A, "bt3")
        A(f"""s_lshl_b32 s{S_T2}, s{S_IT}, 2
        s_add_u32 s{S_T2}, s{S_T2}, {F_CTXB}
        v_mov_b32 v{TM}, 1
        s_waitcnt vmcnt(0)
        s_mov_b64 exec, 1
        buffer_store_dword v{TM}, v{FA}, {buf(S_WS, s(S_T2))} {fl}
        s_mov_b64 exec, -1
        s_mov_b32 s{S_IT}, s{S_FL}
        s_cmp_lt_u32 s{S_IT}, 2048""")
        A(f"s_cbranch_scc0 {name}_x" if p == 0 else f"s_cbranch_scc1 {name}")
    A.label(f"{name}_x")
```

```python
from asmlib import *
from layout import *

S_WS = 8
S_X  = 12
S_W  = 20
S_DBG = 56
S_RANK, S_WV = 16, 17
S_XCC = 3
S_P = 4
S_T0, S_T1, S_T2, S_T3 = 24, 25, 26, 27
S_SPIN = 28
SPIN_MAX = 200000
TID = 0

def srd_arg(A, d, slot, nbytes):
    A(f"s_load_dwordx2 s[{S_P}:{S_P+1}], s[0:1], {slot*8}\ns_waitcnt lgkmcnt(0)")
    A.srd(d, S_P, nbytes)

def buf(srd, off): return f"s[{srd}:{srd+3}], {off} offen"

def poll(A, vaddr, vtmp, soff, cmp, L_fail, srd=S_WS, sleep=1, spin=None, back=None):
    S_SPIN = spin or 28
    L = A.uniq("L_poll"); Ld = A.uniq("L_pd")
    A(f"s_mov_b32 s{S_SPIN}, 0")
    A.label(L)
    A(f"""buffer_load_dword v{vtmp}, v{vaddr}, {buf(srd, soff)} sc1
    s_add_u32 s{S_SPIN}, s{S_SPIN}, 1
    s_cmp_gt_u32 s{S_SPIN}, {SPIN_MAX}
    s_cbranch_scc1 {L_fail}
    s_waitcnt vmcnt(0)
    {cmp}
    s_cbranch_vccz {Ld}""")
    if sleep: A(f"s_sleep {sleep}")
    if back: A(f"s_cmp_lt_u32 s{S_SPIN}, {back[0]}\ns_cbranch_scc1 {L}\ns_sleep {back[1]}")
    A(f"s_branch {L}")
    A.label(Ld)

def cost(x):
    op = x.split()[0]
    if not op.startswith("v_"): return 2
    if op.startswith(("v_exp", "v_rcp", "v_permlane", "v_log")): return 8
    return 4

def merge(groups, valu, skip=0, tail=0):
    n = len(groups) - skip - tail
    total = sum(cost(x) for x in valu)
    out = []; k = 0; acc = 0
    for i, g in enumerate(groups):
        out += g
        if skip <= i < len(groups) - tail:
            target = total * (i - skip + 1) / n
            while k < len(valu) and acc + cost(valu[k]) / 2 <= target:
                out.append(valu[k]); acc += cost(valu[k]); k += 1
    return out + valu[k:]

PROF = {"on": None, "st": False}
def prof(A, name):
    on = PROF["on"]
    if on and name in on:
        i = on.index(name)
        A(f"s_memtime s[{74+4*i}:{75+4*i}]\ns_memrealtime s[{76+4*i}:{77+4*i}]")
```

```python
from common import *

XB, NXB = 32768, 3
WB, NWB = 16384, 4
LX = NWB * WB
G_XD, G_WD, G_XR, G_WR, G_SA, G_PF, G_JK = 1, 2, 3, 5, 13, 14, 15
G_T = 16
G_D = 20
A7 = 28
PK = 32
AV = 160
AA = 256
FA = 256 + 160
FB = 256 + 192
S_XO, S_WO, S_M0X, S_M0W, S_X32 = 30, 31, 32, 33, 34
S_NX, S_NB, S_PO, S_PF, S_S0, S_S1, S_SO, S_SB = 35, 36, 38, 39, 48, 37, 29, 60
S_CO, S_CF, S_NNB, S_NSW, S_NO, S_NF = 62, 63, 40, 41, 42, 43
S_NT, S_COL, S_XST, S_PV, S_CV, S_NV, S_PJ = 45, 46, 47, 49, 50, 51, 44
S_PS, S_PFO, S_SC, S_PA, S_PB, S_NXO = 96, 100, 94, 92, 93, 101
OPT = {}
acc = lambda i: (AV + 4*i) if i < 24 else (AA + 4*(i - 24))

def x_params(stride_reg):
    t = G_T
    return [f"v_lshrrev_b32 v{t}, 3, v{TID}", f"v_mul_lo_u32 v{t}, v{t}, s{stride_reg}", f"v_and_b32 v{G_XD}, 0x70, v{G_XD}",
            f"v_add_u32 v{G_XD}, v{G_XD}, v{t}", f"s_lshl_b32 s{S_X32}, s{stride_reg}, 5"]

def setup(A):
    t = G_T
    A(f"""v_bfe_u32 v{t}, v{TID}, 4, 3
    v_bfe_u32 v{t+1}, v{TID}, 7, 1
    v_lshlrev_b32 v{t+1}, 2, v{t+1}
    v_xor_b32 v{t}, v{t}, v{t+1}
    v_and_b32 v{t+1}, 7, v{TID}
    v_xor_b32 v{t}, v{t}, v{t+1}
    v_lshlrev_b32 v{G_XD}, 4, v{t}""")
    A(f"""v_bfe_u32 v{t+1}, v{TID}, 4, 2
    v_lshlrev_b32 v{t}, 2, v{t+1}
    v_and_b32 v{t+2}, 15, v{TID}
    v_xor_b32 v{t}, v{t}, v{t+2}
    v_bfe_u32 v{t+2}, v{TID}, 6, 1
    v_xor_b32 v{t}, v{t}, v{t+2}
    v_lshlrev_b32 v{t}, 4, v{t}
    v_lshl_add_u32 v{t}, v{t+1}, 13, v{t}
    v_lshl_add_u32 v{G_WD}, v{t+2}, 16, v{t}
    s_and_b32 s{S_T0}, s{S_WV}, 1
    s_lshr_b32 s{S_T1}, s{S_WV}, 1
    s_lshl_b32 s{S_T1}, s{S_T1}, 13
    s_lshl_b32 s{S_M0W}, s{S_T0}, 11
    s_add_u32 s{S_M0W}, s{S_M0W}, s{S_T1}
    s_lshl_b32 s{S_M0X}, s{S_WV}, 10
    s_add_u32 s{S_M0X}, s{S_M0X}, {LX}""")
    A(f"""v_bfe_u32 v{t}, v{TID}, 3, 1
    v_lshlrev_b32 v{t}, 11, v{t}
    v_and_b32 v{t+2}, 7, v{TID}
    v_lshl_add_u32 v{t}, v{t+2}, 7, v{t}
    v_bfe_u32 v{t+2}, v{TID}, 1, 3
    v_xor_b32 v{t+2}, v{t+2}, v{t+1}
    v_lshl_add_u32 v{t}, v{t+2}, 4, v{t}
    s_lshl_b32 s{S_T0}, s{S_T0}, 14
    s_add_u32 s{S_T0}, s{S_T0}, {LX}
    v_add_u32 v{G_XR}, s{S_T0}, v{t}
    v_xor_b32 v{G_XR+1}, 64, v{G_XR}""")
    A(f"""v_bfe_u32 v{t+2}, v{TID}, 2, 2
    v_mul_u32_u24 v{t}, {256+64}, v{t+2}
    v_lshl_add_u32 v{t}, v{t+1}, 11, v{t}
    v_bfe_u32 v{t+2}, v{TID}, 1, 1
    v_lshl_add_u32 v{t}, v{t+2}, 5, v{t}
    v_bfe_u32 v{t+2}, v{TID}, 4, 1
    v_lshl_add_u32 v{t}, v{t+2}, 4, v{t}
    v_and_b32 v{t+2}, 1, v{TID}
    v_lshl_add_u32 v{t}, v{t+2}, 3, v{t}
    v_add_u32 v{G_WR}, s{S_T1}, v{t}""")
    for x in wxor(): A(x)

def wxor(): return [f"v_xor_b32 v{G_WR+q}, {64*(q >> 1) + 16*(q & 1)}, v{G_WR}" for q in range(1, 8)]

def xdma(half):
    l = []
    for j in range(4):
        so = f"s_add_u32 s{S_S0}, s{S_S0}, s{S_X32}" if (j or half) else f"s_mov_b32 s{S_S0}, s{S_XO}"
        l.append([[so], [f"s_add_u32 m0, s{S_M0X}, {half*16384 + j*4096}"], [f"buffer_load_dwordx4 v{G_XD}, {buf(S_X, s(S_S0))} lds"]])
    post = []
    if half: post = [[f"s_add_u32 s{S_XO}, s{S_XO}, 128"], [f"s_add_u32 s{S_M0X}, s{S_M0X}, {XB}"], [f"s_sub_u32 s{S_S0}, s{S_M0X}, {NXB*XB}"],
                     [f"s_cmp_ge_u32 s{S_M0X}, {LX + NXB*XB}", f"s_cselect_b32 s{S_M0X}, s{S_S0}, s{S_M0X}"]]
    return l, post

def wdma():
    l = []
    for i in (0, 1, 4, 5):
        l.append([[f"s_add_u32 s{S_S1}, s{S_WO}, {i*4*8192}"], [f"s_add_u32 m0, s{S_M0W}, {i*1024}"], [f"buffer_load_dwordx4 v{G_WD}, {buf(S_W, s(S_S1))} {OPT.get('wfl', '')} lds"]])
    return l, [[f"s_add_u32 s{S_WO}, s{S_WO}, {32*8192}"], [f"s_add_u32 s{S_M0W}, s{S_M0W}, {WB}"], [f"s_and_b32 s{S_M0W}, s{S_M0W}, {NWB*WB-1}"]]

def store_setup(s_v):
    t = G_T
    return [[f"v_bfe_u32 v{t}, v{TID}, 3, 3"], [f"v_lshlrev_b32 v{t}, 4, v{t}"], [f"v_and_or_b32 v{t}, v{TID}, 7, v{t}"],
            [f"v_bfe_u32 v{t+1}, v{TID}, 4, 2"], [f"v_lshlrev_b32 v{t+1}, 5, v{t+1}"], [f"v_and_or_b32 v{t+1}, v{TID}, 8, v{t+1}"],
            [f"v_bfe_u32 v{t+2}, v{TID}, 1, 2"], [f"v_or_b32 v{t+1}, v{t+1}, v{t+2}"], [f"v_and_b32 v{t+2}, 1, v{TID}"],
            [f"v_lshl_or_b32 v{t+1}, v{t+2}, 4, v{t+1}"],
            [f"s_bitcmp1_b32 s{s_v}, 1", f"s_cselect_b64 vcc, -1, 0", f"s_cselect_b32 s{S_PJ}, 64, 0x80"],
            [f"v_cndmask_b32 v{t}, v{t}, v{t+1}, vcc"], [f"v_lshlrev_b32 v{G_SA}, 4, v{t}"],
            [f"s_movk_i32 s{S_PA}, 0x800"], [f"s_bitcmp1_b32 s{s_v}, 0", f"s_cselect_b32 s{S_PA}, 0x4000, s{S_PA}"], [f"s_xor_b32 s{S_PB}, s{S_PA}, 0x4800"], [f"s_sub_u32 s{S_PB}, s{S_PB}, s{S_PJ}"]]

def pkreg(i):
    ta, tb = i >> 3, i & 7
    return PK + 4*(8*(ta >> 1) + tb) + 2*(ta & 1)

def drain(i, scale=False):
    a, p, l = acc(i), pkreg(i), []
    t = G_D + 4*(i % 2)
    if a >= 256:
        l += [f"v_accvgpr_read_b32 v{t+k}, a{a-256+k}" for k in range(4)]; a = t
    if scale:
        l += [f"v_pk_mul_f32 {v(t+k,2)}, {v(a+k,2)}, s[{S_SC}:{S_SC+1}] op_sel_hi:[1,0]" for k in (0, 2)]; a = t
    return l + [f"v_cvt_pk_bf16_f32 v{p+k}, v{a+2*k}, v{a+2*k+1}" for k in range(2)]

def pstore(n, s_base):
    if n == 0: pre = [[f"s_mov_b32 s{S_SB}, s{s_base}"], [f"s_mov_b32 s{S_SO}, s{s_base}"]]
    elif n % 8 == 0: pre = [[f"s_add_u32 s{S_SB}, s{S_SB}, s{S_PA}"], [f"s_mov_b32 s{S_SO}, s{S_SB}"]]
    else: pre = [[f"s_add_u32 s{S_SO}, s{S_SO}, s{S_PJ if n & 1 else S_PB}"]]
    return pre, f"buffer_store_dwordx4 {v(PK + 4*n, 4)}, v{G_SA}, {buf(S_WS, s(S_SO))} {OPT['st']}"

def flag_store(s_f):
    return [[f"v_mov_b32 v{G_T}, 0"], [f"v_mov_b32 v{G_T+1}, 1"], [f"s_cmp_eq_u32 s{S_WV}, 0", f"s_cselect_b32 s{S_SO}, s{s_f}, {OOB}"],
            ["s_mov_b64 exec, 1", f"buffer_store_dword v{G_T+1}, v{G_T}, {buf(S_WS, s(S_SO))} sc1", "s_mov_b64 exec, -1"]]

class Gaps:
    def __init__(self, mm, cap=2):
        self.mm = mm; self.g = [[] for _ in mm]; self.cap = cap
    def at(self, i, atom): self.g[i].append(atom)
    def load(self, i): return sum(len(a) for a in self.g[i])
    def seq(self, lo, hi, atoms, step=0, cap=None):
        i = lo; cap = cap or self.cap
        for a in atoms:
            while i < hi - 1 and self.load(i) and self.load(i) + len(a) > cap: i += 1
            self.g[i].append(a); i = min(i + step, hi - 1)
        return i
    def out(self):
        l = []
        for m, g in zip(self.mm, self.g):
            l.append(m)
            for a in g: l += a
        return l

def run(A, name, par_a, par_x, par_w, pre_flag, s_urgent):
    fa = lambda ta, par: R(A7 if (ta == 7 and par) else FA + 4*ta, 4)
    fb = lambda tb, par: R(FB + 32*par + 4*tb, 4)
    def xrd(dst, t, kk): return [[f"ds_read_b128 {dst}, v{G_XR + (kk ^ (t & 1))} offset:{(t >> 1)*4096 + (t & 1)*1024}"]]
    def wrd(dst, t):
        r = int(dst[2:dst.index(":")]) + (256 if dst[0] == "a" else 0)
        return [[f"ds_read_b64_tr_b16 {R(r + 2*jj, 2)}, v{G_WR+t} offset:{jj*1024}"] for jj in range(2)]
    def reads(swap, par, kk):
        ra = [(xrd(fa(t, par), t, kk) if swap else wrd(fa(t, par), t)) for t in range(8)]
        rb = [(wrd(fb(t, par), t) if swap else xrd(fb(t, par), t, kk)) for t in range(8)]
        return ra, rb
    def flat(l):
        for x in l:
            if isinstance(x, (list, tuple)): flat(x)
            else: A(x)
    def filt(l):
        for k in OPT.get('no', []): l = [x for x in l if k not in x]
        return l
    rotw = [[f"v_add_u32 v{G_WR}, {WB}, v{G_WR}"], [f"v_and_b32 v{G_WR}, {NWB*WB-1}, v{G_WR}"]] + [[x] for x in wxor()]
    rotx = [[f"v_add_u32 v{G_XR}, {XB}, v{G_XR}"], [f"v_subrev_u32 v{G_T+3}, {NXB*XB}, v{G_XR}"], [f"v_cmp_le_u32 vcc, {LX + NXB*XB}, v{G_XR}"],
            [f"v_cndmask_b32 v{G_XR}, v{G_XR}, v{G_T+3}, vcc"], [f"v_xor_b32 v{G_XR+1}, 64, v{G_XR}"]]
    setup(A)
    A(f"s_mov_b32 s{S_NX}, 0")
    flat(par_a); flat(par_x); flat(par_w)
    prof(A, name + "0")
    flat(xdma(0)); flat(xdma(1)); flat(wdma())
    flat(wdma()); flat(xdma(0))
    flat(wdma()); flat(xdma(1))
    flat(wdma()); flat(xdma(0))
    A(f"s_mov_b32 s{S_CO}, {OOB}\ns_mov_b32 s{S_CF}, {OOB}\ns_mov_b32 s{S_CV}, 0")
    A(f"s_waitcnt vmcnt(24)\ns_barrier")
    prof(A, name + "1")
    A(f"s_cmp_eq_u32 s{S_NSW}, 0\ns_cbranch_scc0 {name}_p1")
    flat(reads(False, 0, 0))
    A(f"s_branch {name}_p2\n{name}_p1:")
    flat(reads(True, 0, 0))
    A.label(f"{name}_p2")
    flat(rotw)
    dr = [drain(i) for i in range(64)]
    A.label(f"{name}_tile")
    for i in range(1, 6):
        if PROF["on"] and f"tile{i}" in PROF["on"]:
            A(f"s_cmp_eq_u32 s{S_NX}, {i}\ns_cbranch_scc0 {name}_pt{i}"); prof(A, f"tile{i}"); A.label(f"{name}_pt{i}")
    shift = [[f"s_mov_b32 s{S_PO}, " + (f"{OOB}" if OPT['drop'] else f"s{S_CO}")], [f"s_mov_b32 s{S_PF}, s{S_CF}"], [f"s_mov_b32 s{S_PV}, s{S_CV}"],
             [f"s_mov_b32 s{S_CO}, s{S_NO}"], [f"s_mov_b32 s{S_CF}, s{S_NF}"], [f"s_mov_b32 s{S_CV}, s{S_NV}"], [f"s_mov_b32 s{S_NB}, s{S_NNB}"],
             [f"s_add_u32 s{S_NX}, s{S_NX}, 1"]]
    A(f"""s_cmp_eq_u32 s{S_NX}, 1
    s_cbranch_scc1 {name}_first
    {name}_go:
    s_cmp_eq_u32 s{S_NSW}, 0
    s_cbranch_scc0 {name}_v""")
    ND = OPT.get('nd', 40)
    HL = OPT.get('hl', 14)
    hs = [h for h in range(1, HL + 1) if h not in (10, 11)]
    HF = HL + 3 if HL >= 12 else (14 if HL == 9 else 13 if HL == 8 else None)
    plan = {h: [] for h in hs}
    for n in range(32): plan[hs[n * len(hs) // 32]].append(n)
    for vn, swap in (("k", False), ("v", True)):
        def kstep(h, nswap, hist):
            par, hh = h & 1, h & 1
            A(f"s_waitcnt vmcnt({hist[-1] + hist[-2]}) lgkmcnt(0)" + ("" if OPT.get('nobar') else "\ns_barrier"))
            mm = [f"v_mfma_f32_16x16x32_bf16 {R(acc(i),4)}, {fa(i >> 3, par)}, {fb(i & 7, par)}, {'0' if h == 0 else R(acc(i),4)}" for i in range(64)]
            G = Gaps(mm)
            ra, rb = reads(nswap, 1 - par, 1 - hh)
            for t in range(7): G.seq(8*t + 7, 64, ra[t], step=1)
            xl, xp = xdma(1 - hh); wl, wp = wdma()
            off = 0 if not swap else 2
            for q, d in enumerate(wl + xl): G.seq(8*q + 1 + off, 64, d, step=1)
            G.seq(32, 56, wp); G.seq(60 + off, 64, xp, cap=3)
            n = 8
            st = plan.get(h, [])
            for q, k in enumerate(st):
                pre, x = pstore(k, S_PO)
                p = (64 // max(len(x) for x in plan.values()) // 8 * 8 if HL < 12 else 24)*q + (5 if not swap else 9)
                G.seq(p - 2, p, pre); G.at(p, [x]); n += 1
            if OPT['pf'] and h in [x for x in range(OPT['pf0'], 18) if x not in (10, 11)][:OPT['npf']]:
                G.at(46, [f"buffer_load_dword v{G_JK}, v{G_PF}, {buf(S_PS, s(S_PFO))}", f"s_add_u32 s{S_PFO}, s{S_PFO}, 8192"]); n += 1
            G.seq(0, 52, sum(rb, []) + ra[7], step=2)
            if h == HF: G.seq(32, 44, flag_store(S_PF)); n += 1
            if h == 12: G.seq(0, 56, par_a, cap=3)
            if h == 13: G.seq(0, 30, par_x); G.seq(44, 60, par_w, cap=3)
            G.seq(57, 64, (rotx[:3] + rotw + rotx[3:]) if hh == 0 else rotw, cap=3)
            if h == 17:
                i = 0
                for t in range(ND): i = G.seq(max(i, t + 4), 64, [[x] for x in dr[t]], cap=OPT.get('dcap', 4))
            if h == 0:
                i = 0
                for t in range(ND, 64): i = G.seq(min(i, t - 1), t, [[x] for x in dr[t]], cap=OPT.get('dcap', 4))
                G.seq(30, 57, shift + store_setup(S_PV), cap=5)
            for x in filt(G.out()): A(x)
            hist.append(n)
        A(".p2align 3")
        A.label(f"{name}_{vn}")
        hist = [8, 8]; saved = None
        for h in range(17):
            if h == 10:
                A(f"s_cmp_eq_u32 s{S_NB}, 0\ns_cbranch_scc1 {name}_{vn}12"); saved = hist[-2:]
            if h == 12:
                A.label(f"{name}_{vn}12"); hist[-2:] = [min(x, y) for x, y in zip(hist[-2:], saved)]
            kstep(h, swap, hist)
        A(f"s_cmp_eq_u32 s{S_NSW}, 0\ns_cbranch_scc0 {name}_{vn}17v")
        for nswap in (False, True):
            if nswap: A.label(f"{name}_{vn}17v")
            kstep(17, nswap, list(hist))
            A(f"s_cmp_lt_u32 s{S_NX}, s{S_NT}\ns_cbranch_scc1 {name}_tile\ns_branch {name}_end")
    def flush(scale, s_o, s_f):
        flat(store_setup(S_CV))
        for Pa in range(4):
            for tb in range(8):
                flat(drain(16*Pa + tb, scale)); flat(drain(16*Pa + 8 + tb, scale)); flat(pstore(8*Pa + tb, s_o))
        pre_flag(A)
        A("s_waitcnt vmcnt(0) lgkmcnt(0)\ns_barrier")
        flat(flag_store(s_f))
    A.label(f"{name}_first")
    A(f"s_mov_b32 s{S_PFO}, {OOB}\ns_cmp_eq_u32 s{s_urgent}, 0\ns_cbranch_scc0 {name}_end")
    pre_flag(A)
    A(f"s_branch {name}_go")
    A.label(f"{name}_end")
    prof(A, name + "2")
    flush(True, S_CO, S_CF)
    A(f"s_mov_b32 s{S_CO}, {OOB}\ns_mov_b32 s{S_CF}, {OOB}\ns_cmp_lt_u32 s{S_NX}, s{S_NT}\ns_cbranch_scc1 {name}_go")
    prof(A, name + "3")
```

```python
WS_BYTES = 0x10000000
KVA   = 0x0000000
KVB   = 0x2000000
CTXA  = 0x4000000
CTXB  = 0x5000000
KVM   = 0x6000000
PART  = 0x6800000
PART_SZ = 72 * 4096
MEMI  = PART + 2*PART_SZ
MEM0  = 0x6980000
BELL  = 0x69C0000
FLAGS = 0x6A00000
STAMP = 0x6B00000
OOB   = 0x20000000
A_X, A_CKV, A_WQ, A_WUK, A_WUV, A_WO, B_X, B_MEM0, B_WQ, B_WK, B_WV, B_WO, B_SEG, OUT, DBG, WS = range(16)
import math
SCALE_LOG2E = (128 ** -0.5) * math.log2(math.e)
import struct
def f32bits(x): return struct.unpack("<I", struct.pack("<f", x))[0]
F_BKV  = FLAGS
F_TEAM = FLAGS + 0x1000
F_CTXB = FLAGS + 0x2000
F_AKV  = FLAGS + 0x4000
F_CTXA = FLAGS + 0x5000
F_FC   = FLAGS + 0x5800
F_AQ   = FLAGS + 0x6000
F_BQ   = FLAGS + 0x7000
F_SIZE = 0x8000
QA_ = 0x7000000
QB_ = 0x8000000
D_TEAM, D_INIT = 64, 128
```

```python
from common import *

W0 = 128
NC = 20
CF = 16
AC = 96
WS_ = 112
L16, SRC, WRA, OUTA, FLA, TMP, RDA, TRA = 1, 2, 3, 4, 5, 6, 7, 8
LRED = 131072
S_SL, S_U, S_MK, S_CTX, S_FLG, S_FSH, S_COL, S_CUR, S_NXT, S_RDY, S_UA, S_MORE = 40, 41, 42, 44, 45, 46, 47, 48, 49, 50, 51, 52
S_OFF = 30
OPT = {'rot': True}
inlds = lambda k: k % 4 == 3
rk = lambda k: k - k // 4

def trr(dst, slot):
    return [f"ds_read_b64_tr_b16 {R(dst + 4*tt + 2*j, 2)}, v{TRA+tt} offset:{slot*4096 + j*1024}" for tt in range(4) for j in range(2)]

def load_weights(A):
    t = 12
    A(f"""v_and_b32 v{L16}, 63, v{TID}
    v_lshlrev_b32 v{L16}, 4, v{L16}
    v_bfe_u32 v{t}, v{TID}, 3, 3
    v_mul_u32_u24 v{t}, 1152, v{t}
    v_bfe_u32 v{t+1}, v{TID}, 4, 2
    v_lshlrev_b32 v{t+1}, 1, v{t+1}
    v_and_b32 v{t+2}, 7, v{TID}
    v_xor_b32 v{t+1}, v{t+1}, v{t+2}
    v_lshl_add_u32 v{t}, v{t+1}, 4, v{t}
    s_mul_i32 s{S_T0}, s{S_WV}, {1024*1152}
    s_lshl_b32 s{S_T1}, s{S_SL}, 7
    s_add_u32 s{S_T0}, s{S_T0}, s{S_T1}
    v_add_u32 v{SRC}, s{S_T0}, v{t}
    s_lshl_b32 s{S_T2}, s{S_WV}, 15""")
    A(f"""v_bfe_u32 v{t}, v{TID}, 2, 3
    v_lshlrev_b32 v{t}, 7, v{t}
    v_bfe_u32 v{t+1}, v{TID}, 5, 1
    v_lshl_add_u32 v{t}, v{t+1}, 11, v{t}
    v_bfe_u32 v{t+1}, v{TID}, 3, 2
    v_lshl_add_u32 v{t}, v{t+1}, 5, v{t}
    v_and_b32 v{t+1}, 3, v{TID}
    v_lshl_add_u32 v{t}, v{t+1}, 3, v{t}
    v_add_u32 v{TRA}, s{S_T2}, v{t}""")
    for tt in range(1, 4): A(f"v_xor_b32 v{TRA+tt}, {32*tt}, v{TRA}")
    for q in range(8):
        if OPT['rot']: A(f"s_add_u32 s{S_T0}, s{S_SL}, {q}\ns_and_b32 s{S_T0}, s{S_T0}, 7\ns_lshl_b32 s{S_OFF+q}, s{S_T0}, 12")
        else: A(f"s_mov_b32 s{S_OFF+q}, {q*4096}")
    order = [k for k in range(32) if not inlds(k)] + [k for k in range(32) if inlds(k)]
    def issue(n):
        k = order[n]
        A(f"s_mul_i32 s{S_T1}, s{S_OFF + k//4}, 36")
        for q in range(4):
            A(f"s_add_u32 m0, s{S_T2}, {(n % 8)*4096 + q*1024}\ns_add_u32 s{S_T0}, s{S_T1}, {((k % 4)*32 + q*8)*1152}")
            A(f"buffer_load_dwordx4 v{SRC}, {buf(S_W, s(S_T0))} lds")
    for n in range(8): issue(n)
    for n in range(24):
        A("s_waitcnt vmcnt(28)")
        for x in trr(W0 + 16*n, n % 8): A(x)
        A("s_waitcnt lgkmcnt(0)")
        issue(n + 8)
    A("s_waitcnt vmcnt(0)")

def run(A, name, L_fail):
    t = 12
    A(f"""v_and_b32 v{t}, 15, v{TID}
    v_mul_u32_u24 v{t}, 2304, v{t}
    v_lshrrev_b32 v{t+1}, 4, v{TID}
    v_lshl_add_u32 v{t}, v{t+1}, 3, v{t}
    s_lshl_b32 s{S_T0}, s{S_SL}, 7
    s_add_u32 s{S_T0}, s{S_T0}, s{S_COL}
    v_add_u32 v{OUTA}, s{S_T0}, v{t}
    v_and_b32 v{FLA}, 7, v{TID}
    v_lshlrev_b32 v{FLA}, 2, v{FLA}
    s_lshl_b32 s{S_T0}, s{S_WV}, 5
    v_add_u32 v{FLA}, s{S_T0}, v{FLA}
    v_lshlrev_b32 v{WRA}, 4, v{TID}
    v_add_u32 v{WRA}, {LRED}, v{WRA}
    s_lshl_b32 s{S_T0}, s{S_WV}, 12
    s_add_u32 s{S_T0}, s{S_T0}, {LRED}
    v_add_u32 v{RDA}, s{S_T0}, v{L16}
    s_lshl_b32 s{S_T0}, s{S_WV}, 15
    s_add_u32 s{S_CTX}, s{S_CTX}, s{S_T0}""")
    for x in trr(WS_, 0): A(x)
    fl = lambda u: f"s_lshr_b32 s{S_T1}, s{u}, s{S_FSH}\ns_lshl_b32 s{S_T1}, s{S_T1}, 7\ns_add_u32 s{S_T1}, s{S_T1}, s{S_FLG}"
    pop = lambda d: f"s_ff1_i32_b64 s{d}, s[{S_MK}:{S_MK+1}]\ns_bitset0_b64 s[{S_MK}:{S_MK+1}], s{d}\ns_lshl_b32 s{d}, s{d}, 1\ns_add_u32 s{d}, s{d}, s{S_UA}\ns_and_b32 s{d}, s{d}, 127"
    A(pop(S_U))
    NROT = 5
    def ld(k, base, rot):
        if k % 4 == 0: A(f"s_add_u32 s{S_T0}, s{base}, s{S_OFF + k//4}")
        A(f"buffer_load_dwordx4 {v(CF + 4*((k + rot) % NC), 4)}, v{L16}, {buf(S_WS, s(S_T0))} offset:{(k % 4)*1024} sc1")
    A.label(f"{name}_w")
    if PROF["on"] and "opw" in PROF["on"]: A(f"s_add_u32 s100, s100, 1")
    A(fl(S_U))
    poll(A, FLA, TMP, s(S_T1), f"v_cmp_ne_u32 vcc, 1, v{TMP}", L_fail)
    prof(A, "opp")
    A(f"s_lshl_b32 s{S_CUR}, s{S_U}, 17\ns_add_u32 s{S_CUR}, s{S_CUR}, s{S_CTX}")
    for k in range(NC): ld(k, S_CUR, 0)
    A(f"buffer_load_dword v{TMP}, v{FLA}, {buf(S_WS, s(S_T1))} sc1")
    for r in range(NROT):
        rot = (32*r) % NC
        A.label(f"{name}_r{r}")
        prof(A, f"op{r}")
        A(f"s_cmp_lg_u64 s[{S_MK}:{S_MK+1}], 0\ns_cselect_b32 s{S_MORE}, 1, 0\n{pop(S_T3)}\n{fl(S_T3)}")
        A(f"buffer_load_dword v{TMP}, v{FLA}, {buf(S_WS, s(S_T1))} sc1")
        A(f"s_lshl_b32 s{S_NXT}, s{S_T3}, 17\ns_add_u32 s{S_NXT}, s{S_NXT}, s{S_CTX}")
        for k in range(32):
            A(f"s_waitcnt vmcnt({NC - 1 + (2 if k < NC else 0)})" + (" lgkmcnt(0)" if inlds(k) else ""))
            for tt in range(4):
                a = v(AC + 4*tt, 4)
                wr = v(WS_ + 4*tt, 4) if inlds(k) else R(W0 + 16*rk(k) + 4*tt, 4)
                A(f"v_mfma_f32_16x16x32_bf16 {a}, {wr}, {v(CF + 4*((k + rot) % NC), 4)}, {'0' if k == 0 else a}")
                if k % 4 < 2 and k >= 4 - 4:
                    if not (k < 4): A(trr(WS_, k // 4)[4*(k % 4) + tt])
            if k == 32 - NC:
                A(f"s_waitcnt vmcnt({32 - NC})\nv_cmp_ne_u32 vcc, 1, v{TMP}")
                A(f"s_cmp_eq_u64 vcc, 0\ns_cselect_b32 s{S_RDY}, s{S_MORE}, 0\ns_cmp_eq_u32 s{S_RDY}, 1\ns_cselect_b32 s{S_NXT}, s{S_NXT}, {OOB}")
            if k + NC < 32: ld(k + NC, S_CUR, rot)
            else: ld(k + NC - 32, S_NXT, (rot + 32) % NC)
        prof(A, f"opm{r}"); prof(A, "opm")
        for tt in range(4): A(f"ds_write_b128 v{WRA}, {v(AC + 4*tt, 4)} offset:{tt*4096}")
        A("s_waitcnt lgkmcnt(0)\ns_barrier")
        for i in range(4): A(f"ds_read_b128 {v(AC + 4*i, 4)}, v{RDA} offset:{i*1024}")
        for x in trr(WS_, 0): A(x)
        A(f"s_mul_i32 s{S_T0}, s{S_U}, {16*2304}")
        for i in range(1, 4):
            A(f"s_waitcnt lgkmcnt({8 + 3 - i})")
            A(f"v_pk_add_f32 {v(AC,2)}, {v(AC,2)}, {v(AC+4*i,2)}\nv_pk_add_f32 {v(AC+2,2)}, {v(AC+2,2)}, {v(AC+4*i+2,2)}")
        A(f"""v_cvt_pk_bf16_f32 v12, v{AC}, v{AC+1}
        v_cvt_pk_bf16_f32 v13, v{AC+2}, v{AC+3}
        buffer_store_dwordx2 v[12:13], v{OUTA}, {buf(S_X, s(S_T0))}
        v_xor_b32 v{WRA}, 16384, v{WRA}
        v_xor_b32 v{RDA}, 16384, v{RDA}
        s_mov_b32 s{S_U}, s{S_T3}
        s_mov_b32 s{S_CUR}, s{S_NXT}
        s_cmp_eq_u32 s{S_RDY}, 0
        s_cbranch_scc1 {name}_c""")
    A(f"s_branch {name}_r0")
    A.label(f"{name}_c")
    A(f"s_cmp_lg_u32 s{S_MORE}, 0\ns_cbranch_scc1 {name}_w")
    A("s_waitcnt lgkmcnt(0)")
```

```python
from asmlib import *
from layout import *

L_X   = 0
XRB   = 2048 + 128
L_O   = 4224
L_JUNK = L_O + 2048
L_ZERO = L_JUNK + 256
L_MEM = 6656
L_KX  = L_MEM + 9216
L_W   = 24576
NLDS = 17
IDX, T16, WA, XW2, XW, XR, WRM, OW, T4R, PS, PS1, MS = range(12)
MR, ACC, STG, VACC, VX = 12, 24, 40, 56, 64
WREG0 = 72
S_WS = 8
S_W  = 12
S_H, S_WV, S_C, S_STEP, S_T0, S_T1, S_SPIN = 16, 17, 18, 19, 20, 21, 22
S_JOBLD, S_JOBST, S_RST0, S_RST1, S_RST2 = 23, 24, 25, 26, 27
S_PB, S_PO = 28, 29
S_KV, S_KVM = 30, 31
S_GA, S_ST, S_PF = 33, 34, 35
S_MK = 36
S_P0, S_P1 = 46, 47
S_HASJOB = 48
S_A, S_B, S_D, S_E = 49, 50, 51, 52
S_F = 53
S_G1, S_G2 = 6, 7
S_BP, S_BR, S_BL, S_BV = 82, 83, 84, 85
S_KM = 86
S_CNT1, S_CNT2, S_CNT3 = 54, 55, 32
S_TS = 60

NREP = 4
TORD = [8, 0, 1, 2, 3, 4, 5, 6, 7]
def frag_map():
    order = []
    for c in range(9):
        for m in "qk":
            for t in range(2): order.append((m, c, t))
    for c in range(9):
        for t in range(2): order.append(("v", c, t))
    for T in range(9):
        for co in range(2): order.append(("o", T, co))
    lds = [("k", c, 1) for c in range(9)] + [("o", T, 1) for T in TORD[:8]]
    fm = {f: ("l", i) for i, f in enumerate(lds)}
    r = WREG0
    for f in order:
        if f in fm: continue
        fm[f] = ("r", r); r += 8
    assert r == 512
    return fm
FM = frag_map()

def emit_loader(A, fl='', lorder='qkvo'):
    VA, VB, VL, VC = 1, 2, 3, 4
    RING, NP, TMP = 6, 29, 64
    A(f"s_mov_b32 s{S_P0}, 0x05040100\ns_mov_b32 s{S_P1}, 0x07060302")
    A(f"""v_and_b32 v{VL}, 63, v0
    v_lshlrev_b32 v{VL}, 4, v{VL}
    s_mul_i32 s{S_T0}, s{S_WV}, {NLDS*2048}
    s_add_u32 s{S_T0}, s{S_T0}, {L_W}
    v_add_u32 v{VL}, s{S_T0}, v{VL}""")
    A(f"""v_bfe_u32 v{TMP}, v0, 5, 1
    v_bfe_u32 v{TMP+1}, v0, 4, 1
    v_and_b32 v{TMP+2}, 15, v0
    v_lshlrev_b32 v{VA}, 17, v{TMP}
    v_lshl_add_u32 v{VA}, v{TMP+1}, 14, v{VA}
    v_lshl_add_u32 v{VA}, v{TMP+2}, 2, v{VA}
    s_lshl_b32 s{S_T0}, s{S_H}, 8
    s_lshl_b32 s{S_T1}, s{S_WV}, 6
    s_add_u32 s{S_T0}, s{S_T0}, s{S_T1}
    v_add_u32 v{VA}, s{S_T0}, v{VA}""")
    A(f"""v_lshlrev_b32 v{VB}, 4, v{TMP}
    v_lshl_add_u32 v{VB}, v{TMP+1}, 2, v{VB}
    v_mul_u32_u24 v{VB}, 1152, v{VB}
    s_mul_i32 s{S_T0}, s{S_H}, 147456
    v_add_u32 v{VB}, s{S_T0}, v{VB}""")
    A(f"""v_and_b32 v{VC}, 15, v0
    s_lshl_b32 s{S_T0}, s{S_WV}, 4
    v_add_u32 v{VC}, s{S_T0}, v{VC}
    v_lshlrev_b32 v{VC}, 1, v{VC}
    v_add_u32 v{VB}, v{VB}, v{VC}
    v_add_u32 v{VC}, v{VB}, v{VC}""")
    jobs = []
    for m in lorder:
        first = True
        if m != "o":
            for c in range(9):
                for b in range(8):
                    k0 = 64*c + 32*(b >> 2) + 8*(b & 1) + ((b >> 1) & 1)
                    pre = ("srd", {"q": B_WQ, "k": B_WK, "v": B_WV}[m]) if first else None
                    first = False
                    jobs.append((pre, "dword", VA, k0*8192, (k0+4)*8192, [((m, c, 0), b, S_P0), ((m, c, 1), b, S_P1)]))
            continue
        for pp in range(4):
            for co in range(2):
                for b in range(8):
                    e0 = 64*co + 32*(b >> 2) + 8*(b & 1) + 2*((b >> 1) & 1)
                    pre = ("srd", B_WO) if first else None
                    first = False
                    jobs.append((pre, "dword", VC, e0*1152 + pp*256, (e0+1)*1152 + pp*256, [(("o", 2*pp, co), b, S_P0), (("o", 2*pp+1, co), b, S_P1)]))
        for co in range(2):
            for b in range(8):
                e0 = 64*co + 32*(b >> 2) + 8*(b & 1) + 2*((b >> 1) & 1)
                jobs.append((None, "ushort", VB, e0*1152 + 1024, (e0+1)*1152 + 1024, [(("o", 8, co), b, S_P0)]))
    def issue(i):
        pre, op, va, o0, o1, outs = jobs[i]
        if pre:
            A(f"s_load_dwordx2 s[{S_B}:{S_B+1}], s[0:1], {pre[1]*8}")
            A("s_waitcnt lgkmcnt(0)")
            A.srd(S_W, S_B, 576*4096*2)
        r = RING + 2*(i % NP)
        A(f"s_mov_b32 s{S_T0}, {o0}\nbuffer_load_{op} v{r}, v{va}, s[{S_W}:{S_W+3}], s{S_T0} offen {fl}")
        A(f"s_mov_b32 s{S_T1}, {o1}\nbuffer_load_{op} v{r+1}, v{va}, s[{S_W}:{S_W+3}], s{S_T1} offen {fl}")
    def consume(i, outstanding):
        pre, op, va, o0, o1, outs = jobs[i]
        r = RING + 2*(i % NP)
        A(f"s_waitcnt vmcnt({outstanding})")
        for k, (f, b, sel) in enumerate(outs):
            kind, x = FM[f]
            t = TMP + 4*k + (b & 3)
            if kind == "r" and x < 256:
                A(f"v_perm_b32 v{x+b}, v{r+1}, v{r}, s{sel}")
            elif kind == "r":
                A(f"v_perm_b32 v{t}, v{r+1}, v{r}, s{sel}\nv_accvgpr_write_b32 a{x-256+b}, v{t}")
            else:
                A(f"v_perm_b32 v{t}, v{r+1}, v{r}, s{sel}")
                if b & 3 == 3:
                    A(f"ds_write_b128 v{VL}, {v(TMP+4*k, 4)} offset:{x*2048 + (b >> 2)*1024}\ns_waitcnt lgkmcnt(0)")
    n = len(jobs)
    for i in range(n + NP - 1):
        if i < n: issue(i)
        j = i - (NP - 1)
        if j >= 0:
            consume(j, 2*(min(n, i+1) - j - 1))

def emit_setup(A):
    t = MR
    TID, N, G, I1 = t, t+1, t+2, t+3
    A(f"""v_mov_b32 v{TID}, v0
    v_and_b32 v{N}, 15, v0
    v_bfe_u32 v{G}, v0, 4, 2
    v_lshlrev_b32 v{T16}, 4, v{TID}
    v_and_b32 v{WA}, 0x3f0, v{T16}
    s_mul_i32 s{S_T0}, s{S_WV}, {NLDS*2048}
    s_add_u32 s{S_T0}, s{S_T0}, {L_W}
    v_add_u32 v{WA}, s{S_T0}, v{WA}""")
    A(f"""v_and_b32 v{I1}, 1, v{TID}
    v_mul_u32_u24 v{IDX}, 0xaaaa, v{I1}
    v_add_u32 v{IDX}, 0xffff4444, v{IDX}""")
    x, y = t+4, t+5
    ROW, ISQ = t+6, t+7
    A(f"""v_lshrrev_b32 v{ROW}, 2, v{N}
    v_lshl_add_u32 v{ROW}, v{ROW}, 1, v{I1}
    v_bfe_u32 v{ISQ}, v{N}, 1, 1""")
    A(f"""v_lshrrev_b32 v{x}, 5, v{TID}
    v_lshlrev_b32 v{x}, 8, v{x}
    v_lshl_add_u32 v{x}, v{ROW}, 5, v{x}
    v_and_b32 v{y}, 1, v{G}
    v_lshl_add_u32 v{x}, v{y}, 4, v{x}
    v_and_b32 v{y}, 0x7f, v{x}
    v_xor_b32 v{y}, 16, v{y}
    v_add_u32 v{x}, {L_O}, v{x}
    v_add_u32 v{y}, {L_JUNK}, v{y}
    v_cmp_eq_u32 vcc, 1, v{ISQ}
    v_cndmask_b32 v{OW}, v{y}, v{x}, vcc""")
    A(f"""v_and_b32 v{x}, 1, v{G}
    v_xor_b32 v{x}, v{ROW}, v{x}
    v_and_b32 v{y}, 2, v{G}
    v_lshlrev_b32 v{y}, 1, v{y}
    v_xor_b32 v{x}, v{x}, v{y}
    v_lshlrev_b32 v{x}, 4, v{x}
    v_lshl_add_u32 v{x}, v{G}, 7, v{x}
    v_mul_u32_u24 v{y}, {XRB}, v{ISQ}
    v_add_u32 v{x}, v{x}, v{y}
    v_add_u32 v{XR}, {L_X}, v{x}""")
    g1, g0 = t+8, t+9
    A(f"""v_bfe_u32 v{g1}, v{N}, 3, 1
    v_bfe_u32 v{g0}, v{N}, 1, 1
    v_lshlrev_b32 v{x}, 1, v{G}
    v_xor_b32 v{x}, v{x}, v{g0}
    v_lshlrev_b32 v{y}, 2, v{g1}
    v_xor_b32 v{x}, v{x}, v{y}
    v_lshlrev_b32 v{x}, 4, v{x}
    v_lshl_add_u32 v{x}, v{g1}, 8, v{x}
    v_lshl_add_u32 v{x}, v{g0}, 7, v{x}
    v_bfe_u32 v{y}, v{N}, 2, 1
    v_lshl_add_u32 v{x}, v{y}, 3, v{x}
    v_lshl_add_u32 v{x}, v{I1}, 2, v{x}
    s_lshl_b32 s{S_T0}, s{S_WV}, 9
    s_add_u32 s{S_T0}, s{S_T0}, {L_X}
    v_add_u32 v{XW}, s{S_T0}, v{x}
    v_xor_b32 v{XW2}, 16, v{XW}""")
    A(f"""v_lshrrev_b32 v{x}, 4, v{TID}
    v_xor_b32 v{y}, s{S_H}, v{x}
    v_lshlrev_b32 v{x}, 12, v{x}
    v_lshl_add_u32 v{x}, v{y}, 7, v{x}
    v_lshl_add_u32 v{PS}, v{N}, 3, v{x}""")
    A(f"""s_lshr_b32 s{S_T0}, s{S_WV}, 1
    s_lshl_b32 s{S_T0}, s{S_T0}, 2
    v_add_u32 v{x}, s{S_T0}, v{G}
    v_xor_b32 v{y}, s{S_H}, v{x}
    v_lshlrev_b32 v{x}, 12, v{x}
    v_lshl_add_u32 v{x}, v{y}, 7, v{x}
    v_lshl_add_u32 v{x}, v{N}, 2, v{x}
    s_and_b32 s{S_T0}, s{S_WV}, 1
    s_lshl_b32 s{S_T0}, s{S_T0}, 6
    s_add_u32 s{S_T0}, s{S_T0}, {64*4096}
    v_add_u32 v{PS1}, s{S_T0}, v{x}""")
    A(f"""v_bfe_u32 v{x}, v{N}, 2, 1
    v_lshlrev_b32 v{x}, 5, v{x}
    v_and_b32 v{y}, 1, v{G}
    v_lshl_add_u32 v{x}, v{y}, 8, v{x}
    v_lshrrev_b32 v{y}, 1, v{G}
    v_lshl_add_u32 v{x}, v{y}, 4, v{x}
    v_and_b32 v{y}, 3, v{N}
    v_lshl_add_u32 v{MS}, v{y}, 2, v{x}""")
    A(f"v_lshlrev_b32 v{WRM}, 7, v{TID}\nv_lshlrev_b32 v{T4R}, 2, v{TID}")
    for r in range(4):
        m = 0x11111111 << r
        A(f"s_mov_b32 s{S_MK+2*r}, {m:#x}\ns_mov_b32 s{S_MK+2*r+1}, {m:#x}")
    A(f"s_mov_b32 s{S_MK+8}, 0xf0f0f0f0\ns_mov_b32 s{S_MK+9}, 0xf0f0f0f0")
    A(f"s_mov_b32 s{S_C}, {f32bits(SCALE_LOG2E):#x}")
    A(f"""s_lshl_b32 s{S_T0}, s{S_WV}, 5
    s_add_u32 s{S_T0}, s{S_T0}, s{S_H}
    s_cmp_lt_u32 s{S_T0}, 72
    s_cselect_b32 s{S_HASJOB}, 1, 0
    s_lshl_b32 s{S_JOBLD}, s{S_T0}, 12
    s_lshl_b32 s{S_T1}, s{S_WV}, 10
    s_sub_u32 s{S_JOBLD}, s{S_JOBLD}, s{S_T1}
    s_lshr_b32 s{S_JOBST}, s{S_T0}, 2
    s_lshl_b32 s{S_JOBST}, s{S_JOBST}, 9
    s_and_b32 s{S_T1}, s{S_T0}, 3
    s_lshl_b32 s{S_T1}, s{S_T1}, 6
    s_add_u32 s{S_JOBST}, s{S_JOBST}, s{S_T1}
    s_add_u32 s{S_JOBST}, s{S_JOBST}, {MEMI}
    s_cmp_lt_u32 s{S_T0}, 72
    s_cselect_b32 s{S_JOBST}, s{S_JOBST}, {OOB}
    s_lshl_b32 s{S_RST0}, s{S_H}, 12
    s_add_u32 s{S_RST1}, s{S_RST0}, {32*4096}
    s_add_u32 s{S_RST2}, s{S_RST0}, {64*4096}
    s_cmp_lt_u32 s{S_H}, 8
    s_cselect_b32 s{S_RST2}, s{S_RST2}, {OOB}
    s_mov_b32 s{S_PB}, {PART}
    s_mov_b32 s{S_PO}, {PART + PART_SZ}
    s_lshl_b32 s{S_KV}, s{S_H}, 20
    s_add_u32 s{S_KV}, s{S_KV}, {KVB}
    s_lshl_b32 s{S_KVM}, s{S_H}, 12
    s_add_u32 s{S_KVM}, s{S_KVM}, {KVM}
    s_add_u32 s{S_PF}, s{S_JOBST}, {2*16384}
    s_mov_b32 s{S_F}, 0x3f803f80
    s_mov_b32 s{S_KM}, 0x33333333
    s_mov_b32 s{S_KM+1}, 0x33333333
    s_lshl_b32 s{S_BL}, s{S_WV}, 13
    s_sub_u32 s{S_BL}, s{S_T0}, s{S_BL}
    s_add_u32 s{S_BL}, s{S_BL}, {BELL}
    s_cmp_lt_u32 s{S_T0}, 72
    s_cselect_b32 s{S_BL}, s{S_BL}, {OOB}
    s_and_b32 s{S_T1}, s{S_H}, {NREP-1}
    s_lshl_b32 s{S_T1}, s{S_T1}, 7
    s_add_u32 s{S_T1}, s{S_T1}, {BELL - 768}
    s_cmp_eq_u32 s{S_WV}, 3
    s_cselect_b32 s{S_BL}, s{S_T1}, s{S_BL}
    s_lshl_b32 s{S_BP}, s{S_H}, 7
    s_add_u32 s{S_BR}, s{S_BP}, {F_TEAM - 768}
    s_add_u32 s{S_BP}, s{S_BP}, {F_BKV - 768}
    s_mov_b32 s{S_STEP}, 0""")

def ws(off): return f"s[{S_WS}:{S_WS+3}], {off} offen"

def emit_init_sentinels(A):
    for i in range(4): A(f"v_mov_b32 v{VX+i}, -1")
    for buf in (S_PB, S_PO):
        for r in (S_RST0, S_RST1, S_RST2):
            A(f"s_add_u32 s{S_T0}, s{buf}, s{r}\nbuffer_store_dwordx4 {v(VX,4)}, v{T16}, {ws(s(S_T0))}")
    A(f"s_add_u32 s{S_T0}, s{S_JOBST}, {1*16384}\nbuffer_store_dword v{VX}, v{MS}, {ws(s(S_T0))}")


    A(f"s_cmp_eq_u32 s{S_WV}, 3\ns_cselect_b32 s{S_T0}, {OOB}, s{S_BL}\ns_mov_b64 exec, {(1 << NREP) - 1}\nbuffer_store_byte v{VX}, v{WRM}, {ws(s(S_T0))}\ns_mov_b64 exec, -1")

def emit_touch(A):
    A(f"""s_mul_i32 s{S_T0}, s{S_H}, {2*PART_SZ // 32}
    s_add_u32 s{S_T0}, s{S_T0}, {PART}
    s_lshl_b32 s{S_T1}, s{S_H}, 11
    s_add_u32 s{S_T1}, s{S_T1}, {MEMI - 3*8192}
    s_cmp_eq_u32 s{S_WV}, 3
    s_cselect_b32 s{S_T0}, s{S_T1}, s{S_T0}
    buffer_load_dword v{STG+1}, v{WRM}, {ws(s(S_T0))} sc1""")

def emit_mem0(A):
    A(f"s_load_dwordx2 s[{S_B}:{S_B+1}], s[0:1], {B_MEM0*8}\ns_waitcnt lgkmcnt(0)")
    A.srd(S_W, S_B, 9216)
    x, y = VX, VX+1
    A(f"""v_bfe_u32 v{x}, v{T16}, 5, 3
    v_mul_u32_u24 v{x}, 1152, v{x}
    v_lshrrev_b32 v{y}, 8, v{T16}
    v_lshl_add_u32 v{x}, v{y}, 5, v{x}
    v_and_b32 v{y}, 16, v{T16}
    v_add_u32 v{x}, v{x}, v{y}""")
    for j in range(3):
        A(f"buffer_load_dwordx4 {v(ACC+4*j,4)}, v{x}, s[{S_W}:{S_W+3}], 0 offen offset:{j*512}")
    A("s_waitcnt vmcnt(0)")
    for j in range(3):
        a = ACC + 4*j; d = MR + 4*j
        A(f"""v_perm_b32 v{d}, v{a+2}, v{a}, s{S_P0}
        v_perm_b32 v{d+1}, v{a+2}, v{a}, s{S_P1}
        v_perm_b32 v{d+2}, v{a+3}, v{a+1}, s{S_P0}
        v_perm_b32 v{d+3}, v{a+3}, v{a+1}, s{S_P1}""")
        for i in range(4): A(f"v_min_u32 v{d+i}, 0xfffeffff, v{d+i}")
    L = A.uniq("L_m0")
    A(f"s_cmp_lg_u32 s{S_WV}, 0\ns_cbranch_scc1 {L}")
    A(f"ds_write_b128 v{T16}, {v(MR+8,4)} offset:{L_MEM+8192}")
    A(f"v_mov_b32 v{x}, {L_ZERO}")
    for i in range(4): A(f"v_mov_b32 v{VACC+i}, 0")
    A(f"ds_write_b128 v{x}, {v(VACC,4)}")
    A.label(L)
    A(f"s_waitcnt lgkmcnt(0)\ns_barrier\nds_read_b32 v{MR+8}, v{T4R} offset:{L_MEM+8192}\ns_waitcnt lgkmcnt(0)")
    A(f"s_mov_b32 s{S_GA}, {MEMI}\ns_mov_b32 s{S_G1}, {MEMI}\ns_mov_b32 s{S_G2}, {MEMI}")

def wread(dst, slot):
    return [f"ds_read_b128 {v(dst,4)}, v{WA} offset:{slot*2048}", f"ds_read_b128 {v(dst+4,4)}, v{WA} offset:{slot*2048+1024}"]

def smf(acc, areg, f, stg=None):
    kind, x = FM[f]
    b = R(x, 8) if kind == "r" else v(stg, 8)
    return f"v_smfmac_f32_16x16x64_bf16 {v(acc,4)}, {v(areg,4)}, {b}, v{IDX}"

class LG:
    def __init__(self, A): self.A = A; self.q = []
    def op(self, text, tag=None): self.A(text); self.q.append(tag)
    def wait(self, tag, extra=""):
        idx = [i for i, t in enumerate(self.q) if t == tag]
        if not idx:
            if extra: self.A("s_waitcnt" + extra)
            return
        n = len(self.q) - 1 - idx[-1]
        assert n <= 15, n
        self.A(f"s_waitcnt lgkmcnt({n})" + extra); self.q = self.q[idx[-1]+1:]
    def all(self, extra=""):
        self.A("s_waitcnt lgkmcnt(0)" + extra); self.q = []


KXS, VXA = VX+5, VX+6
NEG = IDX
cmp_sent = lambda r: f"v_cmp_le_u32 vcc, 0xffff0000, v{r}"
def corder(w): return [w, 4 + w] + [c for c in range(9) if c not in (w, 4 + w)]

def pre_gemm_list(w):
    early = [f"v_mov_b64 {v(r,2)}, 0" for r in range(ACC, ACC+8, 2)]
    early += [f"v_and_b32 v{KXS}, 0x380, v{T16}", f"v_add_u32 v{KXS}, v{KXS}, v{T16}", f"v_and_b32 v{VXA}, 0xf00, v{T16}", f"v_add_u32 v{VXA}, v{VXA}, v{T16}"]
    early += [f"v_mov_b64 {v(VX,2)}, -1", f"v_mov_b64 {v(VX+2,2)}, -1", f"v_xor_b32 v{XW2}, 16, v{XW}"]
    early += wread(STG+8, 4 + w)
    late = wread(STG, w) + [f"v_mov_b64 {v(r,2)}, 0" for r in list(range(ACC+8, ACC+16, 2)) + list(range(VACC, VACC+8, 2))]
    return early, late

def side_consts(w, kvstep, vxd):
    return [f"s_add_u32 s{S_T0}, s{S_KV}, {w*1024}", f"s_add_u32 s{S_T1}, s{S_KV}, 8192",
            f"s_add_u32 s{S_A}, s{S_PO}, s{S_RST0}", f"s_add_u32 s{S_B}, s{S_PO}, s{S_RST1}",
            f"s_add_u32 s{S_D}, s{S_PO}, s{S_RST2}", f"s_add_u32 s{S_E}, s{S_KV}, {16384 if kvstep else 0}",
            f"s_mov_b32 m0, {L_KX + w*2048}"]

def delay(A, n):
    while n > 0:
        k = min(n, 16); A(f"s_nop {k-1}"); n -= k

def emit_loop(A, w, L_exit, L_fail, stamps=False, spin=20000, dA=0, d1=0, kvstep=True, nA=1,
              vxd=False, pubflag="sc1", nocomm=False, marks=None, nv1=3, norst=False, rstpos=1, wstride=128, keep=True, lag=4, pub=True, gv=0, vper=2, win=False, flags=False, bell=0, d0=None, bgap=0, gs=0, rdel=0, rsp=3, vgap=3, qe=1, ep=16, kxb=False, dup=0, dupw=2, ndup=1, gb=4, gw=True, d2=None, lazy=False, bpos=3, g8f=True, kxe=False, kxp=(0, 1, 3), prog=None, jd0=0, a0=None, a1=None, a2=None, fa=False, fb=False, cpos=0, jd=0, dR=None, dL=None):
    nve = 2
    assert cpos <= 2
    aw = (a0, a1, a2, None)
    jd = (jd0, jd, 0, 0)[w]; jw = (w,)
    def mark(name):
        if marks and name in marks:
            i = marks.index(name); A(f"s_memtime s[{S_TS+2*i}:{S_TS+2*i+1}]")
    cnt = lambda r: A(f"s_add_u32 s{r}, s{r}, 1") if stamps else None
    lg = LG(A)
    L_step, L_ent, L_last, L_gr = f"L_step{w}", f"L_ent{w}", f"L_last{w}", f"L_gr{w}"
    spin_chk = f"s_add_u32 s{S_SPIN}, s{S_SPIN}, 1\ns_cmp_gt_u32 s{S_SPIN}, {spin}\ns_cbranch_scc1 {L_fail}"
    pe, pl = pre_gemm_list(w)
    pe0 = pe
    if kxe: pe = [x for x in pe if f"v{KXS}," not in x] + [f"v_lshrrev_b32 v{T4R}, 2, v{T16}"]
    sc = side_consts(w, kvstep, vxd)
    rst = [f"buffer_store_dwordx4 {v(VX,4)}, v{T16}, {ws(s(sr))} ;st" for sr in (S_A, S_B, S_D)]
    pf = f"buffer_store_dword v{NEG}, v{MS}, {ws(s(S_PF))} ;st"
    if norst: rst = []
    r0 = rst if rstpos == 0 else []
    A.label(L_ent)
    assert wstride == 128
    for x in pe0 + pl + sc + r0: A(x)
    kxd = lambda r: [f"buffer_load_dwordx4 v{r}, {ws(s(S_T0))} sc1 lds", f"s_mov_b32 m0, {L_KX + w*2048 + 1024 - 128}", f"buffer_load_dwordx4 v{r}, {ws(s(S_T0))} offset:128 sc1 lds"]
    if kxe:
        assert kxb and keep and gv != 5
        for x in kxd(KXS): A(x)
    if gv in (5, 12): A(f"v_mov_b32 v{VX+4}, v{MR+8}")
    A(f"s_waitcnt vmcnt(0) lgkmcnt(0)\ns_branch {L_step}")
    co = corder(w)
    two = gv == 5
    P8, CK = (VX + 4, VX + 7) if two or gv == 12 else (MR + 8, MR + 9)
    gl1 = f"buffer_load_dwordx4 {v(MR,4)}, v{T16}, {ws(s(S_GA))} sc1"
    gl2 = [f"buffer_load_dword v{P8}, v{T4R}, {ws(s(S_G2))} sc1", f"buffer_load_dwordx4 {v(MR+4,4)}, v{T16}, {ws(s(S_G1))} sc1"]
    zacc = [f"v_mov_b64 {v(r,2)}, 0" for r in list(range(ACC, ACC+16, 2)) + list(range(VACC, VACC+8, 2))]
    dupl = [gl2[1]]*ndup if dup and w >= dupw else []
    if gv == 12: dupl = ["\n".join([gl1] + gl2)]*ndup if dup else []
    A.label(L_gr)
    if dupl and gv < 11:
        for x in zacc: A(x)
        A(f"""s_waitcnt vmcnt(0)
        v_max3_u32 v{CK}, v{MR}, v{MR+1}, v{MR+2}
        v_max3_u32 v{CK}, v{CK}, v{MR+3}, v{P8}
        v_max3_u32 v{CK}, v{CK}, v{MR+4}, v{MR+5}
        v_max3_u32 v{CK}, v{CK}, v{MR+6}, v{MR+7}
        {cmp_sent(CK)}""")
        cnt(S_CNT1)
        A(f"s_waitcnt lgkmcnt(0)\ns_cbranch_vccz {L_step}")
    for x in [gl1] + gl2: A(x)
    if dL: A(f"v_mov_b32 v{CK}, s{S_STEP}\nv_mov_b32 v{CK+1}, {L_ZERO + 16}\nds_write_b32 v{CK+1}, v{CK}")
    cnt(S_CNT2)
    A(spin_chk)
    if gv == 12: A(f"s_branch {L_step}")
    elif gv == 11:
        for x in dupl + zacc: A(x)
    elif dupl:
        delay(A, dup)
        for x in dupl: A(x)
    else:
        for x in zacc: A(x)
    if r0: A("s_waitcnt vmcnt(0)")
    A(f"s_waitcnt lgkmcnt(0)\ns_branch {L_step}")
    A(".p2align 3")
    A.label(f"L_gat{w}")
    mark("tg")
    rest = sc + pl
    nvm = [1]
    def filler(n):
        k = 0
        while k < n and rest:
            if rest[0] == pl[0] and jd and w in jw: A(f"s_waitcnt vmcnt({nvm[0]})")
            A(rest.pop(0)); k += 1
        delay(A, n - k)
    for x, d in [(gl1, 0 if g8f else gs), (gl2[0], gs if g8f else 0), (gl2[1], dup if dupl else 0)] + [(x, dup if i + 1 < len(dupl) else 0) for i, x in enumerate(dupl)]:
        A(x); nvm[0] += len(x.split("\n")); filler(d)
    filler(len(rest))
    if r0: delay(A, rdel)
    for x in r0: A(x)
    if win:
        A(f"s_cmp_eq_u32 s{S_STEP}, 8\ns_cbranch_scc0 L_win{w}\ns_memtime s[94:95]\ns_memrealtime s[88:89]\nL_win{w}:")
    A("s_waitcnt lgkmcnt(0)")
    A.label(L_step)
    n0 = len(r0)
    uses = co + co[nve:]
    mslot = lambda u: MR + 4*(u % 3)
    dsq, held, lvl = [], [], [0]
    def q(x, need_lvl):
        if lvl[0] >= need_lvl and not any(l <= need_lvl for _, l in held): dsq.append(x)
        else: held.append((x, need_lvl))
    def raise_(l):
        lvl[0] = l
        dsq[:0] = [x for x, n in held if n <= l]; held[:] = [(x, n) for x, n in held if n > l]
    def mread(u):
        if u < len(uses): q((f"ds_read_b128 {v(mslot(u),4)}, v{T16} offset:{L_MEM - w*1024 + 1024*uses[u]}", ("m", u)), 3 if uses[u] >= 4 else 1 if u == 2 else 2)
    def ds1():
        if dsq: lg.op(*dsq.pop(0))
    def need(tag):
        while any(x[1] == tag for x, _ in held): side_next()
        while any(t == tag for _, t in dsq): ds1()
        lg.wait(tag)
    w0 = f"ds_write_b128 v{T16}, {v(MR,4)} offset:{L_MEM}"
    w1 = f"ds_write_b32 v{T4R}, v{P8} offset:{L_MEM+8192}"
    w2 = f"ds_write_b128 v{T16}, {v(MR+4,4)} offset:{L_MEM+4096}"
    k_ = [f"v_max3_u32 v{CK}, v{MR}, v{MR+1}, v{MR+2}", f"v_max3_u32 v{CK}, v{CK}, v{MR+3}, v{P8}",
          f"v_max3_u32 v{CK}, v{CK}, v{MR+4}, v{MR+5}", f"v_max3_u32 v{CK}, v{CK}, v{MR+6}, v{MR+7}", cmp_sent(CK)]
    br = f"s_cbranch_vccnz {L_gr}" if not nocomm else "s_nop 0"
    wv = lambda n: f"s_waitcnt vmcnt({n0+n})"
    k2 = [f"v_max3_u32 v{CK}, v{P8}, v{MR+4}, v{MR+5}", k_[3], k_[4]]
    if gv == 0: side = [[w0], [wv(1), w1], [wv(0), w2], k_[0:2], k_[2:4], [k_[4]], [br], ["BAR3"]]
    nd = len(dupl) * (3 if gv == 12 else 1)
    if gv == 12: side = [[]]*gb + [['BAR3']]
    if gv == 6: side = [[w0], [wv(1 + nd), k_[0], k_[1]], [w1], [wv(nd), k_[2], k_[3], k_[4], w2, br], [], [], ["BAR3"]]
    if gv == 7: side = [[w0, wv(1 + nd), k_[0], k_[1], w1, wv(nd), k_[2], k_[3], k_[4], w2, br], [], [], [], ["BAR3"]]
    if gv == 8: side = [[w0], [wv(1 + nd), k_[0], k_[1]], [w1, wv(nd), k_[2], k_[3], k_[4]], [br, w2], [], [], [], ["BAR3"]]
    if gv == 9: side = [[w0], [k_[0]], [], [], [wv(1 + nd), k_[1], w1, wv(nd), k_[2], k_[3], k_[4]], [br, w2], [], [], [], ["BAR3"]]
    if gv == 10: side = [[w0], [k_[0]], [], [wv(1 + nd), k_[1], w1, wv(nd), k_[2], k_[3], k_[4]], [br, w2], [], [], [], ["BAR3"]]
    k3 = [f"v_max3_u32 v{CK}, v{MR+4}, v{MR+5}, v{MR+6}", f"v_max_u32 v{CK}, v{CK}, v{MR+7}", k_[4]]
    if gv == 11: side = [[w0], [wv(1 + nd), k_[0], k_[1], k_[4]], *([[br, wv(nd)] + k3 + [w1]] if not cpos else [[br, w1]] + [[]]*(cpos-1) + [[wv(nd)] + k3]), [f"s_cbranch_vccnz L_g3r{w}" if not nocomm else "s_nop 0", f"L_g3{w}:", w2]] + [[]]*bpos + [["BAR3"]]
    if gv == 5: side = [[w0], [k_[0]], [f"v_max_u32 v{CK}, v{CK}, v{MR+3}"], [k_[4]], [br, "BAR1"], [wv(0), k2[0]], [w2], [k2[1]], [k2[2]], ["BR2", w1]]
    gap = [[], [], []]
    if kxe: side += [[f"s_mov_b32 m0, {L_JUNK}"] + ([pf] if w < 3 else [])]
    else: side += [[f"buffer_load_dwordx4 v{KXS}, {ws(s(S_T0))} sc1 lds ;kx"], [f"s_mov_b32 m0, {L_KX + w*2048 + 1024 - 128}"], [], ["BAR3"] if two else [],
        [f"buffer_load_dwordx4 v{KXS}, {ws(s(S_T0))} offset:128 sc1 lds ;kx"], [f"s_mov_b32 m0, {L_JUNK}"], [pf] if w < 3 else [], []]
    if rstpos == 1:
        for x in rst: side += [[]]*min(w, rsp) + [[x]] + [[]]*(rsp - min(w, rsp))
    side += [[f"buffer_load_dwordx4 {v(VX,4)}, v{VXA}, {ws(s(S_T1))} sc1 ;vx"]] + gap[:vgap]
    side += [[f"buffer_load_dwordx4 {v(VX+4,4)}, v{VXA}, {ws(s(S_T1))} offset:256 sc1 ;vx"]] + gap + [[]]
    if w < (8192 if vxd else 16384) // (64*wstride): side += [[f"buffer_load_dword v{WRM}, {ws(s(S_E))} sc1 lds ;warm"]]
    if flags and w == 3:
        side[-2] = [f"v_mov_b32 v{MS}, s{S_STEP}"]
        side += [["s_mov_b64 exec, 1", f"buffer_store_dword v{MS}, v{T4R}, {ws(s(S_BR))} sc1 ;fl", "s_mov_b64 exec, -1"],
                 [f"buffer_load_dword v{MS}, v{T4R}, {ws(s(S_BP))} sc1 ;fl"]]
    vm = []
    issued, redo = [], []
    def side_next():
        if side:
            for x in side.pop(0):
                if x.startswith("BAR"):
                    lg.wait("gw"); A("s_barrier"); mark("bar" + x[3]); raise_(int(x[3])); ds1()
                    if gv == 12 and dupl and any(t == ("m", 3) for _, t in dsq): A("s_waitcnt vmcnt(0)")
                elif x == "BR2":
                    A((f"s_cbranch_vccnz L_g2r{w}" if not nocomm else "s_nop 0") + f"\nL_g2{w}:"); redo.extend(issued); raise_(2)
                elif x.startswith("ds_"): lg.op(x, "gw")
                else: A(x)
                if x.startswith("buffer"): vm.append(x.split(";")[1])
    def vmwait(tag):
        idx = [i for i, t in enumerate(vm) if t == tag]
        return len(vm) - 1 - idx[-1]
    q0, q1, k0, k1 = ACC, ACC+4, ACC+8, ACC+12
    add2 = lambda r: f"v_add_f32 v{r}, v{r}, v{r+1}\nv_add_f32 v{r+2}, v{r+2}, v{r+3}"
    def epi(a, b, off):
        return add2(a).split("\n") + add2(b).split("\n") + [f"v_cvt_pk_bf16_f32 v{a}, v{a}, v{b}", f"ds_write_b32 v{XW}, v{a} offset:{off}",
                f"v_cvt_pk_bf16_f32 v{a+2}, v{a+2}, v{b+2}", f"ds_write_b32 v{XW2}, v{a+2} offset:{off}"]
    eq = []
    def eq1(n):
        for _ in range(n):
            if eq:
                x = eq.pop(0)
                if x.startswith("ds_"): lg.op(x, "xw")
                else: A(x)
    kxr = lambda d, m, tk: f"ds_read_b128 {v(d,4)}, v{T16} offset:{L_KX - w*1024 + m*2048 + tk*1024}"
    mo = [(w + i) & 3 for i in range(4)]
    seq = []
    for u in range(9 - qe):
        seq += [(u, "q", 0), (u, "q", 1), (u, "k", 0)] + ([(u, "v", 0), (u, "v", 1)] if u < nve else []) + [(u, "k", 1)]
    seq += [(u, "q", t) for u in range(9 - qe, 9) for t in range(2)] + [(u, "k", t) for u in range(9 - qe, 9) for t in range(2)]
    lastq = max(i for i, x in enumerate(seq) if x[1] == "q")
    mread(2)
    A(f"s_waitcnt vmcnt({n0+2+nd})")
    if gv == 12:
        A(f"{k_[0]}\n{wv(1 + nd)}\n{k_[1]}"); lg.op(w0, "gw")
        A(f"{wv(nd)}\n{k_[2]}\n{k_[3]}\n{k_[4]}")
        if gw: lg.op(w2, "gw")
        A(br)
        if not gw: lg.op(w2, "gw")
        side[0] = [w1]
    for i, (u, m, t) in enumerate(seq):
        c = uses[u]
        if m == "q" and t == 0: need(("m", u)); mark(f"c{u}")
        last = m == "k" and t == 1
        if last: need(("w", u))
        x = smf({"q": ACC, "k": ACC+8, "v": VACC}[m] + 4*t, mslot(u), (m, c, t), STG + 8*(u & 1))
        A(x); issued.append(x)
        if last:
            if dupl and (u == 1 if gv != 12 else (u == 0 and lvl[0] == 3)): A(f"s_waitcnt vmcnt({len(vm)})")
            mread(u + 3)
            if u + 2 < 9:
                for y in wread(STG + 8*(u & 1), uses[u + 2]): q((y, ("w", u + 2)), 2)
            if kxb and u == 7 and not kxe: A(f"s_waitcnt vmcnt({vmwait('kx')})\ns_barrier")
            if kxb and u >= 7: dsq.extend((kxr(STG+4*mm, mm, 0), ("kx", mm, 0)) for mm in mo if (mm >> 1) == (u & 1))
        ds1()
        if i == lastq + 2: eq.extend(epi(q0, q1, XRB))
        if eq: eq1(1)
        else: side_next()
    mark("qk")
    vs = [(u, t) for u in range(9, len(uses)) for t in range(2)]
    def vsm(ds=True, sd=True):
        if not vs: return
        u, t = vs.pop(0)
        if t == 0: need(("m", u))
        A(smf(VACC + 4*t, mslot(u), ("v", uses[u], t)))
        if t == 1:
            n = len(dsq); mread(u + 3)
            if len(dsq) > n: dsq.insert(0, dsq.pop())
        if ds: ds1()
        if sd: side_next()
    eq.extend(epi(k0, k1, 0))
    while eq:
        vsm(sd=False); eq1(ep)
    mark("xw")
    for i in range(nv1): vsm()
    vsm(False)
    lg.wait("xw", f" vmcnt({vmwait('kx')})" if not kxb else "")
    A("s_barrier")
    mark("b1")
    post = []
    for m in mo:
        post += [(f"ds_read_b128 {v(ACC+4*m,4)}, v{XR} offset:{m*512}", ("x", m))] + ([] if kxb else [(kxr(STG+4*m, m, 0), ("kx", m, 0))])
    lg.op(*post.pop(0))
    kpub = f"s_mov_b64 exec, s[{S_KM}:{S_KM+1}]\nbuffer_store_dwordx4 {v(ACC+4*w,4)}, v{XR}, {ws(s(S_KVM))} offset:{w*512} {pubflag}\ns_mov_b64 exec, -1"
    dsq.extend(post)
    while vs: vsm()
    mark("v")
    T0, T1, T2 = mslot(len(uses)), mslot(len(uses)+2), mslot(len(uses)+1)
    mf = lambda d, a, b, c: f"v_mfma_f32_16x16x32_bf16 {v(d,4)}, {v(a,4)}, {v(b,4)}, {c}"
    v0_, v1_ = VACC, VACC+4
    ONES = VACC + 4
    M = VACC + 3
    one = lambda i: f"v_mov_b32 v{ONES+i}, s{S_F}"
    for i, m in enumerate(mo):
        need(("kx", m, 0)); need(("x", m))
        A(mf(T0, STG+4*m, ACC+4*m, "0" if i == 0 else v(T0,4)))
        dsq.append((kxr(STG+4*m, m, 1), ("kx", m, 1)))
        ds1()
        if i == w and pub: A(kpub); vm.append("pub")
        else: side_next()
    while side: side_next()
    vepi = [add2(v0_), add2(v1_),
            f"v_cvt_pk_bf16_f32 v{v0_}, v{v0_}, v{v0_+2}\nv_cvt_pk_bf16_f32 v{v0_+1}, v{v1_}, v{v1_+2}",
            f"v_lshrrev_b32 v{VACC+2}, 1, v{T16}\nv_max3_f32 v{M}, v{T0}, v{T0+1}, v{T0+2}"]
    for i, m in enumerate(mo):
        A(mf(T2, ACC+4*m, ACC+4*m, "0" if i == 0 else v(T2,4)))
        ds1()
        A(vepi[i])
    WB = [STG, STG+8, ACC+8]
    wq = {}
    for j in range(3):
        for hh, x in enumerate(wread(WB[j], 9 + j)): wq[WB[j] + 4*hh] = (x, ("wo", j))
    for i, m in enumerate(mo):
        need(("kx", m, 1))
        A(mf(T1, STG+4*m, ACC+4*m, "0" if i == 0 else v(T1,4)))
        dsq.append(wq.pop(STG+4*m))
        ds1()
        if i == w and pub:
            A(f"buffer_store_dwordx2 {v(VACC,2)}, v{VACC+2}, {ws(s(S_KVM))} offset:2048 {pubflag}"); vm.append("pub")
        if i == (2 if w != 2 else 3): A(f"v_max3_f32 v{M}, v{M}, v{T0+3}, v{T2}\nv_max_f32 v{M}, v{M}, v{T2+1}")
    mark("s")
    dsq.extend(wq.values())
    TM = T2 + 2
    so = [S_PB, S_B, S_D, S_E]
    sal = [f"s_add_u32 s{S_A}, s{S_PB}, s{S_JOBLD}"] + [f"s_add_u32 s{so[pp]}, s{S_PB}, {pp*16*4096}" for pp in range(1, 4)]
    A(one(0)); A(sal[0]); A(one(1)); A(sal[1]); A(one(2)); ds1(); A(one(3))
    A(f"""v_max3_f32 v{M}, v{M}, v{T1}, v{T1+1}
    v_max3_f32 v{TM}, v{M}, v{T1+2}, v{T1+3}
    v_max3_f32 v{M}, v{M}, v{T1+2}, v{T1+3}
    {sal[2]}
    {sal[3]}
    v_permlane32_swap_b32 v{TM}, v{M}
    v_max_f32 v{T2+3}, v{M}, v{TM}
    v_max_f32 v{M}, v{M}, v{TM}
    v_mov_b32 v{T2+2}, 0""")
    ds1()
    A(f"""v_permlane16_swap_b32 v{T2+3}, v{M}
    v_max_f32 v{M}, v{M}, v{T2+3}
    v_mul_f32 v{VACC+2}, s{S_C}, v{M}""")
    assert not dsq
    mark("max")
    for r in (T2, T0, T0+2, T1, T1+2):
        A(f"v_pk_fma_f32 {v(r,2)}, {v(r,2)}, s[{S_C}:{S_C+1}], {v(VACC+2,2)} op_sel_hi:[1,0,0] neg_lo:[0,0,1] neg_hi:[0,0,1]")
    ex = lambda r: A(f"v_exp_f32 v{r}, v{r}")
    ex(T2); ex(T2+1); ex(T0)
    A(f"v_cvt_pk_bf16_f32 v{T2+3}, v{T2}, v{T2+1}\nv_cvt_pk_bf16_f32 v{T2}, v{T2}, v{T2+1}\nv_mov_b32 v{T2+1}, 0")
    O0, O1, LA = ACC, ACC+4, T1
    m16 = lambda d, a, b, c: f"v_mfma_f32_16x16x16_bf16 {v(d,4)}, {v(a,2)}, {v(b,2)}, {c}"
    ex(T0+1); ex(T0+2)
    A(m16(O0, VACC, T2, "0"))
    ex(T0+3)
    A(m16(O1, VACC, T2+2, "0"))
    ex(T1); ex(T1+1)
    A(f"v_cvt_pk_bf16_f32 v{T0}, v{T0}, v{T0+1}\nv_cvt_pk_bf16_f32 v{T0+1}, v{T0+2}, v{T0+3}")
    ex(T1+2); ex(T1+3)
    A(f"v_cvt_pk_bf16_f32 v{T0+2}, v{T1}, v{T1+1}\nv_cvt_pk_bf16_f32 v{T0+3}, v{T1+2}, v{T1+3}")
    mark("exp")
    A(m16(LA, ONES, T2, "0"))
    A(f"s_waitcnt vmcnt({vmwait('vx')})")
    A(mf(LA, ONES, T0, v(LA,4)))
    RL = LA
    mz = lambda r: A(f"v_mov_b32 v{r}, 0")
    mz(T2); mz(T2+3)
    A(mf(O0, VX, T0, v(O0,4)))
    A("s_nop 1")
    A(mf(O1, VX+4, T0, v(O1,4)))
    mz(T0); mz(T0+1)
    A(f"v_rcp_f32 v{RL}, v{LA}")
    mz(T0+2); mz(T0+3)
    pkm = lambda r: A(f"v_pk_mul_f32 {v(r,2)}, {v(r,2)}, {v(RL,2)} op_sel_hi:[1,0]")
    pkm(O0); pkm(O0+2); mz(T1+3); pkm(O1); pkm(O1+2)
    for r in range(4): A(f"v_cvt_pk_bf16_f32 v{O0+r}, v{O0+r}, v{O1+r}")
    z16 = lambda d: A(mf(d, T2, T2, "0"))
    mark("pv")
    if keep: z16(VACC)
    lg.op(f"ds_write_b128 v{OW}, {v(O0,4)}", "ow")
    if keep:
        z16(VACC+4); mz(T1); mz(T1+1); mz(T1+2); A(f"v_mov_b32 v{XW2}, {L_ZERO}")
        if kxe: A(f"v_and_b32 v{T4R}, 0x380, v{T16}\nv_add_u32 v{T4R}, v{T4R}, v{T16}")
        else: A("s_nop 1")
        z16(VX)
        if kxe: A(f"s_add_u32 s{S_T0}, s{S_KV}, {w*1024 + (16384 if kvstep else 0)}\ns_mov_b32 m0, {L_KX + w*2048}")
    else:
        mz(T1); mz(T1+1); mz(T1+2); A(f"v_mov_b32 v{XW2}, {L_ZERO}")
        for r in range(VACC, VACC+16, 2): A(f"v_mov_b64 {v(r,2)}, 0")
    if dL and w < 3: lg.op(f"ds_read_b32 v{O1}, v{XW2} offset:16", "lt")
    A(f"s_cmp_eq_u32 s{S_STEP}, 63\ns_cbranch_scc1 {L_exit}")
    lg.all()
    if dL and w < 3: A(f"v_readfirstlane_b32 s{S_BV}, v{O1}")
    A("s_barrier")
    mark("b2")
    lg.op(f"ds_read_b128 {v(ACC,4)}, v{T16} offset:{L_O - w*1024}", ("o", 0))
    if keep: z16(VX+4)
    lg.op(f"ds_read_b128 {v(ACC+4,4)}, v{T16} offset:{L_O - w*1024 + 1024}", ("o", 1))
    if keep: A("s_nop 2"); z16(VX+4)
    accs = [MR, MR+4, MR+8, VACC, VACC+4, VX, VX+4, MR, MR+8]
    LZ = ACC + 8
    def tepi(P):
        a = accs[P]
        dst = a if (P & 1) or P == 0 else accs[P-1] + 1
        r = [f"v_add_f32 v{a}, v{a}, v{a+1}", f"v_add_f32 v{a+2}, v{a+2}, v{a+3}", f"v_cvt_pk_bf16_f32 v{dst}, v{a}, v{a+2}"]
        if P == 0: r += [f"buffer_store_dword v{a}, v{PS1}, {ws(s(S_PB))}", "Z7"]
        elif not P & 1: r += [f"buffer_store_dwordx2 {v(accs[P-1],2)}, v{PS}, {ws(s(so[(P-1) >> 1]))}"]
        if P == 2: r += ["Z8"]
        return r
    jl = [f"buffer_load_dwordx4 {v(LZ+4*i,4)}, v{T16}, {ws(s(S_A))} offset:{i*1024} sc1" for i in range(4)]
    ZA = XW2
    vq = []
    def vq1(n):
        for _ in range(n):
            if vq: A(vq.pop(0))
            if vq and vq[0][0] == "Z":
                P = int(vq.pop(0)[1]); dsq.append((f"ds_read_b128 {v(accs[P],4)}, v{ZA}", ("z", P)))
    order = [(0, 0), (1, 0), (0, 1), (1, 1)] + [(P, h) for P in range(2, 9) for h in range(2)]
    done = {}
    for hs, (P, half) in enumerate(order):
        T = TORD[P]
        if P == 0: need(("o", half))
        if half == 0: mark(f"t{P}")
        A(smf(accs[P], ACC + 4*half, ("o", T, half), WB[P % 3]))
        if half == 1:
            done[hs + lag - 1] = P
            if P + 3 < 8: dsq.extend([(x, ("wo", P + 3)) for x in wread(WB[P % 3], 9 + P + 3)])
        ds1()
        if hs + 1 < len(order):
            Pn, hn = order[hs + 1]
            if hn == 1 and Pn < 8: need(("wo", Pn))
            if hn == 0 and Pn >= 7: need(("z", Pn))
        if kxe and hs in kxp:
            A(kxd(T4R)[kxp.index(hs)])
            if hs != kxp[1]: vm.append("kx")
        if hs in done: vq += tepi(done.pop(hs))
        vq1(vper if vper else (1 + (hs & 1)))
    for hs in sorted(done): vq += tepi(done[hs])
    vq1(len(vq))
    mark("op")
    book = f"""s_add_u32 s{S_STEP}, s{S_STEP}, 1
    s_mov_b32 s{S_T0}, s{S_PB}
    s_mov_b32 s{S_PB}, s{S_PO}
    s_mov_b32 s{S_PO}, s{S_T0}
    s_and_b32 s{S_T0}, s{S_STEP}, 3
    s_lshl_b32 s{S_T0}, s{S_T0}, 14
    s_add_u32 s{S_GA}, s{S_T0}, {MEMI}
    s_add_u32 s{S_ST}, s{S_T0}, s{S_JOBST}
    s_xor_b32 s{S_T0}, s{S_T0}, {2 << 14}
    s_add_u32 s{S_PF}, s{S_T0}, s{S_JOBST}
    s_add_u32 s{S_KV}, s{S_KV}, {16384 if kvstep else 0}
    s_add_u32 s{S_KVM}, s{S_KVM}, {32*4096}
    s_add_u32 s{S_G1}, s{S_GA}, 4096
    s_add_u32 s{S_G2}, s{S_GA}, 8192
    s_mov_b32 s{S_SPIN}, 0""".split("\n")
    SEL, D = VACC+4, VACC
    CK = MR + 4
    L_nojob, L_red, L_red2 = f"L_nojob{w}", f"L_red{w}", f"L_redb{w}"
    selgen = [f"v_mov_b32 v{D}, 0x3f80", f"v_cndmask_b32 v{D}, v{D}, 1.0, s[{S_MK+8}:{S_MK+9}]"]
    selgen += [f"v_cndmask_b32 v{SEL+r}, 0, v{D}, s[{S_MK+2*r}:{S_MK+2*r+1}]" for r in range(4)]
    if w == 3:
        for x in book + pe: A(x)
        if prog:
            A("s_memtime s[62:63]\ns_waitcnt lgkmcnt(0)")
            for i, st_ in enumerate(prog): A(f"s_cmp_eq_u32 s{S_STEP}, {st_}\ns_cselect_b32 s{88+2*i}, s62, s{88+2*i}")
        if flags:
            A(f"""s_add_u32 s{S_T0}, s{S_STEP}, 1
            s_lshr_b32 s{S_T0}, s{S_T0}, 3
            s_min_u32 s{S_T0}, s{S_T0}, 7
            s_waitcnt vmcnt({vmwait('fl') + 5})
            L_kvw:
            v_readlane_b32 s{S_T1}, v{MS}, s{S_T0}
            s_cmp_eq_u32 s{S_T1}, 1
            s_cbranch_scc0 L_kvp""")
    else:
        if w == 2: A(f"s_cmp_eq_u32 s{S_HASJOB}, 0\ns_cbranch_scc1 {L_nojob}")
        fill = book + pe + selgen
        if bell: fill.append(f"v_mov_b32 v{MR+5}, s{S_STEP}")
        dd = d1 if w == 1 or d0 is None else d0
        if w == 2 and d2 is not None: dd = d2
        if dL is None:
            k = min(dd, len(fill))
            for x in fill[:k]: A(x)
            delay(A, dd - k)
        else:
            k = min(dd, len(book) if w != 1 else len(fill)) if fb else 0
            for x in fill[:k]: A(x)
            dd -= k
            if aw[w] is not None: A(f"s_waitcnt vmcnt({aw[w]})")
            if dL: A(f"s_cmp_eq_u32 s{S_BV}, s{S_STEP}\ns_cbranch_scc1 L_lt{w}")
            delay(A, dL)
            A.label(f"L_lt{w}")
            delay(A, dd - dL)
        mark("jl")
        if jd: nA = 2 if w in jw else 1
        for x in jl: A(x)
        if nA > 1:
            k2 = min(k + jd, len(fill))
            for x in fill[k:k2]: A(x)
            delay(A, jd - (k2 - k)); k = k2
            for x in jl: A(x)
        for x in fill[k:]: A(x)
        def reduce(extra):
            for i in range(4):
                a = LZ + 4*i
                A(f"s_waitcnt vmcnt({extra+3-i})")
                ck = f"v_max3_u32 v{CK}, v{a}, v{a+1}, v{a+2}\nv_max_u32 v{CK}, v{CK}, v{a+3}" if i == 0 else \
                     f"v_max3_u32 v{CK}, v{CK}, v{a}, v{a+1}\nv_max3_u32 v{CK}, v{CK}, v{a+2}, v{a+3}"
                if extra: A(ck)
                A(mf(D, a, SEL, "0" if i == 0 else v(D,4)))
                if not extra: A(ck)
            A(cmp_sent(CK))
        reduce(4*(nA-1))
        mark("rd")
        if not nocomm: A(f"s_cbranch_vccnz {L_red}")
        A.label(L_red2)
        if bell: A(f"s_mov_b64 exec, {(1 << NREP) - 1}\nbuffer_store_byte v{MR+5}, v{WRM}, {ws(s(S_BL))}\ns_mov_b64 exec, -1")
        A(f"""v_permlane32_swap_b32 v{D}, v{D+2}
        v_permlane32_swap_b32 v{D+1}, v{D+3}
        v_pk_add_f32 {v(D,2)}, {v(D,2)}, {v(D+2,2)}
        v_cvt_pk_bf16_f32 v{D}, v{D}, v{D+1}
        buffer_store_dword v{D}, v{MS}, {ws(s(S_ST))}""")
    mark("st")
    if bell:
        if w < 3:
            for x in pl: A(x)
        else:
            PR = MR + 10
            A(f"s_mul_i32 s{S_BV}, s{S_STEP}, 0x01010101\nv_mov_b32 v{PR}, 0\ns_mov_b64 exec, 0x3ffff")
            delay(A, bell)
            A.label("L_bell")
            A(f"buffer_load_dword v{PR}, v{T4R}, {ws(s(S_BL))} sc1\nv_cmp_ne_u32 vcc, s{S_BV}, v{PR}")
            cnt(S_CNT1)
            A(f"s_add_u32 s{S_SPIN}, s{S_SPIN}, 1\ns_cbranch_vccz L_rung")
            delay(A, bgap)
            A(f"s_cmp_lt_u32 s{S_SPIN}, {spin*8}\ns_cbranch_scc1 L_bell\ns_branch {L_fail}")
            A.label("L_rung")
            A(f"s_mov_b64 exec, -1\ns_mov_b32 s{S_SPIN}, 0")
        A("s_barrier")
        delay(A, dA)
    else:
        if w < 3:
            if dR is not None:
                A(f"s_cmp_lg_u32 s{S_SPIN}, 0\ns_cbranch_scc1 L_nom{w}")
                delay(A, dA - dR)
                A.label(f"L_nom{w}")
                delay(A, dR)
            elif fa:
                for x in sc[:dA]: A(x)
                delay(A, dA - len(sc))
            else: delay(A, dA)
        A("s_barrier")
    A(f"s_branch L_gat{w}")
    if w < 3:
        A.label(L_red)
        for r in range(nA - 1, 0, -1):
            reduce(4*(r-1))
            A(f"s_cbranch_vccz {L_red2}")
        A.label(L_red + "b")
        cnt(S_CNT3)
        for x in jl: A(x)
        A(spin_chk)
        reduce(0)
        A(f"s_cbranch_vccz {L_red2}\ns_branch {L_red}b")
    if gv == 11:
        A.label(f"L_g3r{w}")
        if lazy:
            for r in range(nd - 1, -1, -1):
                A(f"s_waitcnt vmcnt({r})")
                for x in k3: A(x)
                A(f"s_cbranch_vccz L_g3{w}")
            A.label(f"L_g3s{w}")
            A(gl2[1]); cnt(S_CNT1); A(spin_chk)
            for x in dupl:
                delay(A, dup - 6); A(x)
            A(f"s_waitcnt vmcnt({nd})")
            for x in k3: A(x)
            A(f"s_cbranch_vccz L_g3{w}\ns_branch L_g3r{w}")
        A(gl2[1])
        cnt(S_CNT1)
        A(f"s_add_u32 s{S_SPIN}, s{S_SPIN}, 1\ns_waitcnt vmcnt({nd})")
        for x in k3: A(x)
        A(f"s_cmp_gt_u32 s{S_SPIN}, {spin}\ns_cbranch_vccz L_g3{w}\ns_cbranch_scc0 L_g3r{w}\ns_branch {L_fail}")
    if two:
        A.label(f"L_g2r{w}")
        cnt(S_CNT1)
        for x in gl2: A(x)
        A(spin_chk)
        for x in zacc: A(x)
        A("s_waitcnt vmcnt(0)")
        for x in k2: A(x)
        A(f"s_cbranch_vccnz L_g2r{w}\n{w2}")
        for x in redo: A(x)
        A(f"s_waitcnt lgkmcnt(0)\ns_branch L_g2{w}")
    if w == 3 and flags:
        A("L_kvp:"); cnt(S_CNT3)
        A(f"buffer_load_dword v{MS}, v{T4R}, {ws(s(S_BP))} sc1\n{spin_chk}\ns_waitcnt vmcnt(0)\ns_branch L_kvw")
    if w == 2:
        A.label(L_nojob)
        for x in book + pe: A(x)
        A("s_barrier")
        A(f"s_branch L_gat{w}")

def emit_loops(A, L_exit, L_fail, **kw):
    for w in range(4): A(f"s_cmp_eq_u32 s{S_WV}, {w}\ns_cbranch_scc1 L_ent{w}")
    A(f"s_branch {L_fail}")
    n = len(A.l)
    hoist = kw.pop("hoist", True)
    for w in range(4): emit_loop(A, w, L_exit, L_fail, **kw)
    if hoist: A.l[n:] = hoist_waits(A.l[n:])
```

```python
import sys, os
sys.path.insert(0, os.path.dirname(os.path.abspath(__file__)))
from common import *
import gemm as G, attn as AT, oproj as OP, team as T

NAME = "concat_heads__compressed_kv_cla__memory_aug_recurrent_mem_tr__prompt"
TEAM = {'gv': 11, 'dL': 0, 'nv1': 5, 'ep': 3, 'd2': 0, 'ndup': 1, 'dupw': 0, 'vper': 3, 'lag': 3, 'vgap': 1, 'd1': 0, 'd0': 0, 'a1': 0, 'a0': 2, 'dA': 9, 'fa': True, 'gs': 0, 'dup': 24, 'cpos': 0, 'bpos': 3, 'jd': 19, 'jd0': 30, 'kxb': True, 'qe': 2, 'rsp': 1, 'kxe': True, 'g8f': True}
S_I = 60
S_OUT = 61

def set_flag(A, s_off, val):
    L = A.uniq("L_sf")
    A(f"s_waitcnt vmcnt(0)\ns_barrier\ns_cmp_lg_u32 s{S_WV}, 0\ns_cbranch_scc1 {L}")
    A(f"v_mov_b32 v20, 0\nv_mov_b32 v21, {val}\ns_mov_b64 exec, 1\nbuffer_store_dword v21, v20, {buf(S_WS, s(s_off))} sc1\ns_mov_b64 exec, -1")
    A.label(L)

def wait_init(A):
    A(f"v_mov_b32 v20, {D_INIT}")
    poll(A, 20, 21, 0, "v_cmp_ne_u32 vcc, 8, v21", "L_end", srd=S_DBG)

def stamp(A, i, on):
    if on: A(f"s_memrealtime s[{64+2*i}:{65+2*i}]")

def gen(stamps=False, roles="tpba", team_kw=None, marks=None, xmap=(4, 2, 1, 0, 5, 3, 6, 7), thr=20.0, bfl="sc1", s0=16, nl=22, border='yzbqc', gopt=None, oopt=None, ldfl='', cpf=True, lorder='oqkv', burst=None, xpf=True, cpf2=True, touch=True, bearly=True, na=(12, 12, 12, 10, 9, 9)):
    OP.OPT.update({'rot': True}); OP.OPT.update(oopt or {})
    G.OPT.clear(); G.OPT.update({'st': 'sc1', 'drop': False, 'pf': True, 'pf0': 6, 'npf': 10, 'no': [], 'nobar': False}); G.OPT.update(gopt or {})
    A = Asm()
    PROF['on'] = marks; PROF['st'] = stamps
    S_ROLE = S_XCC
    A(f"""s_cmp_ge_u32 s2, 256
    s_cbranch_scc1 L_end
    s_getreg_b32 s{S_XCC}, hwreg(HW_REG_XCC_ID)
    s_and_b32 s{S_XCC}, s{S_XCC}, 7
    s_load_dwordx2 s[4:5], s[0:1], {WS*8}
    s_load_dwordx2 s[6:7], s[0:1], {DBG*8}
    v_lshrrev_b32 v1, 6, v0
    v_readfirstlane_b32 s{S_WV}, v1""")
    if stamps:
        for r in range(64, 102): A(f"s_mov_b32 s{r}, 0")
    A("s_waitcnt lgkmcnt(0)")
    stamp(A, 0, stamps)
    A.srd(S_WS, 4, WS_BYTES)
    A.srd(S_DBG, 6, 256)
    if cpf:
        A(f"""s_getpc_b64 s[4:5]
        L_pc:
        s_mov_b32 s{S_X}, s4
        s_and_b32 s{S_X+1}, s5, 0xffff
        s_mov_b32 s{S_X+2}, L_end-L_pc
        s_mov_b32 s{S_X+3}, 0x20000
        s_lshr_b32 s{S_T1}, s2, 3
        s_lshl_b32 s{S_T1}, s{S_T1}, 7
        v_lshlrev_b32 v3, 12, v0
        buffer_load_dword v3, v3, {buf(S_X, s(S_T1))}""")
    A(f"""s_lshl_b32 s{S_T0}, s{S_XCC}, 2
    s_cmp_eq_u32 s{S_WV}, 0
    s_cbranch_scc0 L_tk
    s_mov_b64 exec, 1
    v_mov_b32 v1, 1
    v_mov_b32 v2, 0
    buffer_atomic_add v1, v2, {buf(S_DBG, s(S_T0))} sc0
    s_waitcnt vmcnt(0)
    ds_write_b32 v2, v1
    s_waitcnt lgkmcnt(0)
    s_mov_b64 exec, -1
    L_tk:
    s_waitcnt vmcnt(0)
    s_barrier
    v_mov_b32 v2, 0
    ds_read_b32 v1, v2
    s_lshr_b32 s{S_ROLE}, {sum(r << 4*i for i, r in enumerate(xmap)):#x}, s{S_T0}
    s_and_b32 s{S_ROLE}, s{S_ROLE}, 7
    s_waitcnt lgkmcnt(0)
    v_readfirstlane_b32 s{S_RANK}, v1
    s_barrier
    s_cmp_ge_u32 s{S_RANK}, 32
    s_cbranch_scc1 L_end
    s_cmp_eq_u32 s{S_ROLE}, 0
    s_cbranch_scc1 {"L_team" if "t" in roles else "L_end"}
    s_cmp_eq_u32 s{S_ROLE}, 1
    s_cbranch_scc0 L_np
    s_cmp_lt_u32 s{S_RANK}, 24
    s_cbranch_scc1 L_np
    v_lshlrev_b32 v1, 4, v0
    v_mov_b64 v[4:5], 0
    v_mov_b64 v[6:7], 0
    s_sub_u32 s{S_T0}, s{S_RANK}, 24
    s_lshl_b32 s{S_T0}, s{S_T0}, 12
    s_add_u32 s{S_T0}, s{S_T0}, {FLAGS}
    buffer_store_dwordx4 v[4:7], v1, {buf(S_WS, s(S_T0))} sc1
    s_waitcnt vmcnt(0)
    s_barrier
    s_cmp_lg_u32 s{S_WV}, 0
    s_cbranch_scc1 L_np
    v_mov_b32 v1, 1
    v_mov_b32 v2, {D_INIT}
    s_mov_b64 exec, 1
    buffer_atomic_add v1, v2, {buf(S_DBG, 0)}
    s_mov_b64 exec, -1
    L_np:""")
    if "b" not in roles: A(f"s_cmp_lt_u32 s{S_ROLE}, 4\ns_cbranch_scc1 L_end")
    if "a" not in roles: A(f"s_cmp_ge_u32 s{S_ROLE}, 4\ns_cbranch_scc1 L_end")
    PX, PQX, PW, PWQ = 52, 54, 6, 18
    S_ISB, S_TY, S_RB, S_HD = 61, 2, S_T2, S_T3
    A(f"s_cmp_lt_u32 s{S_ROLE}, 4\ns_cselect_b32 s{S_ISB}, 1, 0\ns_cbranch_scc1 L_pb")
    def ptrs(x, qx, wk, wv, wq, nt):
        A(f"""s_load_dwordx2 s[{PX}:{PX+1}], s[0:1], {x*8}
        s_load_dwordx2 s[{PQX}:{PQX+1}], s[0:1], {qx*8}
        s_load_dwordx2 s[{PW}:{PW+1}], s[0:1], {wk*8}
        s_load_dwordx2 s[4:5], s[0:1], {wv*8}
        s_load_dwordx2 s[{PWQ}:{PWQ+1}], s[0:1], {wq*8}
        s_mov_b32 s{G.S_NT}, {nt}""")
    S_TAB, S_HKV, S_HQ = 88, 89, 90
    ptrs(A_CKV, A_X, A_WUK, A_WUV, A_WQ, 3)
    A(f"""s_sub_u32 s{S_T0}, s{S_ROLE}, 4
    s_lshl_b32 s{S_T0}, s{S_T0}, 5
    s_add_u32 s{S_T0}, s{S_T0}, s{S_RANK}
    s_lshr_b32 s{S_HKV}, s{S_T0}, 2
    s_lshr_b32 s{S_HQ}, s{S_T0}, 3
    s_and_b32 s{S_T0}, s{S_RANK}, 3
    s_mul_i32 s{S_TAB}, s{S_T0}, 0x11
    s_and_b32 s{S_T0}, s{S_RANK}, 7
    s_lshl_b32 s{S_T0}, s{S_T0}, 8
    s_add_u32 s{S_TAB}, s{S_TAB}, s{S_T0}
    s_add_u32 s{S_TAB}, s{S_TAB}, 0x840
    s_branch L_pg
    L_pb:""")
    ptrs(B_X, B_X, B_WK, B_WV, B_WQ, 6)
    tabs = []
    for r in range(4):
        l = [{'x': 1 if r % 2 == 0 else 8 + (r >> 1), 'a': 2 + (r & 1), 'y': 1 + (r & 1), 'z': 3 if r % 2 == 0 else 8 + (r >> 1),
              'q': 10 + r, 'b': 4 + (r & 1), 'c': 6 + (r & 1)}[x] for x in border] + [14 + (r & 1)]
        tabs.append(sum(x << 4*i for i, x in enumerate(l)))
    A(f"""s_sub_u32 s{S_T0}, s{S_ROLE}, 2
    s_lshl_b32 s{S_T0}, s{S_T0}, 5
    s_add_u32 s{S_T0}, s{S_T0}, s{S_RANK}
    s_lshr_b32 s{S_HKV}, s{S_T0}, 1
    s_lshr_b32 s{S_HQ}, s{S_T0}, 2
    s_mov_b32 s{S_TAB}, {tabs[0]:#x}
    s_mov_b32 s{S_T1}, {tabs[2]:#x}
    s_bitcmp1_b32 s{S_RANK}, 0
    s_cselect_b32 s{S_TAB}, {tabs[1]:#x}, s{S_TAB}
    s_cselect_b32 s{S_T1}, {tabs[3]:#x}, s{S_T1}
    s_bitcmp1_b32 s{S_RANK}, 1
    s_cselect_b32 s{S_TAB}, s{S_T1}, s{S_TAB}
    s_cselect_b32 s{G.S_NT}, 5, 6
    s_cmp_eq_u32 s{S_ROLE}, 1
    s_cselect_b32 s{G.S_NT}, 1, s{G.S_NT}
    s_cselect_b32 s{S_TAB}, 0, s{S_TAB}
    s_cselect_b32 s{S_HKV}, s{S_RANK}, s{S_HKV}""")
    A(f"L_pg:\ns_waitcnt lgkmcnt(0)\ns_cmp_ge_u32 s{S_WV}, 2\ns_cselect_b64 s[{PW}:{PW+1}], s[4:5], s[{PW}:{PW+1}]")
    if xpf:
        A(f"""s_cmp_eq_u32 s{S_ISB}, 0
        s_cselect_b32 s{S_T0}, 4, 1
        s_mov_b32 s{S_X+2}, {768*1152}
        s_cselect_b32 s{S_X+2}, {1 << 20}, s{S_X+2}
        s_sub_u32 s{S_T0}, s{S_ROLE}, s{S_T0}
        s_lshl_b32 s{S_T0}, s{S_T0}, 5
        s_add_u32 s{S_T0}, s{S_T0}, s{S_RANK}
        s_lshl_b32 s{S_T0}, s{S_T0}, 13
        s_mov_b32 s{S_X}, s{PX}
        s_and_b32 s{S_X+1}, s{PX+1}, 0xffff
        s_mov_b32 s{S_X+3}, 0x20000
        v_lshlrev_b32 v{G.G_JK}, 5, v{TID}
        buffer_load_dword v{G.G_JK}, v{G.G_JK}, {buf(S_X, s(S_T0))}""")
    if G.OPT['pf']:
        SL = G.OPT['npf'] * 8192
        A(f"s_sub_u32 s{S_T0}, s{S_ROLE}, 2\ns_lshl_b32 s{S_T0}, s{S_T0}, 5\ns_add_u32 s{S_T0}, s{S_T0}, s{S_RANK}")
        first = 0
        items = [(A_CKV, 1 << 20, 2048*1024), (B_X, 96*8192, 2048*1152), (A_X, 0, 2048*1152), (A_WQ, 0, 576*8192), (A_WO, 0, 576*8192)]
        for k, (slot, off, size) in enumerate(items):
            n = -(-(size - off) // SL)
            L = A.uniq("L_pf")
            if k < len(items) - 1: A(f"s_cmp_ge_u32 s{S_T0}, {first + n}\ns_cbranch_scc1 {L}")
            A(f"s_load_dwordx2 s[4:5], s[0:1], {slot*8}\ns_sub_u32 s{G.S_PFO}, s{S_T0}, {first}\ns_mul_i32 s{G.S_PFO}, s{G.S_PFO}, {SL}\ns_add_u32 s{G.S_PFO}, s{G.S_PFO}, {off}")
            A(f"s_mov_b32 s{G.S_PS+2}, {size}\ns_branch L_pfd")
            A.label(L); first += n
        assert first <= 192
        A(f"""L_pfd:
        s_waitcnt lgkmcnt(0)
        s_mov_b32 s{G.S_PS}, s4
        s_and_b32 s{G.S_PS+1}, s5, 0xffff
        s_mov_b32 s{G.S_PS+3}, 0x20000
        s_cmp_eq_u32 s{S_ROLE}, 1
        s_cselect_b32 s{G.S_PFO}, {OOB}, s{G.S_PFO}
        v_lshlrev_b32 v{G.G_PF}, 5, v{TID}""")
    if burst:
        L = A.uniq("L_bu")
        A(f"s_and_b32 s{S_T0}, s{S_ROLE}, 6\ns_cmp_eq_u32 s{S_T0}, 2\ns_cbranch_scc0 {L}")
        A(f"s_and_b32 s{S_T0}, s{S_ROLE}, 1\ns_lshl_b32 s{S_T0}, s{S_T0}, 5\ns_add_u32 s{S_T0}, s{S_T0}, s{S_RANK}\ns_lshl_b32 s{S_T0}, s{S_T0}, 13")
        A(f"v_and_b32 v1, 63, v{TID}\nv_lshlrev_b32 v1, 7, v1")
        A(f"s_lshl_b32 s{S_T1}, s{S_WV}, 3\ns_lshr_b32 s{S_T1}, {sum(x*8 << 8*i for i, x in enumerate(burst)):#x}, s{S_T1}\ns_and_b32 s{S_T1}, s{S_T1}, 0xff")
        A(f"s_load_dwordx2 s[4:5], s[0:1], s{S_T1}\ns_waitcnt lgkmcnt(0)")
        A.srd(S_X, 4, 576*8192)
        for i in range(9): A(f"buffer_load_dword v2, v1, {buf(S_X, s(S_T0))}\ns_add_u32 s{S_T0}, s{S_T0}, {64*8192}")
        A("s_waitcnt vmcnt(0)")
        A.label(L)
    def atoms(text):
        l = []
        for x in (y.strip() for y in text.split("\n")):
            if x.startswith("s_cselect"): l[-1].append(x)
            else: l.append([x])
        return l
    NX = G.S_NX
    par_a = atoms(f"""s_lshl_b32 s{S_T0}, s{NX}, 2
        s_lshr_b32 s{S_RB}, s{S_TAB}, s{S_T0}
        s_bfe_u32 s{S_TY}, s{S_RB}, 0x10003
        s_and_b32 s{S_RB}, s{S_RB}, 7
        s_or_b32 s{G.S_NNB}, s{S_TY}, s{S_ISB}
        s_lshr_b32 s{S_T0}, s{S_WV}, 1
        s_cmp_eq_u32 s{S_TY}, 0
        s_cselect_b32 s{G.S_NSW}, s{S_T0}, 0
        s_cselect_b32 s{S_HD}, s{S_HKV}, s{S_HQ}
        s_sub_u32 s{S_T1}, s{S_T0}, s{G.S_NSW}
        s_and_b32 s{G.S_NV}, s{G.S_NSW}, s{S_ISB}
        s_lshl_b32 s{G.S_NV}, s{G.S_NV}, 1
        s_or_b32 s{G.S_NV}, s{G.S_NV}, s{G.S_NSW}
        s_lshl_b32 s{G.S_COL}, s{S_HD}, s{S_TY}
        s_add_u32 s{G.S_COL}, s{G.S_COL}, s{S_T1}
        s_lshl_b32 s{G.S_COL}, s{G.S_COL}, 8
        s_lshl_b32 s{G.S_XST}, s{G.S_NNB}, 7
        s_add_u32 s{G.S_XST}, s{G.S_XST}, 1024
        s_mul_i32 s{G.S_NXO}, s{S_RB}, s{G.S_XST}
        s_lshl_b32 s{G.S_NXO}, s{G.S_NXO}, 8
        s_lshl_b32 s{G.S_NO}, s{S_HD}, 3
        s_add_u32 s{G.S_NO}, s{G.S_NO}, s{S_RB}
        s_lshl_b32 s{G.S_NO}, s{G.S_NO}, 1
        s_and_b32 s{S_T1}, s{S_WV}, 1
        s_add_u32 s{G.S_NO}, s{G.S_NO}, s{S_T1}
        s_lshl_b32 s{G.S_NO}, s{G.S_NO}, 3
        s_add_u32 s{G.S_NO}, s{G.S_NO}, s{S_T0}
        s_lshl_b32 s{G.S_NO}, s{G.S_NO}, 13
        s_lshl_b32 s{G.S_NF}, s{S_HD}, 5
        s_add_u32 s{G.S_NF}, s{G.S_NF}, s{S_RB}
        s_lshl_b32 s{G.S_NF}, s{G.S_NF}, 2
        s_lshl_b32 s{S_T0}, s{S_TY}, 1
        s_add_u32 s{S_T0}, s{S_T0}, s{S_ISB}
        s_lshl_b32 s{S_T0}, s{S_T0}, 2
        s_lshr_b32 s{S_T1}, {(KVA >> 24) | (KVB >> 24) << 4 | (QA_ >> 24) << 8 | (QB_ >> 24) << 12:#x}, s{S_T0}
        s_and_b32 s{S_T1}, s{S_T1}, 15
        s_lshl_b32 s{S_T1}, s{S_T1}, 24
        s_add_u32 s{G.S_NO}, s{G.S_NO}, s{S_T1}
        s_lshr_b32 s{S_T1}, {sum(((f - FLAGS) >> 12) << 4*i for i, f in enumerate((F_AKV, F_BKV, F_AQ, F_BQ))):#x}, s{S_T0}
        s_and_b32 s{S_T1}, s{S_T1}, 15
        s_lshl_b32 s{S_T1}, s{S_T1}, 12
        s_add_u32 s{G.S_NF}, s{G.S_NF}, s{S_T1}
        s_add_u32 s{G.S_NF}, s{G.S_NF}, {FLAGS}
        s_cmp_lt_u32 s{NX}, s{G.S_NT}
        s_cselect_b32 s{G.S_NXO}, s{G.S_NXO}, {OOB}
        s_cselect_b32 s{G.S_COL}, s{G.S_COL}, {OOB}""")
    par_x = atoms(f"""s_cmp_eq_u32 s{S_TY}, 0
        s_cselect_b64 s[4:5], s[{PX}:{PX+1}], s[{PQX}:{PQX+1}]
        s_mov_b32 s{S_X}, s4
        s_and_b32 s{S_X+1}, s5, 0xffff
        s_lshl_b32 s{S_X+2}, s{G.S_XST}, 11
        s_mov_b32 s{S_X+3}, 0x20000
        s_mov_b32 s{G.S_XO}, s{G.S_NXO}""") + [[x] for x in G.x_params(G.S_XST)]
    par_w = atoms(f"""s_cmp_eq_u32 s{S_TY}, 0
        s_cselect_b64 s[4:5], s[{PW}:{PW+1}], s[{PWQ}:{PWQ+1}]
        s_mov_b32 s{S_W}, s4
        s_and_b32 s{S_W+1}, s5, 0xffff
        s_lshl_b32 s{S_W+2}, s{G.S_XST}, 12
        s_mov_b32 s{S_W+3}, 0x20000
        s_mov_b32 s{G.S_WO}, s{G.S_COL}""")
    A(f"s_cmp_eq_u32 s{S_ISB}, 0\ns_cselect_b32 s{G.S_SC}, {f32bits(SCALE_LOG2E):#x}, 1.0")
    G.run(A, "L_g", par_a, par_x, par_w, wait_init, S_ISB)
    stamp(A, 1, stamps)
    A(f"s_cmp_eq_u32 s{S_ROLE}, 1\ns_cbranch_scc1 L_part\ns_cmp_eq_u32 s{S_ISB}, 1\ns_cbranch_scc1 L_bdie")
    H, C4 = AT.S_H, 62
    A(f"""s_sub_u32 s{S_T0}, s{S_ROLE}, 4
    s_lshl_b32 s{S_T0}, s{S_T0}, 3
    s_lshr_b32 s{H}, s{S_RANK}, 2
    s_add_u32 s{H}, s{H}, s{S_T0}
    s_and_b32 s{C4}, s{S_RANK}, 3""")
    AT.consts(A, thr)
    A(f"""v_and_b32 v20, 7, v{TID}
    v_lshlrev_b32 v20, 2, v20
    v_bfe_u32 v21, v{TID}, 3, 1
    s_lshl_b32 s{S_T1}, s{H}, 7
    s_add_u32 s{S_T1}, s{S_T1}, {F_AKV}
    s_lshr_b32 s{S_T0}, s{H}, 1
    s_lshl_b32 s{S_T0}, s{S_T0}, 7
    s_add_u32 s{S_T0}, s{S_T0}, {F_AQ}
    s_sub_u32 s{S_T0}, s{S_T0}, s{S_T1}
    v_mad_u32_u24 v20, v21, s{S_T0}, v20""")
    poll(A, 20, 21, s(S_T1), "v_cmp_ne_u32 vcc, 1, v21", "L_end")
    A(f"s_sub_u32 s{AT.S_J}, 7, s{C4}\ns_mov_b32 s{S_I}, 0")
    A.label("L_aat")
    AT.emit_A(A, "L_at", "L_end")
    prof(A, "at4")
    A(f"s_lshl_b32 s{S_OUT}, s{AT.S_J}, 5\ns_add_u32 s{S_OUT}, s{S_OUT}, s{H}\ns_lshl_b32 s{S_OUT}, s{S_OUT}, 2\ns_add_u32 s{S_OUT}, s{S_OUT}, {F_CTXA}")
    set_flag(A, S_OUT, 1)
    if marks and "one" in marks: A("s_branch L_done")
    A(f"s_mov_b32 s{AT.S_J}, s{C4}\ns_add_u32 s{S_I}, s{S_I}, 1\ns_cmp_lt_u32 s{S_I}, 2\ns_cbranch_scc1 L_aat")
    stamp(A, 2, stamps)
    A(f"s_cmp_ge_u32 s{S_RANK}, 27\ns_cbranch_scc1 L_done")
    srd_arg(A, S_W, A_WO, 4096*576*2)
    assert sum(na) == 64
    mk, left = [0]*6, list(na)
    for i in range(64):
        g = max(range(6), key=lambda x: (left[x], -x)); left[g] -= 1; mk[g] |= 1 << i
    A(f"""s_mul_i32 s{S_T0}, s{S_RANK}, 57
    s_lshr_b32 s{S_T0}, s{S_T0}, 9
    s_mul_i32 s{S_T1}, s{S_T0}, 9
    s_sub_u32 s{OP.S_SL}, s{S_RANK}, s{S_T1}
    s_sub_u32 s{S_T1}, s{S_ROLE}, 4
    s_mul_i32 s{S_T1}, s{S_T1}, 3
    s_add_u32 s{S_T1}, s{S_T1}, s{S_T0}
    s_and_b32 s{OP.S_UA}, s{S_T1}, 1
    s_add_u32 s{OP.S_UA}, s{OP.S_UA}, 64
    s_lshr_b32 s{S_T1}, s{S_T1}, 1
    {chr(10).join(f"s_cmp_eq_u32 s{S_T1}, {g}{chr(10)}s_cselect_b32 s{OP.S_MK}, {mk[g] & 0xffffffff:#x}, s{OP.S_MK}{chr(10)}s_cselect_b32 s{OP.S_MK+1}, {mk[g] >> 32:#x}, s{OP.S_MK+1}" for g in range(6))}
    s_mov_b32 s{OP.S_CTX}, {CTXA}
    s_mov_b32 s{OP.S_FLG}, {F_CTXA}
    s_mov_b32 s{OP.S_FSH}, 4
    s_mov_b32 s{OP.S_COL}, 0
    s_branch L_op""")
    mP = sum(1 << i for i in range(s0))
    rest = list(range(s0, 64))
    late = rest[::-1][0:2*nl:2] if nl else []
    mL = sum(1 << i for i in late); mE = sum(1 << i for i in rest) & ~mL
    S_ID, S_PAR = S_T2, S_T3
    setm = lambda m: f"s_mov_b32 s4, {m & 0xffffffff:#x}\ns_mov_b32 s5, {m >> 32:#x}"
    A.label("L_bdie")
    A(f"""s_and_b32 s{S_PAR}, s{S_ROLE}, 1
    s_lshr_b32 s{S_ID}, s{S_RANK}, 2
    s_lshl_b32 s{S_ID}, s{S_ID}, 1
    s_and_b32 s{S_T0}, s{S_RANK}, 1
    s_add_u32 s{S_ID}, s{S_ID}, s{S_T0}
    {setm(mE)}
    s_bitcmp1_b32 s{S_RANK}, 1
    s_cbranch_scc1 L_crew
    {setm(mL)}
    s_branch L_crew""")
    A.label("L_part")
    A(f"s_and_b32 s{S_PAR}, s{S_RANK}, 1\ns_lshr_b32 s{S_ID}, s{S_RANK}, 1\n{setm(mP)}")
    A.label("L_crew")
    if "p" not in roles: A("s_branch L_done")
    A(f"""s_cmp_eq_u64 s[4:5], 0
    s_cbranch_scc1 L_done
    s_cmp_lt_u32 s{S_ID}, 9
    s_cbranch_scc1 L_bo
    s_mov_b64 s[{AT.S_SM}:{AT.S_SM+1}], s[4:5]
    s_sub_u32 s{AT.S_J}, s{S_ID}, 9
    s_lshl_b32 s{AT.S_J}, s{AT.S_J}, 1
    s_add_u32 s{AT.S_J}, s{AT.S_J}, s{S_PAR}
    s_mul_i32 s{S_T0}, s{S_WV}, 14
    s_add_u32 s{AT.S_J}, s{AT.S_J}, s{S_T0}""")
    AT.consts(A)
    AT.emit_B(A, "L_bt", "L_end", bfl, early=bearly)
    A("s_branch L_done")
    A.label("L_bo")
    A(f"""s_mov_b64 s[{OP.S_MK}:{OP.S_MK+1}], s[4:5]
    s_mov_b32 s{OP.S_UA}, s{S_PAR}
    s_mov_b32 s{OP.S_SL}, s{S_ID}
    s_mov_b32 s{OP.S_CTX}, {CTXB}
    s_mov_b32 s{OP.S_FLG}, {F_CTXB}
    s_mov_b32 s{OP.S_FSH}, 1
    s_mov_b32 s{OP.S_COL}, 1152""")
    srd_arg(A, S_W, B_WO, 4096*576*2)
    A.label("L_op")
    srd_arg(A, S_X, OUT, 2048*1152*2)
    OP.load_weights(A)
    stamp(A, 3, stamps)
    OP.run(A, "L_opl", "L_end")
    A("s_branch L_done")
    A.label("L_team")
    T.emit_setup(A)
    T.emit_init_sentinels(A)
    A(f"""v_lshrrev_b32 v0, 4, v{T.T16}
    s_waitcnt vmcnt(0)
    s_barrier
    s_cmp_eq_u32 s{S_WV}, 0
    s_cbranch_scc0 L_tw
    s_mov_b64 exec, 1
    v_mov_b32 v1, 1
    v_mov_b32 v2, {D_TEAM}
    buffer_atomic_add v1, v2, {buf(S_DBG, 0)}
    s_mov_b64 exec, -1
    L_tw:""")
    T.emit_loader(A, ldfl, lorder)
    stamp(A, 1, stamps)
    T.emit_setup(A)
    if cpf2:
        A(f"""s_getpc_b64 s[4:5]
        L_pc2:
        s_mov_b32 s{T.S_W}, s4
        s_and_b32 s{T.S_W+1}, s5, 0xffff
        s_mov_b32 s{T.S_W+2}, L_end-L_pc2
        s_mov_b32 s{T.S_W+3}, 0x20000
        buffer_load_dword v{T.STG}, v{T.WRM}, {buf(T.S_W, 0)}""")
    if touch: T.emit_touch(A)
    T.emit_mem0(A)
    x, y, z = T.VX, T.VX + 1, T.VX + 2
    A(f"v_and_b32 v{z}, 16, v{T.T16}\nv_lshlrev_b32 v{x}, 2, v{z}\nv_add_u32 v{x}, {D_TEAM}, v{x}\nv_mul_u32_u24 v{z}, 3, v{z}\nv_lshrrev_b32 v{z}, 1, v{z}\nv_sub_u32 v{z}, 32, v{z}")
    poll(A, x, y, 0, f"v_cmp_ne_u32 vcc, v{z}, v{y}", "L_end", srd=S_DBG, spin=T.S_SPIN)
    A(f"v_mov_b32 v{x}, 0\ns_lshl_b32 s{T.S_T1}, s{S_RANK}, 7\ns_add_u32 s{T.S_T1}, s{T.S_T1}, {F_BKV}")
    poll(A, x, y, s(T.S_T1), f"v_cmp_ne_u32 vcc, 1, v{y}", "L_end", spin=T.S_SPIN)
    stamp(A, 2, stamps)
    prof(A, "tm0")
    A(f"s_mov_b32 s{T.S_SPIN}, 0")
    if marks and "tm0" in marks: A(f"s_mov_b32 s{T.S_CNT1}, 0\ns_mov_b32 s{T.S_CNT2}, 0\ns_mov_b32 s{T.S_CNT3}, 0")
    kw = dict(stamps=bool(marks and "tm0" in marks), spin=SPIN_MAX, flags=True, **TEAM)
    kw.update(team_kw or {})
    T.emit_loops(A, "L_texit", "L_end", **kw)
    A.label("L_texit")
    prof(A, "tm1")
    if marks and "tm0" in marks: A(f"s_mul_i32 s100, s{T.S_CNT2}, 1000\ns_add_u32 s100, s100, s{T.S_CNT3}")
    A(f"s_lshl_b32 s{S_OUT}, s{S_RANK}, 7\ns_add_u32 s{S_OUT}, s{S_OUT}, {F_TEAM}")
    set_flag(A, S_OUT, 64)
    A.label("L_done")
    if stamps:
        stamp(A, 4, True)
        A(f"""s_waitcnt vmcnt(0) lgkmcnt(0)
        s_lshl_b32 s{S_T0}, s{S_XCC}, 5
        s_add_u32 s{S_T0}, s{S_T0}, s{S_RANK}
        s_lshl_b32 s{S_T0}, s{S_T0}, 2
        s_add_u32 s{S_T0}, s{S_T0}, s{S_WV}
        s_lshl_b32 s{S_T0}, s{S_T0}, 7
        s_add_u32 s{S_T0}, s{S_T0}, {STAMP}
        v_mov_b32 v1, 0""")
        if stamps == "dbg":
            A(f"s_not_b32 s64, s64\ns_mov_b64 exec, 1")
            def mx(word, reg, cond):
                L = A.uniq("L_ds")
                A(f"{cond}\ns_cbranch_scc0 {L}\nv_mov_b32 v2, s{reg}\nbuffer_atomic_umax v2, v1, {buf(S_DBG, 0)} offset:{4*word}\n{L}:")
            R_ = S_XCC
            mx(8, 64, f"s_cmp_ge_u32 s{R_}, 0"); mx(9, 66, f"s_cmp_eq_u32 s{R_}, 0"); mx(10, 68, f"s_cmp_eq_u32 s{R_}, 0"); mx(11, 72, f"s_cmp_eq_u32 s{R_}, 0")
            mx(12, 72, f"s_cmp_eq_u32 s{R_}, 1"); mx(13, 66, f"s_cmp_ge_u32 s{R_}, 4"); mx(14, 66, f"s_cmp_eq_u32 s{R_}, 2"); mx(15, 72, f"s_cmp_ge_u32 s{R_}, 2")
            A("s_not_b32 s64, s64\ns_mov_b64 exec, -1")
        for i in range(19): A(f"v_mov_b32 v2, s{64+2*i}\nbuffer_store_dword v2, v1, {buf(S_WS, s(S_T0))} offset:{4*i}")
    A.label("L_end")
    k = NAME + "_kernel"
    ref = open(os.path.join(os.path.dirname(os.path.abspath(__file__)), "..", NAME + ".s.ref")).read()
    hdr = ref[:ref.index("; Override launch geometry")]
    return hdr + f"""; Generated by gen/build.py (hand-written generator; see gen/*.py)
; @launch grid=(256,1,1) block=(256,1,1) lds=163840
.amdgcn_target "amdgcn-amd-amdhsa--gfx950"
.text
.globl {k}
.p2align 8
.type {k},@function
{k}:
{A.text()}s_endpgm
.section .rodata,"a"
.p2align 6
.amdhsa_kernel {k}
  .amdhsa_next_free_vgpr 512
  .amdhsa_next_free_sgpr 102
  .amdhsa_accum_offset 256
  .amdhsa_group_segment_fixed_size 0
  .amdhsa_kernarg_size 128
  .amdhsa_user_sgpr_count 2
  .amdhsa_user_sgpr_kernarg_segment_ptr 1
  .amdhsa_system_sgpr_workgroup_id_x 1
.end_amdhsa_kernel
"""

if __name__ == "__main__":
    out = os.path.join(os.path.dirname(os.path.abspath(__file__)), "..", NAME + ".s")
    open(out, "w").write(gen())
    print("written", out)
```

```python
from common import *
BUFSZ = 32768

O0 = 128
SB = [32, 64]
PB = [96, 112]
QA = 256
FR = 256 + 64
M_, L_, AL, TM = 20, 22, 24, 26
A_DM, A_KC, A_KN, A_VP = 1, 2, 3, 4
A_MK, A_CT = 5, 6
S_C, S_J, S_H, S_T, S_TD, S_NT, S_SO, S_M0, S_FL, S_KVH, S_NEG, S_THR = 40, 41, 42, 43, 44, 45, 46, 47, 48, 49, 50, 51
S_RET, S_CT, S_DL = 52, 54, 55
S_SM = 52
S_K, S_KD = 62, 63
Oa = lambda T, a: O0 + 16*(2*T + a)
mf32 = lambda d, a, b, c: f"v_mfma_f32_32x32x16_bf16 {R(d,16)}, {R(a,4)}, {R(b,4)}, {c}"

def consts(A, thr=20.0):
    A(f"s_mov_b32 s{S_C}, {f32bits(SCALE_LOG2E):#x}\ns_mov_b32 s{S_NEG}, {f32bits(-1e30):#x}\ns_mov_b32 s{S_THR}, {f32bits(thr):#x}")

def lane_regs(A):
    A(f"""v_and_b32 v{A_MK}, 31, v{TID}
    v_bfe_u32 v{TM}, v{TID}, 5, 1
    v_lshlrev_b32 v{TM+1}, 2, v{TM}
    v_sub_u32 v{A_MK}, v{A_MK}, v{TM+1}
    v_bfe_u32 v{TM+1}, v{TID}, 4, 1
    v_lshlrev_b32 v{A_CT}, 17, v{TM+1}
    v_lshl_add_u32 v{A_CT}, v{TM}, 8, v{A_CT}
    v_and_b32 v{TM+1}, 15, v{TID}
    v_lshl_add_u32 v{A_CT}, v{TM+1}, 4, v{A_CT}""")

def diag_mask(S):
    l = []
    for r in range(16):
        l += [f"v_cmp_le_i32 vcc, {8*(r >> 2) + (r & 3)}, v{A_MK}", f"v_cndmask_b32 v{S+r}, v{TM+5}, v{S+r}, vcc"]
    return [f"v_mov_b32 v{TM+5}, s{S_NEG}"] + l

def ctx_store(A, a, s_off, lreg, fl='sc1'):
    t = TM
    A(f"""v_mov_b32 v{t}, v{lreg}
    v_permlane32_swap_b32 v{t}, v{lreg}
    v_add_f32 v{t}, v{t}, v{lreg}
    v_rcp_f32 v{t}, v{t}""")
    for T in range(4):
        o = Oa(T, a)
        for i in range(0, 16, 2): A(f"v_pk_mul_f32 {v(o+i,2)}, {v(o+i,2)}, {v(t,2)} op_sel_hi:[1,0]")
        for hf in range(2):
            for i in range(4): A(f"v_cvt_pk_bf16_f32 v{o+8*hf+i}, v{o+8*hf+2*i}, v{o+8*hf+2*i+1}")
            A(f"buffer_store_dwordx4 {v(o+8*hf,4)}, v{A_CT}, {buf(S_WS, s(s_off))} offset:{T*1024 + hf*512} {fl}")

NR = 8
LEAD = 4
OA = 256 + 96
NM = 128
OAa = lambda T, a: OA + 16*(2*T + a)

def emit_A(A, name, L_fail, skip=2):
    lane_regs(A)
    A(f"""v_and_b32 v{A_KC}, 63, v{TID}
    v_lshlrev_b32 v{A_KC}, 4, v{A_KC}
    s_lshl_b32 s{S_T0}, s{S_WV}, 13
    v_add_u32 v{A_DM}, s{S_T0}, v{A_KC}
    v_add_u32 v{A_KN}, {BUFSZ}, v{A_KC}
    v_mov_b32 v{A_VP}, v{A_KC}
    s_lshl_b32 s{S_SO}, s{S_H}, 20
    s_add_u32 s{S_SO}, s{S_SO}, {KVA}
    s_mov_b32 s{S_M0}, s{S_T0}
    s_lshl_b32 s{S_TD}, s{S_J}, 2
    s_add_u32 s{S_NT}, s{S_TD}, 4
    s_add_u32 s{S_TD}, s{S_TD}, s{S_WV}
    s_mov_b32 s{S_T}, 0
    s_mov_b32 s{S_FL}, 0
    s_mov_b32 s{S_CT}, s{S_NEG}
    s_mov_b32 s{S_DL}, s{S_NEG}
    s_barrier""")
    def dma():
        l = [[f"s_mov_b32 m0, s{S_M0}"], [f"s_add_u32 s{S_T0}, s{S_SO}, 4096"]]
        l += [[f"buffer_load_dwordx4 v{A_DM}, {buf(S_WS, s(S_SO))} offset:{1024*j} sc1 lds"] for j in range(4)]
        l += [[f"s_add_u32 m0, s{S_M0}, 4096"]]
        l += [[f"buffer_load_dwordx4 v{A_DM}, {buf(S_WS, s(S_T0))} offset:{1024*j} sc1 lds"] for j in range(4)]
        l += [[f"s_add_u32 s{S_SO}, s{S_SO}, {BUFSZ}"], [f"s_add_u32 s{S_M0}, s{S_M0}, {BUFSZ}"], [f"s_and_b32 s{S_M0}, s{S_M0}, {4*BUFSZ-1}"]]
        return l
    sel = [[f"s_add_u32 s{S_T0}, s{S_T}, 3"], [f"s_cmp_lt_u32 s{S_T0}, s{S_NT}", f"s_cselect_b32 s{S_SO}, s{S_SO}, {OOB}"]]
    A(f"""s_lshr_b32 s{S_T2}, s{S_H}, 1
    s_lshl_b32 s{S_T2}, s{S_T2}, 6
    s_lshl_b32 s{S_T3}, s{S_TD}, 1
    s_add_u32 s{S_T2}, s{S_T2}, s{S_T3}
    s_lshl_b32 s{S_T2}, s{S_T2}, 1
    s_and_b32 s{S_T3}, s{S_H}, 1
    s_add_u32 s{S_T2}, s{S_T2}, s{S_T3}
    s_lshl_b32 s{S_T2}, s{S_T2}, 13
    s_add_u32 s{S_T2}, s{S_T2}, {QA_}""")
    for a in range(2):
        for q in range(2):
            A(f"s_add_u32 s{S_T3}, s{S_T2}, {a*16384 + q*4096}")
            for i in range(4): A(f"buffer_load_dwordx4 {R(QA + 32*a + 16*q + 4*i, 4)}, v{A_KC}, {buf(S_WS, s(S_T3))} offset:{1024*i} sc1")
    for t in range(3):
        for g in dma():
            for x in g: A(x)
    for r in range(OA, OA + 128): A(f"v_accvgpr_write_b32 a{r-256}, 0")
    for r in list(range(PB[1], PB[1] + 16, 2)) + list(range(NM, NM + 32, 2)) + [L_]: A(f"v_mov_b64 {v(r,2)}, 0")
    kfr = lambda ad, blk: [(ad, blk*16384 + ks*1024) for ks in range(8)]
    vfr = lambda ad, blk: [(ad, blk*16384 + 8192 + i*1024) for i in range(8)]
    rd = lambda i, f: f"ds_read_b128 {R(FR + 4*(i % NR), 4)}, v{f[0]} offset:{f[1]}"
    def s_mm(S, fi):
        return [[mf32(S + 16*a, FR + 4*((fi + ks) % NR), QA + 32*a + 4*ks, R(NM + 16*a if ks == 0 else S + 16*a, 16))] for ks in range(8) for a in range(2)]
    def pv_mm(P, fi):
        return [[mf32(OAa(i >> 1, a), FR + 4*((fi + i) % NR), P + 8*a + 4*(i & 1), R(OAa(i >> 1, a), 16))] for i in range(8) for a in range(2)]
    def add_reads(groups, frs):
        for i, f in enumerate(frs):
            groups[2*i].insert(1, rd(i + LEAD, f))
            groups[2*i + 1].insert(1, f"s_waitcnt lgkmcnt({LEAD-1})")
    prof(A, "at0")
    A("s_waitcnt vmcnt(16)\ns_barrier")
    prof(A, "at1")
    k0 = kfr(A_KC, 0); vp = vfr(A_VP, 1)
    for i in range(LEAD): A(rd(i, k0[i]))
    A(f"s_waitcnt lgkmcnt({LEAD-1})")
    g = s_mm(SB[0], 0); add_reads(g, k0[LEAD:] + vp[:LEAD])
    for x in sum(g, []): A(x)
    def softmax(par, mask, tag):
        S, P = SB[par], PB[par]
        pre = []
        if mask == 0: pre += diag_mask(S)
        if mask == 1: pre += diag_mask(S + 16) + [f"v_mov_b32 v{S+r}, v{TM+5}" for r in range(16)]
        t = TM
        pre.append(f"v_max3_f32 v{t}, v{S}, v{S+1}, v{S+2}")
        for i in range(3, 31, 2): pre.append(f"v_max3_f32 v{t}, v{t}, v{S+i}, v{S+i+1}")
        pre += [f"v_max_f32 v{t}, v{t}, v{S+31}", f"v_cmp_lt_f32 vcc, s{S_CT}, v{t}", "BR"]
        st = [[], []]
        for a in range(2):
            for i in range(0, 16, 2):
                r = S + 16*a + i
                st[0].append([f"v_exp_f32 v{r}, v{r}", f"v_exp_f32 v{r+1}, v{r+1}"])
                st[1].append([f"v_add_f32 v{L_+a}, v{L_+a}, v{r}", f"v_add_f32 v{L_+a}, v{L_+a}, v{r+1}", f"v_cvt_pk_bf16_f32 v{P + 8*a + i//2}, v{r}, v{r+1}"])
        body = []
        for k in range(17):
            if k < 16: body.append(st[0][k][0])
            if k > 0: body += st[1][k - 1][:2]
            if k < 16: body.append(st[0][k][1])
            if k > 0: body.append(st[1][k - 1][2])
        return pre, body
    cold = []
    def update(tag, par):
        S = SB[par]
        A.label(f"{name}_up{tag}")
        for a in range(2):
            s_ = S + 16*a; t, u = TM, TM + 1
            A(f"v_max3_f32 v{t}, v{s_}, v{s_+1}, v{s_+2}")
            for i in range(3, 15, 2): A(f"v_max3_f32 v{t}, v{t}, v{s_+i}, v{s_+i+1}")
            A(f"""v_max_f32 v{t}, v{t}, v{s_+15}
            v_mov_b32 v{u}, v{t}
            v_permlane32_swap_b32 v{u}, v{t}
            v_max3_f32 v{t}, v{t}, v{u}, s{S_DL}
            v_exp_f32 v{AL+a}, -v{t}""")
            for i in range(16): A(f"v_sub_f32 v{s_+i}, v{s_+i}, v{t}\nv_sub_f32 v{NM+16*a+i}, v{NM+16*a+i}, v{t}")
            A(f"v_min_f32 v{AL+a}, 1.0, v{AL+a}\nv_mul_f32 v{L_+a}, v{L_+a}, v{AL+a}")
        A(f"s_cmp_eq_u32 s{S_DL}, 0\ns_cselect_b32 s{S_FL}, 1, 0\ns_mov_b32 s{S_DL}, 0\ns_mov_b32 s{S_CT}, s{S_THR}\ns_branch {name}_upr{tag}")
        A.label(f"{name}_rs{tag}")
        A(f"s_mov_b32 s{S_RET}, {'abcd'.index(tag)}\ns_branch {name}_rescale")
    def step(par, mask, do_s, tag, nxt, extra=None, post=()):
        vf = vfr(A_VP, 1) if par == 0 else vfr(A_KC, 0)
        kf = kfr(A_KC, 1) if par == 0 else kfr(A_KN, 0)
        g = pv_mm(PB[1 - par], 0)
        if do_s:
            g += s_mm(SB[1 - par], 8)
            add_reads(g, vf[LEAD:] + kf + nxt)
        else:
            add_reads(g, vf[LEAD:] + nxt)
        if extra:
            for i, e in enumerate(extra): g[(2*i + 1) if do_s else i] += e
        g[15] += [f"s_cmp_eq_u32 s{S_FL}, 0", f"s_cbranch_scc0 {name}_rs{tag}", f"{name}_rsr{tag}:"]
        pre, body = softmax(par, mask, tag)
        npre = 6 if mask is None else 14
        g[npre] += [f"s_cbranch_vccnz {name}_up{tag}", f"{name}_upr{tag}:"]
        out = merge(g[:npre], pre[:-1], skip=skip) + merge(g[npre:], body + list(post))
        if post: assert out.index(post[0]) > max(i for i, x in enumerate(out) if x.startswith("ds_read"))
        for x in out: A(x)
        cold.append((tag, par))
    rot = [f"v_mov_b32 v{A_VP}, v{A_KC}", f"v_mov_b32 v{A_KC}, v{A_KN}", f"v_add_u32 v{A_KN}, {BUFSZ}, v{A_KN}", f"v_and_b32 v{A_KN}, {4*BUFSZ-1}, v{A_KN}"]
    A(f"s_cmp_eq_u32 s{S_TD}, 0\ns_cbranch_scc1 {name}_last")
    A(".p2align 3")
    A.label(f"{name}_loop")
    step(0, None, True, "a", vfr(A_KC, 0)[:LEAD], sel)
    A("s_waitcnt vmcnt(8)\ns_barrier")
    step(1, None, True, "b", vfr(A_KC, 1)[:LEAD], dma() + [[f"s_add_u32 s{S_T}, s{S_T}, 1"], [f"s_cmp_lt_u32 s{S_T}, s{S_TD}"]], rot)
    A(f"s_cbranch_scc1 {name}_loop")
    A.label(f"{name}_last")
    prof(A, "at2")
    step(0, 0, True, "c", vfr(A_KC, 0)[:LEAD], sel)
    A("s_waitcnt vmcnt(8)\ns_barrier")
    step(1, 1, False, "d", vfr(A_KC, 1)[:LEAD], dma())
    g = pv_mm(PB[1], 0)
    vf = vfr(A_KC, 1)
    for i in range(8):
        if i + LEAD < 8: g[2*i].append(rd(i + LEAD, vf[i + LEAD]))
        if i < 7: g[2*i + 1].append(f"s_waitcnt lgkmcnt({min(LEAD - 1, 6 - i)})")
    for x in sum(g, []): A(x)
    A(f"""s_lshl_b32 s{S_T2}, s{S_TD}, 19
    s_lshl_b32 s{S_T3}, s{S_H}, 12
    s_add_u32 s{S_T2}, s{S_T2}, s{S_T3}
    s_add_u32 s{S_T2}, s{S_T2}, {CTXA}
    s_add_u32 s{S_T3}, s{S_T2}, {2 << 17}""")
    A.label(f"{name}_idle")
    A(f"s_add_u32 s{S_T}, s{S_T}, 1\ns_cmp_ge_u32 s{S_T}, s{S_NT}\ns_cbranch_scc1 {name}_fin")
    A(f"s_waitcnt vmcnt(0)\ns_barrier\ns_branch {name}_idle")
    for tag, par in cold: update(tag, par)
    A.label(f"{name}_rescale")
    A("s_nop 7\ns_nop 3")
    for T in range(4):
        for a in range(2):
            for i in range(0, 16, 8):
                r = OAa(T, a) + i - 256
                for k in range(8): A(f"v_accvgpr_read_b32 v{160+k}, a{r+k}")
                for k in range(8): A(f"v_mul_f32 v{160+k}, v{160+k}, v{AL+a}")
                for k in range(8): A(f"v_accvgpr_write_b32 a{r+k}, v{160+k}")
    A(f"s_mov_b32 s{S_FL}, 0")
    for i, tag in enumerate("abc"): A(f"s_cmp_eq_u32 s{S_RET}, {i}\ns_cbranch_scc1 {name}_rsr{tag}")
    A(f"s_branch {name}_rsrd")
    A.label(f"{name}_fin")
    prof(A, "at3")
    for r in range(128): A(f"v_accvgpr_read_b32 v{O0+r}, a{OA-256+r}")
    ctx_store(A, 0, S_T2, L_)
    ctx_store(A, 1, S_T3, L_ + 1)

def emit_B(A, name, L_fail, fl="sc1", NW=56, slp=(1, 1, 8), fc=0, mx=0):
    lane_regs(A)
    L16, KM_A, VM_A, FA, KM_B, LV, FKV = 1, 2, 3, 4, 7, 16, 17
    SET = [256, 256 + 96]
    KM, VM = 96, 8
    S_IT, S_QO, S_RBK, S_MK, S_HC = S_M0, S_TD, S_NT, 64, S_J
    A(f"""v_and_b32 v{L16}, 63, v{TID}
    v_min_u32 v{FKV}, 47, v{L16}
    v_lshlrev_b32 v{L16}, 4, v{L16}
    s_lshl_b32 s{S_T0}, s{S_WV}, 12
    s_mov_b32 m0, s{S_T0}
    v_bfe_u32 v{TM}, v{TID}, 5, 1
    v_and_b32 v{TM+1}, 1, v{TID}
    v_lshl_add_u32 v{KM_A}, v{TM+1}, 2, s{S_T0}
    v_lshl_add_u32 v{KM_A}, v{TM}, 5, v{KM_A}
    v_bfe_u32 v{TM+1}, v{TID}, 1, 2
    v_lshl_add_u32 v{KM_A}, v{TM+1}, 8, v{KM_A}
    v_lshl_add_u32 v{VM_A}, v{TM}, 9, s{S_T0}
    v_bfe_u32 v{TM+1}, v{TID}, 4, 1
    v_lshl_add_u32 v{VM_A}, v{TM+1}, 2, v{VM_A}
    v_bfe_u32 v{TM+1}, v{TID}, 3, 1
    v_lshl_add_u32 v{VM_A}, v{TM+1}, 6, v{VM_A}
    v_bfe_u32 v{TM+1}, v{TID}, 2, 1
    v_lshl_add_u32 v{VM_A}, v{TM+1}, 7, v{VM_A}
    v_and_b32 v{TM+1}, 3, v{TID}
    v_lshl_add_u32 v{VM_A}, v{TM+1}, 4, v{VM_A}
    v_mov_b32 v{FA}, 0
    v_lshlrev_b32 v{FKV}, 7, v{FKV}
    v_mul_u32_u24 v{TM}, {F_BQ - F_BKV - 32*128}, v{TM}
    v_add_u32 v{FKV}, v{FKV}, v{TM}
    v_add_u32 v{FKV}, {F_BKV}, v{FKV}
    v_mov_b32 v{TM+5}, s{S_NEG}
    s_mov_b32 s{S_KVH}, 0
    s_mov_b32 s{S_K}, {-fc}
    s_mov_b32 s{S_KD}, 0
    s_mov_b32 s{S_RBK}, -1""")
    if not PROF["st"]:
        for r in range(16): A(f"v_cmp_le_i32 s[{S_MK+2*r}:{S_MK+2*r+1}], {8*(r >> 2) + (r & 3)}, v{A_MK}")
    def next_addr(it):
        L, L1, L2, L3 = A.uniq("L_nb"), A.uniq("L_nb"), A.uniq("L_nb"), A.uniq("L_nb")
        A(f"""{L1}:
        s_ff1_i32_b64 s{it}, s[{S_SM}:{S_SM+1}]
        s_cmp_lt_u32 s{S_HC}, 32
        s_cbranch_scc1 {L2}
        s_bitset0_b64 s[{S_SM}:{S_SM+1}], s{it}
        s_sub_u32 s{S_HC}, s{S_HC}, 32
        s_add_u32 s{S_K}, s{S_K}, 1
        s_branch {L1}
        {L2}:
        s_lshl_b32 s{it}, s{it}, 5
        s_add_u32 s{it}, s{it}, s{S_HC}
        s_add_u32 s{S_HC}, s{S_HC}, {NW}
        s_lshl_b32 s{S_SO}, s{it}, 14
        s_add_u32 s{S_SO}, s{S_SO}, {KVB}
        s_lshl_b32 s{S_QO}, s{it}, 13
        s_add_u32 s{S_QO}, s{S_QO}, {QB_}
        s_cmp_ge_u32 s{it}, 2048
        s_cselect_b32 s{S_QO}, {OOB}, s{S_QO}
        s_cselect_b32 s{S_SO}, {OOB}, s{S_SO}
        s_cbranch_scc1 {L}""")
        if fc:
            A(f"s_cmp_le_i32 s{S_K}, s{S_KD}\ns_cbranch_scc1 {L3}")
            poll(A, FA, TM, s(S_DL), f"v_cmp_gt_i32 vcc, s{S_K}, v{TM}", L_fail, sleep=4)
            A(f"v_readfirstlane_b32 s{S_KD}, v{TM}\n{L3}:")
        A(f"""s_lshr_b32 s{S_T1}, s{it}, 8
        s_lshl_b32 s{S_T1}, s{S_T1}, 2
        s_cmp_eq_u32 s{S_T1}, s{S_RBK}
        s_cbranch_scc1 {L}
        s_mov_b32 s{S_RBK}, s{S_T1}""")
        poll(A, FKV, TM, s(S_RBK), f"v_cmp_ne_u32 vcc, 1, v{TM}", L_fail, sleep=slp[2], back=slp[3])
        A.label(L)
    def prefetch(p):
        l = []
        for k, (so, off, ad) in enumerate(((S_QO, 0, L16), (S_SO, 0, L16), (S_SO, 8192, L16))):
            for q in range(2):
                for i in range(4):
                    l.append((f"s_add_u32 s{S_T1}, s{so}, {off + q*4096}\n" if i == 0 else "") +
                             f"buffer_load_dwordx4 {R(SET[p] + 32*k + 16*q + 4*i, 4)}, v{ad}, {buf(S_WS, s(S_T1))} offset:{1024*i} sc1")
        return l
    next_addr(S_IT)
    A(f"s_cmp_ge_u32 s{S_IT}, 2048\ns_cbranch_scc1 {name}_x")
    for x in prefetch(0): A(x)
    A("s_waitcnt vmcnt(0)")
    S_PFX, S_XM = 60, 30
    S_PFL = S_CT
    flag = f"""v_mov_b32 v{TM}, 1
        s_waitcnt vmcnt(0)
        s_mov_b64 exec, 1
        buffer_store_dword v{TM}, v{FA}, {buf(S_WS, s(S_PFL))} {fl}
        {f"buffer_store_dword v{TM}, v{FA}, {buf(S_WS, s(S_PFX))} sc1" if mx else ""}
        s_mov_b64 exec, -1"""
    x1 = 1 if mx else 0
    A(f"s_mov_b32 s{S_PFL}, {OOB}\ns_mov_b32 s{S_PFX}, {OOB}\ns_mov_b32 s{S_XM}, {mx & 0xffffffff:#x}\ns_mov_b32 s{S_XM+1}, {mx >> 32:#x}")
    A.label(name)
    for p in range(2):
        Q, KX, VX = SET[p], SET[p] + 32, SET[p] + 64
        S, SM, P, t, u = SB[0], SB[1], SB[1] + 16, M_, TM
        A("s_waitcnt vmcnt(8)")
        for ks in range(8): A(mf32(S, KX + 4*ks, Q + 4*ks, "0" if ks == 0 else R(S, 16)))
        A(f"""s_and_b32 s{S_H}, s{S_IT}, 31
        s_lshr_b32 s{S_T}, s{S_IT}, 5
        s_lshl_b32 s{S_T2}, s{S_IT}, 12
        s_add_u32 s{S_T2}, s{S_T2}, {KVM}""")
        if PROF["st"]:
            for x in diag_mask(S): A(x)
        else:
            for r in range(16): A(f"v_cndmask_b32 v{S+r}, v{TM+5}, v{S+r}, s[{S_MK+2*r}:{S_MK+2*r+1}]")
        A(f"v_max3_f32 v{t}, v{S}, v{S+1}, v{S+2}")
        for i in range(3, 15, 2): A(f"v_max3_f32 v{t}, v{t}, v{S+i}, v{S+i+1}")
        A(f"v_max_f32 v{t}, v{t}, v{S+15}")
        kml = [f"buffer_load_dwordx4 v{L16}, {buf(S_WS, s(S_T2))} offset:{1024*m} sc1 lds" for m in range(4)]
        krd = lambda ks: [f"ds_read_b32 v{KM + 4*ks + dw}, v{KM_A} offset:{(ks >> 1)*1024 + (ks & 1)*128 + (dw >> 1)*64 + (dw & 1)*16 + 8}" for dw in range(4)]
        vrd = [f"ds_read_b32 v{VM + 2*T + j}, v{VM_A} offset:{T*1024 + j*256}" for T in range(4) for j in range(2)]
        def smem(young, fill):
            n = 0
            for ks in range(10):
                if ks < 8:
                    if ks % 2 == 0: A(f"s_waitcnt vmcnt({3 - ks//2 + young + n})")
                    for x in krd(ks): A(x)
                else:
                    for x in vrd[4*(ks - 8):4*(ks - 7)]: A(x)
                if ks >= 2:
                    A(f"s_waitcnt lgkmcnt(8)\n" + mf32(SM, KM + 4*(ks - 2), Q + 4*(ks - 2), "0" if ks == 2 else R(SM, 16)))
                    for x in fill[2*(ks - 2):2*(ks - 1)]: A(x); n += 1
        pf = prefetch(1 - p)
        Lk, Lj = A.uniq("L_kn"), A.uniq("L_kj")
        A(f"s_cmp_lt_u32 s{S_T}, s{S_KVH}\ns_cbranch_scc1 {Lk}")
        A(flag)
        next_addr(S_FL)
        for x in pf: A(x)
        prof(A, "bt0")
        A(f"s_lshl_b32 s{S_T1}, s{S_H}, 7\ns_add_u32 s{S_T1}, s{S_T1}, {F_TEAM}")
        poll(A, FA, TM, s(S_T1), f"v_cmp_ge_u32 vcc, s{S_T}, v{TM}", L_fail, sleep=slp[1], back=slp[3])
        prof(A, "bt1")
        for x in kml: A(x)
        A(f"v_readfirstlane_b32 s{S_KVH}, v{TM}\ns_min_u32 s{S_KVH}, s{S_KVH}, 63\ns_sub_u32 s{S_KVH}, s{S_KVH}, 1")
        smem(0, [])
        A(f"s_branch {Lj}")
        A.label(Lk)
        for x in kml: A(x)
        A(flag.replace("vmcnt(0)", "vmcnt(4)"))
        next_addr(S_FL)
        for x in pf[:8]: A(x)
        smem(9 + x1, pf[8:])
        A.label(Lj)
        prof(A, "bt2")
        A(f"""v_max3_f32 v{t}, v{t}, v{SM}, v{SM+1}
        v_max3_f32 v{t}, v{t}, v{SM+2}, v{SM+3}
        v_mov_b32 v{u}, v{t}
        v_permlane32_swap_b32 v{u}, v{t}
        v_max_f32 v{t}, v{t}, v{u}
        v_mul_f32 v{t}, s{S_C}, v{t}""")
        regs = [SM + i for i in range(4)] + [S + i for i in range(16)]
        for r in regs[::2]: A(f"v_pk_fma_f32 {v(r,2)}, {v(r,2)}, s[{S_C}:{S_C+1}], {v(t,2)} op_sel_hi:[1,0,0] neg_lo:[0,0,1] neg_hi:[0,0,1]")
        ex = lambda l: [f"v_exp_f32 v{r}, v{r}" for r in l]
        cv = lambda d, r, n: [f"v_cvt_pk_bf16_f32 v{d + i}, v{r+2*i}, v{r+2*i+1}" for i in range(n)]
        for x in ex(regs[:6]) + cv(P + 8, SM, 2) + ["s_waitcnt lgkmcnt(0)"]: A(x)
        o = lambda T: Oa(T, 0)
        g = [[f"v_mfma_f32_32x32x8_bf16 {v(o(T),16)}, {v(VM + 2*T, 2)}, {v(P + 8, 2)}, 0"] for T in range(4)]
        for x in merge(g, ex(regs[6:14]) + cv(P, S, 4)): A(x)
        adds = [f"v_add_f32 v{L_}, v{regs[0]}, v{regs[1]}"] + [f"v_add_f32 v{L_}, v{L_}, v{r}" for r in regs[2:]]
        g = [[mf32(o(T), VX + 8*T, P, R(o(T), 16))] for T in range(4)]
        for x in merge(g, ex(regs[14:]) + adds[:5] + cv(P + 4, S + 8, 4)): A(x)
        g = [[mf32(o(T), VX + 8*T + 4, P + 4, R(o(T), 16))] for T in range(4)]
        for x in merge(g, adds[5:], tail=1): A(x)
        A(f"""s_lshl_b32 s{S_T2}, s{S_T}, 18
        s_lshl_b32 s{S_T3}, s{S_H}, 12
        s_add_u32 s{S_T2}, s{S_T2}, s{S_T3}
        s_add_u32 s{S_T2}, s{S_T2}, {CTXB}""")
        if mx:
            Lx, Ly = A.uniq("L_cx"), A.uniq("L_cy")
            A(f"s_bitcmp1_b64 s[{S_XM}:{S_XM+1}], s{S_T}\ns_cbranch_scc0 {Lx}")
            ctx_store(A, 0, S_T2, L_, "sc1")
            A(f"s_branch {Ly}\n{Lx}:")
        ctx_store(A, 0, S_T2, L_, fl)
        if mx: A.label(Ly)
        prof(A, "bt3")
        A(f"""s_lshl_b32 s{S_PFL}, s{S_IT}, 2
        s_add_u32 s{S_PFL}, s{S_PFL}, {F_CTXB}
        s_bitcmp1_b64 s[{S_XM}:{S_XM+1}], s{S_T}
        s_cselect_b32 s{S_PFX}, s{S_PFL}, {OOB}
        s_cselect_b32 s{S_PFL}, {OOB}, s{S_PFL}
        s_mov_b32 s{S_IT}, s{S_FL}
        s_cmp_lt_u32 s{S_IT}, 2048""")
        A(f"s_cbranch_scc0 {name}_f" if p == 0 else f"s_cbranch_scc1 {name}")
    A.label(f"{name}_f")
    A(flag)
    A.label(f"{name}_x")
```

```python
from common import *
import gemm as G
from attn import S_C, S_J, S_H, S_T, S_TD, S_NT, S_SO, S_M0, S_FL, S_NEG, S_THR, S_RET, S_CT, S_DL, BUFSZ

QA, FR, OA, LA, ON = 256, 256 + 64, 256 + 96, 256 + 224, 256 + 240
SB, PB, NM, QN, EP = (32, 64), (96, 112), 128, 160, 224
A_DM, A_KC, A_KN, A_VP, A_MK, A_L16, A_QA, NEG = 1, 2, 3, 4, 5, 6, 7, 8
AL, TM = 12, 16
NR, LEAD = 8, 3
S_CO, S_NJ, S_PF, S_MK, S_HK, S_QO = 61, 63, 60, 64, 45, 96
LQ = 3*BUFSZ
mf = lambda d, a, b, c: f"v_mfma_f32_16x16x32_bf16 {R(d,4)}, {R(a,4)}, {R(b,4)}, {R(c,4)}"
Oa = lambda dt, j: OA + 16*dt + 4*j

def vcost(x):
    op = x.split()[0]
    if op.endswith(":"): return 0
    if op.startswith(("v_exp", "v_rcp", "v_permlane", "s_cbranch")): return 8
    if op.startswith("buffer_store"): return 16
    return 4

def merge2(groups, valu, skip=0):
    ext = [sum(vcost(x) for x in g[1:]) - (4 if len(g) > 1 and g[1].startswith("s_") and vcost(g[1]) == 4 else 0) for g in groups]
    n = len(groups) - skip
    per = max(8.0, (sum(vcost(x) for x in valu) + sum(ext[skip:])) / n)
    out, k, used = [], 0, 0
    for i, g in enumerate(groups):
        out += g
        if i >= skip:
            used = max(used + ext[i], per*(i - skip + 1) - max(per, 8))
            while k < len(valu) and used + vcost(valu[k]) <= per*(i - skip + 1) + 0.01:
                out.append(valu[k]); used += vcost(valu[k]); k += 1
    return out + valu[k:]

def pack(groups, E, C, post):
    ext = [sum(vcost(x) for x in g[1:]) - (4 if len(g) > 1 and g[1].startswith("s_") and vcost(g[1]) == 4 else 0) for g in groups]
    E, C, post = list(E), list(C), list(post)
    out, ne = [], 0
    for i, g in enumerate(groups):
        out += g
        left = 8*len(E) + 4*len(C) + sum(vcost(x) for x in post)
        room = sum(max(0, 8 - e) for e in ext[i:])
        free = max(0, 8 - ext[i]) + max(0, -(-(left - room) // (len(groups) - i)) + 3) // 4 * 4
        done = ne
        while free >= 4:
            if free >= 8 and E: out.append(E.pop(0)); ne += 1; free -= 8
            elif C and C[0][1] <= done: out.append(C.pop(0)[0]); free -= 4
            elif post: x = post.pop(0); out.append(x); free -= vcost(x)
            else: break
    return out + E + [c[0] for c in C] + post

def setup(A):
    t = TM
    A(f"""v_and_b32 v{A_L16}, 63, v{TID}
    v_lshlrev_b32 v{A_L16}, 4, v{A_L16}
    v_and_b32 v{t}, 0x380, v{A_L16}
    s_and_b32 s{S_T0}, s{S_WV}, 1
    s_lshl_b32 s{S_T0}, s{S_T0}, 13
    s_lshr_b32 s{S_T1}, s{S_WV}, 1
    s_lshl_b32 s{S_T1}, s{S_T1}, 19
    s_add_u32 s{S_T0}, s{S_T0}, s{S_T1}
    v_add3_u32 v{A_DM}, v{A_L16}, v{t}, s{S_T0}
    v_and_b32 v{t}, 0x300, v{A_L16}
    s_and_b32 s{S_T0}, s{S_WV}, 1
    s_lshl_b32 s{S_T0}, s{S_T0}, 8
    s_lshr_b32 s{S_T1}, s{S_WV}, 1
    s_lshl_b32 s{S_T1}, s{S_T1}, 18
    s_add_u32 s{S_T0}, s{S_T0}, s{S_T1}
    v_add3_u32 v{A_QA}, v{A_L16}, v{t}, s{S_T0}
    v_and_b32 v{A_MK}, 15, v{TID}
    s_lshl_b32 s{S_T0}, s{S_WV}, 4
    v_add_u32 v{A_MK}, s{S_T0}, v{A_MK}
    v_bfe_u32 v{t}, v{TID}, 5, 1
    v_lshlrev_b32 v{t}, 4, v{t}
    v_sub_u32 v{A_MK}, v{A_MK}, v{t}
    v_bfe_u32 v{t}, v{TID}, 4, 1
    v_lshlrev_b32 v{t}, 2, v{t}
    v_sub_u32 v{A_MK}, v{A_MK}, v{t}
    v_mov_b32 v{NEG}, s{S_NEG}
    v_mov_b32 v{t}, 0x3f803f80""")
    for i in range(4): A(f"v_accvgpr_write_b32 a{ON-256+i}, v{t}")
    if not PROF["st"]:
        for q in range(16): A(f"v_cmp_le_i32 s[{S_MK+2*q}:{S_MK+2*q+1}], {32*(q >> 3) + 8*((q >> 2) & 1) + (q & 3)}, v{A_MK}")

def qloads(sj):
    l = [[f"s_lshl_b32 s{S_T2}, s{sj}, 8"], [f"s_add_u32 s{S_T2}, s{S_T2}, s{S_H}"], [f"s_lshl_b32 s{S_T2}, s{S_T2}, 13"], [f"s_add_u32 s{S_T2}, s{S_T2}, {QA_}"],
         [f"s_cmp_lt_u32 s{sj}, 8", f"s_cselect_b32 s{S_T2}, s{S_T2}, {OOB}"]]
    for j in range(4):
        for m in range(4):
            if m % 2 == 0: l.append([f"s_add_u32 s{S_T3}, s{S_T2}, {(j << 19) + m*2048}"])
            l.append([f"buffer_load_dwordx4 {v(QN + 16*j + 4*m, 4)}, v{A_QA}, {buf(S_WS, s(S_T3))} offset:{(m % 2)*2048} sc1"])
    return l

def emit(A, name, L_fail, one=False, skip=3, lead=3, wol=False):
    global LEAD
    LEAD = lead
    def flat(l):
        for x in l:
            if isinstance(x, list): flat(x)
            else: A(x)
    def dma():
        l = [[f"s_add_u32 s{S_T0}, s{S_SO}, 4096"]]
        for hf in range(2):
            for t in range(2):
                l.append([f"s_add_u32 m0, s{S_M0}, {hf*4096 + t*896}"])
                l += [[f"buffer_load_dwordx4 v{A_DM}, {buf(S_WS, s(S_T0 if hf else S_SO))} offset:{m*2048 + t*128} sc1 lds"] for m in range(2)]
        return l + [[f"s_add_u32 s{S_SO}, s{S_SO}, {1 << 20}"], [f"s_add_u32 s{S_M0}, s{S_M0}, {BUFSZ}"], [f"s_and_b32 s{S_M0}, s{S_M0}, {4*BUFSZ-1}"]]
    kvbase = [[f"s_lshl_b32 s{S_SO}, s{S_H}, 14"], [f"s_add_u32 s{S_SO}, s{S_SO}, {KVA}"], [f"s_cmp_lt_u32 s{S_NJ}, 8", f"s_cselect_b32 s{S_SO}, s{S_SO}, {OOB}"]]
    fstore = [f"v_mov_b32 v{TM+3}, 1", "s_mov_b64 exec, 1", f"buffer_store_dword v{TM+3}, v{A_L16}, {buf(S_WS, s(S_PF))} sc1", "s_mov_b64 exec, -1"]
    def kvpoll(lo):
        A(f"v_and_b32 v{TM+4}, 3, v{TID}\nv_lshlrev_b32 v{TM+4}, 2, v{TM+4}\ns_lshl_b32 s{S_T1}, s{S_H}, 7\ns_add_u32 s{S_T1}, s{S_T1}, {F_AKV + 4*lo}")
        poll(A, TM + 4, TM + 5, s(S_T1), f"v_cmp_ne_u32 vcc, 1, v{TM+5}", L_fail)
    A("s_waitcnt lgkmcnt(0)")
    setup(A)
    A(f"s_lshl_b32 s{S_M0}, s{S_WV}, 13\ns_mov_b32 s{S_FL}, 0\ns_cmp_eq_u32 s{S_WV}, 0\ns_cselect_b32 s{S_PF}, s{S_PF}, {OOB}")
    kvpoll(0)
    A("s_waitcnt lgkmcnt(0)\ns_barrier")
    flat(kvbase); flat(dma()); flat(dma()); flat(dma())
    SA = G.G_SA
    A(f"v_and_b32 v{SA}, 0x380, v{A_L16}\nv_add_u32 v{SA}, v{SA}, v{A_L16}")
    A(f"s_lshr_b32 s{S_T0}, s{S_WV}, 1\ns_xor_b32 s{S_T0}, s{S_T0}, s{S_H}\ns_bitcmp1_b32 s{S_T0}, 0\ns_cbranch_scc1 {name}_qg")
    for own in (True, False):
        if own: A(f"s_and_b32 s{S_T0}, s{S_WV}, 1\ns_lshl_b32 s{S_T0}, s{S_T0}, 15\ns_add_u32 s{S_T0}, s{S_T0}, {LQ}\nv_add_u32 v{SA}, s{S_T0}, v{SA}")
        else: A.label(f"{name}_qg")
        for Pa in range(4):
            for tb in range(8):
                flat(G.drain(16*Pa + tb, True)); flat(G.drain(16*Pa + 8 + tb, True))
                r = v(G.PK + 4*(8*Pa + tb), 4)
                if own: A(f"ds_write_b128 v{SA}, {r} offset:{(tb >> 1)*8192 + Pa*2048 + (tb & 1)*128}")
                else:
                    if tb % 2 == 0: A(f"s_add_u32 s{S_T0}, s{S_QO}, {((tb >> 1) << 18) + Pa*2048}")
                    A(f"buffer_store_dwordx4 {r}, v{SA}, {buf(S_WS, s(S_T0))} offset:{(tb & 1)*128} sc1")
        A(f"s_waitcnt vmcnt({16 if own else 48}) lgkmcnt(0)")
        if own: A(f"s_branch {name}_qx")
    A.label(f"{name}_qx")
    A(f"""s_barrier
    v_and_b32 v{SA}, 0x7ff, v{A_QA}
    s_lshr_b32 s{S_T0}, s{S_WV}, 1
    s_lshl_b32 s{S_T0}, s{S_T0}, 13
    s_add_u32 s{S_T0}, s{S_T0}, {LQ}
    v_add_u32 v{SA}, s{S_T0}, v{SA}""")
    for j in range(4):
        for m in range(4): A(f"ds_read_b128 {v(QN + 16*j + 4*m, 4)}, v{SA} offset:{j*16384 + m*2048}")
    A("s_waitcnt lgkmcnt(0)")
    A.label(f"{name}_item")
    prof(A, "at0")
    A(f"""s_lshl_b32 s{S_TD}, s{S_J}, 2
    s_mov_b32 s{S_T}, 0
    s_mov_b32 s{S_HK}, 2
    s_mov_b32 s{S_CT}, s{S_NEG}
    s_mov_b32 s{S_DL}, s{S_NEG}
    v_mov_b32 v{A_KC}, v{A_L16}
    v_add_u32 v{A_KN}, {BUFSZ}, v{A_L16}
    v_mov_b32 v{A_VP}, v{A_L16}
    s_barrier""")
    kfr = lambda ad, blk: [(ad, blk*16384 + f*1024) for f in range(8)]
    vfr = lambda ad, blk: [(ad, blk*16384 + 8192 + f*1024) for f in range(8)]
    rd = lambda i, f: f"ds_read_b128 {R(FR + 4*(i % NR), 4)}, v{f[0]} offset:{f[1]}"
    k0 = kfr(A_KC, 0); vp = vfr(A_VP, 1)
    for i in range(LEAD): A(rd(i, k0[i]))
    for r in list(range(PB[1], PB[1] + 16, 2)) + list(range(NM, NM + 16, 2)): A(f"v_mov_b64 {v(r,2)}, 0")
    zg = [[f"v_mfma_f32_32x32x16_bf16 {R(r,16)}, {v(PB[1],4)}, {v(PB[1],4)}, 0"] for r in range(OA, LA + 16, 16)]
    flat(merge(zg, [f"v_accvgpr_write_b32 a{r}, v{QN+r}" for r in range(64)]))
    def s_mm(S, fi, js):
        return [[[mf(S + 8*j + 4*(f & 1), FR + 4*((fi + f) % NR), QA + 16*j + 4*(f >> 1), NM + 4*j if f < 2 else S + 8*j + 4*(f & 1))] for j in js] for f in range(8)]
    def pv_mm(P, js):
        return [[[mf(Oa(f, j), FR + 4*(f % NR), P + 4*j, Oa(f, j))] for j in js] for f in range(8)]
    def add_reads(fg, frs):
        for i, g in enumerate(fg):
            if i < len(frs): g[0].append(rd(i + LEAD, frs[i]))
            n = min(LEAD - 1, len(frs) + LEAD - 2 - i)
            if n >= 0:
                if len(g) > 1: g[-1].insert(1, f"s_waitcnt lgkmcnt({n})")
                else: g[-1].append(f"s_waitcnt lgkmcnt({n})")
    A(f"s_waitcnt lgkmcnt({LEAD-1})")
    prof(A, "at1")
    fg = s_mm(SB[0], 0, range(4)); add_reads(fg, k0[LEAD:] + vp[:LEAD])
    g = sum(fg, [])
    flat(g)
    cold = []
    def softmax(par, js, mj):
        S, P, t = SB[par], PB[par], TM
        pre = []
        if mj is not None and not PROF["st"]:
            pre += [f"v_cndmask_b32 v{S+8*mj+q}, v{NEG}, v{S+8*mj+q}, s[{S_MK+16*par+2*q}:{S_MK+16*par+2*q+1}]" for q in range(8)]
        elif mj is not None:
            for q in range(8):
                pre.append(f"v_cmp_le_i32 s[{30+2*(q % 4)}:{31+2*(q % 4)}], {32*par + 8*(q >> 2) + (q & 3)}, v{A_MK}")
                if q % 4 == 3: pre += [f"v_cndmask_b32 v{S+8*mj+q-3+z}, v{NEG}, v{S+8*mj+q-3+z}, s[{30+2*z}:{31+2*z}]" for z in range(4)]
        regs = [S + 8*j + 4*tk + r for tk in range(2) for j in js for r in range(4)]
        pre.append(f"v_max3_f32 v{t}, v{regs[0]}, v{regs[1]}, v{regs[2]}")
        for i in range(3, len(regs) - 1, 2): pre.append(f"v_max3_f32 v{t}, v{t}, v{regs[i]}, v{regs[i+1]}")
        pre += [f"v_max_f32 v{t}, v{t}, v{regs[-1]}", f"v_cmp_lt_f32 vcc, s{S_CT}, v{t}"]
        E, C = [], []
        for j in js:
            for i in range(0, 8, 2):
                r = S + 8*j + i
                E += [f"v_exp_f32 v{r}, v{r}", f"v_exp_f32 v{r+1}, v{r+1}"]
                C.append((f"v_cvt_pk_bf16_f32 v{P + 4*j + i//2}, v{r}, v{r+1}", len(E)))
        return pre, E, C
    def update(tag, par, js):
        S = SB[par]
        A.label(f"{name}_up{tag}")
        for j in range(4):
            if j not in js:
                A(f"v_mov_b32 v{AL+j}, 1.0"); continue
            s_ = S + 8*j; t, u = TM, TM + 1
            A(f"""v_max3_f32 v{t}, v{s_}, v{s_+1}, v{s_+2}
            v_max3_f32 v{t}, v{t}, v{s_+3}, v{s_+4}
            v_max3_f32 v{t}, v{t}, v{s_+5}, v{s_+6}
            v_max_f32 v{t}, v{t}, v{s_+7}
            v_mov_b32 v{u}, v{t}
            v_permlane32_swap_b32 v{u}, v{t}
            v_max_f32 v{t}, v{t}, v{u}
            v_mov_b32 v{u}, v{t}
            v_permlane16_swap_b32 v{u}, v{t}
            v_max3_f32 v{t}, v{t}, v{u}, s{S_DL}
            v_exp_f32 v{AL+j}, -v{t}""")
            for r in list(range(s_, s_ + 8)) + list(range(NM + 4*j, NM + 4*j + 4)): A(f"v_sub_f32 v{r}, v{r}, v{t}")
        A(f"s_cmp_eq_u32 s{S_DL}, 0\ns_cselect_b32 s{S_FL}, 1, 0\ns_mov_b32 s{S_DL}, 0\ns_mov_b32 s{S_CT}, s{S_THR}\ns_branch {name}_upr{tag}")
        A.label(f"{name}_rs{tag}")
        A(f"s_mov_b32 s{S_RET}, {tag}\ns_branch {name}_rescale")
    def epilogue(j):
        A(f"s_add_u32 s{S_T1}, s{S_CO}, {j*4 << 17}")
        l = [f"v_accvgpr_read_b32 v{TM+2}, a{LA-256+4*j}", f"v_rcp_f32 v{TM+2}, v{TM+2}"]
        for T in range(4):
            e = EP + 8*T
            l += [f"v_accvgpr_read_b32 v{e+4*jd+r}, a{Oa(2*T+jd, j)-256+r}" for jd in range(2) for r in range(4)]
            l += [f"v_mul_f32 v{e+i}, v{e+i}, v{TM+2}" for i in range(8)]
            l += [f"v_cvt_pk_bf16_f32 v{e+i}, v{e+2*i}, v{e+2*i+1}" for i in range(4)]
            l.append(f"buffer_store_dwordx4 {v(e,4)}, v{A_L16}, {buf(S_WS, s(S_T1))} offset:{T*1024} sc1")
        return l
    def step(par, jp, js, jn, mj, nxt, extra=(), post=(), tail=()):
        tag = len(cold)
        vf = vfr(A_VP, 1) if par == 0 else vfr(A_KC, 0)
        kf = kfr(A_KC, 1) if par == 0 else kfr(A_KN, 0)
        fg = pv_mm(PB[1 - par], jp) + (s_mm(SB[1 - par], 8, jn) if jn else [])
        add_reads(fg, vf[LEAD:] + (kf if jn else []) + nxt)
        lm = [[mf(LA + 4*j, ON, PB[1 - par] + 4*j, LA + 4*j)] for j in jp]
        g = lm + sum(fg, [])
        npv = len(lm) + 8*len(jp)
        free = [i for i in range(len(g) - 3) if len(g[i]) == 1 and i != npv - 2] if len(g) >= 3*len(extra) else list(range(len(g)))
        extra = list(extra)
        if len(g) >= 3*len(extra) and len(extra) > 8:
            g[0] += extra[0] + extra[1]; g[1] += extra[2]; g[2] += extra[3]; extra = extra[4:]; free = [i for i in free if i > 3]
        for i, e in enumerate(extra): g[free[i * len(free) // len(extra)]] += e
        if mj is None:
            assert len(g[npv - 2]) == 1 and all(x.startswith(("v_", "s_wait")) for x in g[npv - 1])
            g[npv - 2].append(f"s_cmp_eq_u32 s{S_FL}, 0")
        else: g[npv - 1].append(f"s_cmp_eq_u32 s{S_FL}, 0")
        g[npv - 1] += [f"s_cbranch_scc0 {name}_rs{tag}", f"{name}_rsr{tag}:"]
        for i, e in enumerate(tail): g[len(g) - len(tail) + i] += e
        pre, E, C = softmax(par, js, mj)
        npre = min(npv - 2, skip + (sum(vcost(x) for x in pre) + 6) // 7)
        g[npre] += [f"s_cbranch_vccnz {name}_up{tag}", f"{name}_upr{tag}:"]
        out = merge2(g[:npre], pre, skip) + pack(g[npre:], E, C, post)
        flat(out)
        cold.append((tag, par, js))
        return out
    rot = [f"v_mov_b32 v{A_VP}, v{A_KC}", f"v_mov_b32 v{A_KC}, v{A_KN}", f"v_add_u32 v{A_KN}, {BUFSZ}, v{A_KN}", f"v_and_b32 v{A_KN}, {4*BUFSZ-1}, v{A_KN}"]
    full = [0, 1, 2, 3]
    A(f"s_cmp_eq_u32 s{S_TD}, 0\ns_cbranch_scc1 {name}_last")
    A(".p2align 3")
    A.label(f"{name}_loop")
    step(0, full, full, full, None, vfr(A_KC, 0)[:LEAD], [[f"s_add_u32 s{S_T}, s{S_T}, 1"]], tail=[[f"s_cmp_eq_u32 s{S_T}, s{S_HK}"], [], []])
    A(f"s_waitcnt vmcnt(8)\ns_barrier\ns_cbranch_scc1 {name}_hk\n{name}_hkr:")
    step(1, full, full, full, None, vfr(A_KC, 1)[:LEAD], dma(), tail=[[f"s_cmp_lt_u32 s{S_T}, s{S_TD}"] + rot[:2], rot[2:], []])
    A(f"s_cbranch_scc1 {name}_loop")
    A.label(f"{name}_last")
    prof(A, "at2")
    co = [[f"s_lshl_b32 s{S_CO}, s{S_J}, 4"], [f"s_add_u32 s{S_CO}, s{S_CO}, s{S_WV}"], [f"s_lshl_b32 s{S_CO}, s{S_CO}, 5"], [f"s_add_u32 s{S_CO}, s{S_CO}, s{S_H}"],
          [f"s_lshl_b32 s{S_CO}, s{S_CO}, 12"], [f"s_add_u32 s{S_CO}, s{S_CO}, {CTXA}"]]
    ql = qloads(S_NJ)
    young = 8
    for d in range(4):
        js = full[d:]
        ex = {0: co, 1: kvbase, 2: ql}.get(d, [])
        if d == 2:
            A(f"s_cmp_ge_u32 s{S_NJ}, 8\ns_cbranch_scc1 {name}_nq\nv_mov_b32 v{TM+4}, 0\ns_lshr_b32 s{S_T1}, s{S_H}, 1\ns_lshl_b32 s{S_T1}, s{S_T1}, 5")
            A(f"s_add_u32 s{S_T1}, s{S_T1}, s{S_NJ}\ns_lshl_b32 s{S_T1}, s{S_T1}, 2\ns_add_u32 s{S_T1}, s{S_T1}, {F_AQ}")
            poll(A, TM + 4, TM + 5, s(S_T1), f"v_cmp_ne_u32 vcc, 1, v{TM+5}", L_fail)
            A.label(f"{name}_nq")
        step(0, full[max(d - 1, 0):], js, js, d, vfr(A_KC, 0)[:LEAD], ex)
        young += sum(1 for e in ex if e[0].startswith("buffer"))
        A((f"s_waitcnt vmcnt({young})\n" if d < 3 else "") + "s_barrier")
        ep = epilogue(d - 1) if d else []
        if d == 1: flat(fstore)
        out = step(1, js, js, full[d + 1:], d, vfr(A_KC, 1)[:LEAD], dma(), ep)
        vmo = [x for x in out if x.startswith("buffer")]
        young = len(vmo)
        if d < 3: flat(rot)
    fg = pv_mm(PB[1], [3]); add_reads(fg, vfr(A_KC, 1)[LEAD:])
    A(mf(LA + 12, ON, PB[1] + 12, LA + 12))
    flat(fg)
    prof(A, "at3")
    flat(epilogue(3))
    prof(A, "at4")
    A(f"""s_lshl_b32 s{S_PF}, s{S_J}, 5
    s_add_u32 s{S_PF}, s{S_PF}, s{S_H}
    s_lshl_b32 s{S_PF}, s{S_PF}, 2
    s_add_u32 s{S_PF}, s{S_PF}, {F_CTXA}
    s_cmp_eq_u32 s{S_WV}, 0
    s_cselect_b32 s{S_PF}, s{S_PF}, {OOB}
    s_mov_b32 s{S_J}, s{S_NJ}
    s_mov_b32 s{S_NJ}, 8
    s_waitcnt vmcnt(28)
    s_cmp_lt_u32 s{S_J}, {0 if one else 8}
    s_cbranch_scc1 {name}_item
    s_waitcnt vmcnt(0)
    s_barrier""")
    flat(fstore)
    A(f"s_branch {name}_done")
    A.label(f"{name}_hk")
    A(f"s_cmp_eq_u32 s{S_HK}, 2\ns_cbranch_scc0 {name}_hk2")
    flat(fstore)
    A(f"s_mov_b32 s{S_PF}, {OOB}\ns_mov_b32 s{S_HK}, 13\ns_branch {name}_hkr")
    A.label(f"{name}_hk2")
    kvpoll(4)
    if wol:
        A(f"v_lshlrev_b32 v9, 7, v{TID}\nv_lshlrev_b32 v10, 4, v{TID}\ns_add_u32 s{S_T1}, s97, 32768")
        A(f"buffer_load_dword v9, v9, {buf(S_W, 's97')}\nbuffer_load_dword v10, v10, {buf(S_W, s(S_T1))}")
    A(f"s_branch {name}_hkr")
    for c in cold: update(*c)
    A.label(f"{name}_rescale")
    for r in range(OA, LA + 16, 8):
        for k in range(8): A(f"v_accvgpr_read_b32 v{TM+8+k}, a{r-256+k}")
        for k in range(8): A(f"v_mul_f32 v{TM+8+k}, v{TM+8+k}, v{AL + ((r - OA + k) >> 2) % 4}")
        for k in range(8): A(f"v_accvgpr_write_b32 a{r-256+k}, v{TM+8+k}")
    A(f"s_mov_b32 s{S_FL}, 0")
    for tag in range(len(cold) - 1): A(f"s_cmp_eq_u32 s{S_RET}, {tag}\ns_cbranch_scc1 {name}_rsr{tag}")
    A(f"s_branch {name}_rsr{len(cold) - 1}")
    A.label(f"{name}_done")
```

```python
from common import *

XB, NXB = 32768, 3
WB, NWB = 16384, 4
LX = NWB * WB
G_XD, G_WD, G_XR, G_WR, G_SA, G_PF, G_JK = 1, 2, 3, 5, 13, 14, 15
G_T = 16
G_D = 20
A7 = 28
PK = 32
AV = 160
AA = 256
FA = 256 + 160
FB = 256 + 192
S_XO, S_WO, S_M0X, S_M0W, S_X32 = 30, 31, 32, 33, 34
S_NX, S_NB, S_PO, S_PF, S_S0, S_S1, S_SO, S_SB = 35, 36, 38, 39, 48, 37, 29, 60
S_CO, S_CF, S_NNB, S_NSW, S_NO, S_NF = 62, 63, 40, 41, 42, 43
S_NT, S_COL, S_XST, S_PV, S_CV, S_NV, S_PJ = 45, 46, 47, 49, 50, 51, 44
S_PS, S_PFO, S_SC, S_PA, S_PB, S_NXO = 96, 100, 40, 92, 93, 101
OPT = {}
acc = lambda i: (AV + 4*i) if i < 24 else (AA + 4*(i - 24))

def x_params(stride_reg):
    t = G_T
    return [f"v_lshrrev_b32 v{t}, 3, v{TID}", f"v_mul_lo_u32 v{t}, v{t}, s{stride_reg}", f"v_and_b32 v{G_XD}, 0x70, v{G_XD}",
            f"v_add_u32 v{G_XD}, v{G_XD}, v{t}", f"s_lshl_b32 s{S_X32}, s{stride_reg}, 5"]

def setup(A):
    t = G_T
    A(f"""v_bfe_u32 v{t}, v{TID}, 4, 3
    v_bfe_u32 v{t+1}, v{TID}, 7, 1
    v_lshlrev_b32 v{t+1}, 2, v{t+1}
    v_xor_b32 v{t}, v{t}, v{t+1}
    v_and_b32 v{t+1}, 7, v{TID}
    v_xor_b32 v{t}, v{t}, v{t+1}
    v_lshlrev_b32 v{G_XD}, 4, v{t}""")
    A(f"""v_bfe_u32 v{t+1}, v{TID}, 4, 2
    v_lshlrev_b32 v{t}, 2, v{t+1}
    v_and_b32 v{t+2}, 15, v{TID}
    v_xor_b32 v{t}, v{t}, v{t+2}
    v_bfe_u32 v{t+2}, v{TID}, 6, 1
    v_xor_b32 v{t}, v{t}, v{t+2}
    v_lshlrev_b32 v{t}, 4, v{t}
    v_lshl_add_u32 v{t}, v{t+1}, 13, v{t}
    v_lshl_add_u32 v{G_WD}, v{t+2}, 16, v{t}
    s_and_b32 s{S_T0}, s{S_WV}, 1
    s_lshr_b32 s{S_T1}, s{S_WV}, 1
    s_lshl_b32 s{S_T1}, s{S_T1}, 13
    s_lshl_b32 s{S_M0W}, s{S_T0}, 11
    s_add_u32 s{S_M0W}, s{S_M0W}, s{S_T1}
    s_lshl_b32 s{S_M0X}, s{S_WV}, 10
    s_add_u32 s{S_M0X}, s{S_M0X}, {LX}""")
    A(f"""v_bfe_u32 v{t}, v{TID}, 3, 1
    v_lshlrev_b32 v{t}, 11, v{t}
    v_and_b32 v{t+2}, 7, v{TID}
    v_lshl_add_u32 v{t}, v{t+2}, 7, v{t}
    v_bfe_u32 v{t+2}, v{TID}, 1, 3
    v_xor_b32 v{t+2}, v{t+2}, v{t+1}
    v_lshl_add_u32 v{t}, v{t+2}, 4, v{t}
    s_lshl_b32 s{S_T0}, s{S_T0}, 14
    s_add_u32 s{S_T0}, s{S_T0}, {LX}
    v_add_u32 v{G_XR}, s{S_T0}, v{t}
    v_xor_b32 v{G_XR+1}, 64, v{G_XR}""")
    A(f"""v_bfe_u32 v{t+2}, v{TID}, 2, 2
    v_mul_u32_u24 v{t}, {256+64}, v{t+2}
    v_lshl_add_u32 v{t}, v{t+1}, 11, v{t}
    v_bfe_u32 v{t+2}, v{TID}, 1, 1
    v_lshl_add_u32 v{t}, v{t+2}, 5, v{t}
    v_bfe_u32 v{t+2}, v{TID}, 4, 1
    v_lshl_add_u32 v{t}, v{t+2}, 4, v{t}
    v_and_b32 v{t+2}, 1, v{TID}
    v_lshl_add_u32 v{t}, v{t+2}, 3, v{t}
    v_add_u32 v{G_WR}, s{S_T1}, v{t}""")
    for x in wxor(): A(x)

def wxor(): return [f"v_xor_b32 v{G_WR+q}, {64*(q >> 1) + 16*(q & 1)}, v{G_WR}" for q in range(1, 8)]

def xdma(half):
    l = []
    for j in range(4):
        so = f"s_add_u32 s{S_S0}, s{S_S0}, s{S_X32}" if (j or half) else f"s_mov_b32 s{S_S0}, s{S_XO}"
        l.append([[so], [f"s_add_u32 m0, s{S_M0X}, {half*16384 + j*4096}"], [f"buffer_load_dwordx4 v{G_XD}, {buf(S_X, s(S_S0))} lds"]])
    post = []
    if half: post = [[f"s_add_u32 s{S_XO}, s{S_XO}, 128"], [f"s_add_u32 s{S_M0X}, s{S_M0X}, {XB}"], [f"s_sub_u32 s{S_S0}, s{S_M0X}, {NXB*XB}"],
                     [f"s_cmp_ge_u32 s{S_M0X}, {LX + NXB*XB}", f"s_cselect_b32 s{S_M0X}, s{S_S0}, s{S_M0X}"]]
    return l, post

def wdma():
    l = []
    for i in (0, 1, 4, 5):
        l.append([[f"s_add_u32 s{S_S1}, s{S_WO}, {i*4*8192}"], [f"s_add_u32 m0, s{S_M0W}, {i*1024}"], [f"buffer_load_dwordx4 v{G_WD}, {buf(S_W, s(S_S1))} {OPT.get('wfl', '')} lds"]])
    return l, [[f"s_add_u32 s{S_WO}, s{S_WO}, {32*8192}"], [f"s_add_u32 s{S_M0W}, s{S_M0W}, {WB}"], [f"s_and_b32 s{S_M0W}, s{S_M0W}, {NWB*WB-1}"]]

def store_setup(s_v):
    t = G_T
    return [[f"v_bfe_u32 v{t}, v{TID}, 3, 3"], [f"v_lshlrev_b32 v{t}, 4, v{t}"], [f"v_and_or_b32 v{t}, v{TID}, 7, v{t}"],
            [f"v_bfe_u32 v{t+1}, v{TID}, 4, 2"], [f"v_lshlrev_b32 v{t+1}, 5, v{t+1}"],
            [f"v_bfe_u32 v{t+2}, v{TID}, 1, 3"], [f"v_or_b32 v{t+1}, v{t+1}, v{t+2}"], [f"v_and_b32 v{t+2}, 1, v{TID}"],
            [f"v_lshl_or_b32 v{t+1}, v{t+2}, 4, v{t+1}"],
            [f"s_bitcmp1_b32 s{s_v}, 1", f"s_cselect_b64 vcc, {0 if OPT.get('noperm') else -1}, 0"], [f"s_movk_i32 s{S_PJ}, 0x80"],
            [f"v_cndmask_b32 v{t}, v{t}, v{t+1}, vcc"], [f"v_lshlrev_b32 v{G_SA}, 4, v{t}"],
            [f"s_lshr_b32 s{S_PB}, s{s_v}, 2"], [f"s_lshr_b32 s{S_PB}, 0x80000, s{S_PB}"],
            [f"s_bitcmp1_b32 s{s_v}, 0", f"s_cselect_b32 s{S_PA}, s{S_PB}, 0x800", f"s_cselect_b32 s{S_PB}, 0x800, s{S_PB}"], [f"s_sub_u32 s{S_PB}, s{S_PB}, s{S_PJ}"]]

def pkreg(i):
    ta, tb = i >> 3, i & 7
    return PK + 4*(8*(ta >> 1) + tb) + 2*(ta & 1)

def drain(i, scale=False):
    a, p, l = acc(i), pkreg(i), []
    t = G_D + 4*(i % 2)
    if a >= 256:
        l += [f"v_accvgpr_read_b32 v{t+k}, a{a-256+k}" for k in range(4)]; a = t
    if scale:
        l += [f"v_pk_mul_f32 {v(t+k,2)}, {v(a+k,2)}, s[{S_SC}:{S_SC+1}] op_sel_hi:[1,0]" for k in (0, 2)]; a = t
    return l + [f"v_cvt_pk_bf16_f32 v{p+k}, v{a+2*k}, v{a+2*k+1}" for k in range(2)]

def pstore(n, s_base, fl=None):
    if n == 0: pre = [[f"s_mov_b32 s{S_SB}, s{s_base}"], [f"s_mov_b32 s{S_SO}, s{s_base}"]]
    elif n % 8 == 0: pre = [[f"s_add_u32 s{S_SB}, s{S_SB}, s{S_PA}"], [f"s_mov_b32 s{S_SO}, s{S_SB}"]]
    else: pre = [[f"s_add_u32 s{S_SO}, s{S_SO}, s{S_PJ if n & 1 else S_PB}"]]
    return pre, f"buffer_store_dwordx4 {v(PK + 4*n, 4)}, v{G_SA}, {buf(S_WS, s(S_SO))} {OPT['st'] if fl is None else fl}"

def flag_store(s_f):
    return [[f"v_mov_b32 v{G_T}, 0"], [f"v_mov_b32 v{G_T+1}, 1"], [f"s_cmp_eq_u32 s{S_WV}, 0", f"s_cselect_b32 s{S_SO}, s{s_f}, {OOB}"],
            ["s_mov_b64 exec, 1", f"buffer_store_dword v{G_T+1}, v{G_T}, {buf(S_WS, s(S_SO))} sc1", "s_mov_b64 exec, -1"]]

class Gaps:
    def __init__(self, mm, cap=2):
        self.mm = mm; self.g = [[] for _ in mm]; self.cap = cap
    def at(self, i, atom): self.g[i].append(atom)
    sc1 = staticmethod(lambda a: len(a) == 1 and a[0].startswith("s_"))
    def load(self, i): return sum(len(a) for a in self.g[i]) - (1 if self.g[i] and self.sc1(self.g[i][0]) else 0)
    def front(self, i, atom):
        self.g[i].insert(0, atom)
    def seq(self, lo, hi, atoms, step=0, cap=None):
        i = lo; cap = cap or self.cap
        for a in atoms:
            while i < hi - 1 and self.g[i] and self.load(i) + len(a) > cap: i += 1
            self.g[i].append(a); i = min(i + step, hi - 1)
        return i
    def out(self):
        l = []
        for m, g in zip(self.mm, self.g):
            l.append(m)
            for a in g: l += a
        return l

def run(A, name, par_a, par_x, par_w, pre_flag, s_urgent, s_half=None, leave=None):
    fa = lambda ta, par: R(A7 if (ta == 7 and par) else FA + 4*ta, 4)
    fb = lambda tb, par: R(FB + 32*par + 4*tb, 4)
    def xrd(dst, t, kk): return [[f"ds_read_b128 {dst}, v{G_XR + (kk ^ (t & 1))} offset:{(t >> 1)*4096 + (t & 1)*1024}"]]
    def wrd(dst, t):
        r = int(dst[2:dst.index(":")]) + (256 if dst[0] == "a" else 0)
        return [[f"ds_read_b64_tr_b16 {R(r + 2*jj, 2)}, v{G_WR+t} offset:{jj*1024}"] for jj in range(2)]
    def reads(swap, par, kk):
        ra = [(xrd(fa(t, par), t, kk) if swap else wrd(fa(t, par), t)) for t in range(8)]
        rb = [(wrd(fb(t, par), t) if swap else xrd(fb(t, par), t, kk)) for t in range(8)]
        return ra, rb
    def flat(l):
        for x in l:
            if isinstance(x, (list, tuple)): flat(x)
            else: A(x)
    def filt(l):
        for k in OPT.get('no', []): l = [x for x in l if k not in x]
        return l
    rotw = [[f"v_add_u32 v{G_WR}, {WB}, v{G_WR}"], [f"v_and_b32 v{G_WR}, {NWB*WB-1}, v{G_WR}"]] + [[x] for x in wxor()]
    rotx = [[f"v_add_u32 v{G_XR}, {XB}, v{G_XR}"], [f"v_subrev_u32 v{G_T+3}, {NXB*XB}, v{G_XR}"], [f"v_cmp_le_u32 vcc, {LX + NXB*XB}, v{G_XR}"],
            [f"v_cndmask_b32 v{G_XR}, v{G_XR}, v{G_T+3}, vcc"], [f"v_xor_b32 v{G_XR+1}, 64, v{G_XR}"]]
    setup(A)
    A(f"s_mov_b32 s{S_NX}, 0")
    flat(par_a); flat(par_x); flat(par_w)
    prof(A, name + "0")
    flat(xdma(0)); flat(xdma(1)); flat(wdma())
    flat(wdma()); flat(xdma(0))
    flat(wdma()); flat(xdma(1))
    flat(wdma()); flat(xdma(0))
    A(f"s_mov_b32 s{S_CO}, {OOB}\ns_mov_b32 s{S_CF}, {OOB}\ns_mov_b32 s{S_CV}, 0")
    A(f"s_waitcnt vmcnt(24)\ns_barrier")
    prof(A, name + "1")
    A(f"s_cmp_eq_u32 s{S_NSW}, 0\ns_cbranch_scc0 {name}_p1")
    flat(reads(False, 0, 0))
    A(f"s_branch {name}_p2\n{name}_p1:")
    flat(reads(True, 0, 0))
    A.label(f"{name}_p2")
    flat(rotw)
    dr = [drain(i) for i in range(64)]
    A.label(f"{name}_tile")
    for i in range(1, 6):
        if PROF["on"] and f"tile{i}" in PROF["on"]:
            A(f"s_cmp_eq_u32 s{S_NX}, {i}\ns_cbranch_scc0 {name}_pt{i}"); prof(A, f"tile{i}"); A.label(f"{name}_pt{i}")
    shift = [[f"s_mov_b32 s{S_PO}, " + (f"{OOB}" if OPT['drop'] else f"s{S_CO}")], [f"s_mov_b32 s{S_PF}, s{S_CF}"], [f"s_mov_b32 s{S_PV}, s{S_CV}"],
             [f"s_mov_b32 s{S_CO}, s{S_NO}"], [f"s_mov_b32 s{S_CF}, s{S_NF}"], [f"s_mov_b32 s{S_CV}, s{S_NV}"], [f"s_mov_b32 s{S_NB}, s{S_NNB}"],
             [f"s_add_u32 s{S_NX}, s{S_NX}, 1"]]
    A(f"""s_cmp_eq_u32 s{S_NX}, 1
    s_cbranch_scc1 {name}_first
    {name}_go:
    s_cmp_eq_u32 s{S_NSW}, 0
    s_cbranch_scc0 {name}_v""")
    ND = OPT.get('nd', 40)
    HL = OPT.get('hl', 14)
    hs = [h for h in range(1, HL + 1) if h not in (10, 11)]
    HF = HL + 3 if HL >= 12 else (14 if HL == 9 else 13 if HL == 8 else None)
    plan = {h: [] for h in hs}
    for n in range(32): plan[hs[n * len(hs) // 32]].append(n)
    for vn, swap in (("k", False), ("v", True)):
        def kstep(h, nswap, hist):
            par, hh = h & 1, h & 1
            A(f"s_waitcnt vmcnt({hist[-1] + hist[-2]}) lgkmcnt(0)" + ("" if OPT.get('nobar') else "\ns_barrier"))
            mm = [f"v_mfma_f32_16x16x32_bf16 {R(acc(i),4)}, {fa(i >> 3, par)}, {fb(i & 7, par)}, {'0' if h == 0 else R(acc(i),4)}" for i in range(64)]
            G = Gaps(mm)
            ra, rb = reads(nswap, 1 - par, 1 - hh)
            xl, xp = xdma(1 - hh); wl, wp = wdma()
            off = 0 if not swap else 2
            dp = OPT.get('dp', 7)
            for q, d in enumerate(wl + xl): G.seq(dp*q + 1 + off, 64, d, step=1)
            G.seq(dp*3 + 4 + off, 56, wp, step=1, cap=1); G.seq(dp*7 + 4 + off, 63, xp, step=1)
            n = 8
            st = plan.get(h, [])
            for q, k in enumerate(st):
                pre, x = pstore(k, S_PO)
                p = (2*dp if len(st) > 3 else 3*dp)*q + (6 if not swap else OPT.get('vo', 16))
                G.seq(p - 2, p, pre, step=1); G.at(p, [x]); n += 1
            for t in range(7): G.seq(8*t + 7, 64, ra[t], step=1, cap=3)
            if OPT['pf'] and h in [x for x in range(OPT['pf0'], 18) if x not in (10, 11)][:OPT['npf']]:
                G.at(58, [f"buffer_load_dword v{G_JK}, v{G_PF}, {buf(S_PS, s(S_PFO))}"]); G.front(59, [f"s_add_u32 s{S_PFO}, s{S_PFO}, 16384"]); n += 1
            e = G.seq(0, 52, sum(rb, []) + ra[7], step=2, cap=1)
            if h == HF: G.seq(32, 44, flag_store(S_PF)); n += 1
            if h == 12: G.seq(0, 56, par_a, cap=2)
            if h == 13: G.seq(0, dp*4, par_x); G.seq(44, 60, par_w, cap=2)
            if nswap:
                G.seq(e + 1, 62, rotw)
                if hh == 0: G.seq(56, 63, rotx, step=1)
            else:
                G.seq(9, 16, rotw[:2])
                for q in range(1, 7): G.seq(8*q + 9, 63, [rotw[1 + q]])
                G.seq(e + 1, 62, [rotw[8]] + (rotx if hh == 0 else []), step=1)
            if h == 17:
                i = 0
                for t in range(ND): i = G.seq(max(i, t + 4), 64, [[x] for x in dr[t]], cap=OPT.get('dcap', 4))
            if h == 0:
                i = 0
                for t in range(ND, 64): i = G.seq(min(i, t - 1), t, [[x] for x in dr[t]], cap=OPT.get('dcap', 4))
                G.seq(36, 55, shift + store_setup(S_PV), cap=6)
            for x in filt(G.out()): A(x)
            hist.append(n)
        A(".p2align 3")
        A.label(f"{name}_{vn}")
        hist = [8, 8]; saved = None
        for h in range(17):
            if h == 10:
                A(f"s_cmp_eq_u32 s{S_NB}, 0\ns_cbranch_scc1 {name}_{vn}12"); saved = hist[-2:]
            if h == 12:
                A.label(f"{name}_{vn}12"); hist[-2:] = [min(x, y) for x, y in zip(hist[-2:], saved)]
            kstep(h, swap, hist)
        A(f"s_cmp_eq_u32 s{S_NSW}, 0\ns_cbranch_scc0 {name}_{vn}17v")
        for nswap in (False, True):
            if nswap: A.label(f"{name}_{vn}17v")
            kstep(17, nswap, list(hist))
            A(f"s_cmp_lt_u32 s{S_NX}, s{S_NT}\ns_cbranch_scc1 {name}_tile\ns_branch {name}_end")
    def flush(scale, s_o, s_f, fl=None):
        flat(store_setup(S_CV))
        if s_half:
            A(f"s_and_b32 s{S_T0}, s{S_WV}, s{s_half}\ns_cbranch_scc0 {name}_h1\ns_barrier\n{name}_h1:")
        for Pa in range(4):
            for tb in range(8):
                flat(drain(16*Pa + tb, scale)); flat(drain(16*Pa + 8 + tb, scale)); flat(pstore(8*Pa + tb, s_o, fl))
        pre_flag(A)
        if s_half:
            A(f"s_andn2_b32 s{S_T0}, s{s_half}, s{S_WV}\ns_cbranch_scc0 {name}_h2\ns_barrier\ns_add_u32 s{S_SB}, s{s_f}, 32")
            flat(flag_store(S_SB))
            A.label(f"{name}_h2")
        A("s_waitcnt vmcnt(0) lgkmcnt(0)\ns_barrier")
        flat(flag_store(s_f))
    A.label(f"{name}_first")
    A(f"s_mov_b32 s{S_PFO}, {OOB}\ns_cmp_eq_u32 s{s_urgent}, 0\ns_cbranch_scc0 {name}_end")
    pre_flag(A)
    A(f"s_branch {name}_go")
    A.label(f"{name}_end")
    prof(A, name + "2")
    A(leave)
    flush(False, S_CO, S_CF)
    A(f"s_mov_b32 s{S_CO}, {OOB}\ns_mov_b32 s{S_CF}, {OOB}\ns_cmp_lt_u32 s{S_NX}, s{S_NT}\ns_cbranch_scc1 {name}_go")
    prof(A, name + "3")
```

```python
from common import *

W0 = 128
NC = 16
CF = 16
ACS = (80, 96)
WS_ = 112
L16, SRC, WRA, OUTA, FLA, TMP, RDA, TRA = 1, 2, 3, 4, 5, 6, 7, 8
LRED = 131072
S_SL, S_U, S_MK, S_CTX, S_FLG, S_FSH, S_COL, S_CUR, S_NXT, S_RDY, S_UA, S_MORE, S_OUTO = 40, 41, 42, 44, 45, 46, 47, 48, 49, 50, 51, 52, 53
S_FC = 54
S_OFF = 30
OPT = {'rot': True}
inlds = lambda k: k % 4 == 3
rk = lambda k: k - k // 4

def trr(dst, slot):
    return [f"ds_read_b64_tr_b16 {R(dst + 4*tt + 2*j, 2)}, v{TRA+tt} offset:{slot*4096 + j*1024}" for tt in range(4) for j in range(2)]

def load_weights(A):
    t = 12
    A(f"""v_and_b32 v{L16}, 63, v{TID}
    v_lshlrev_b32 v{L16}, 4, v{L16}
    v_bfe_u32 v{t}, v{TID}, 3, 3
    v_bfe_u32 v{t+1}, v{TID}, 5, 1
    v_lshl_add_u32 v{t+1}, v{t+1}, 3, v{t}
    v_mul_u32_u24 v{t+1}, s{S_COL}, v{t+1}
    v_mul_u32_u24 v{t}, 1152, v{t}
    v_add_u32 v{t}, v{t}, v{t+1}
    s_mul_i32 s{S_RDY}, s{S_COL}, 15
    s_sub_u32 s{S_RDY}, {16*1152}, s{S_RDY}
    v_bfe_u32 v{t+1}, v{TID}, 4, 2
    v_lshlrev_b32 v{t+1}, 1, v{t+1}
    v_and_b32 v{t+2}, 7, v{TID}
    v_xor_b32 v{t+1}, v{t+1}, v{t+2}
    v_lshl_add_u32 v{t}, v{t+1}, 4, v{t}
    s_mul_i32 s{S_T0}, s{S_WV}, {1024*1152}
    s_lshl_b32 s{S_T1}, s{S_SL}, 7
    s_add_u32 s{S_T0}, s{S_T0}, s{S_T1}
    v_add_u32 v{SRC}, s{S_T0}, v{t}
    s_lshl_b32 s{S_T2}, s{S_WV}, 15""")
    A(f"""v_bfe_u32 v{t}, v{TID}, 2, 3
    v_lshlrev_b32 v{t}, 7, v{t}
    v_bfe_u32 v{t+1}, v{TID}, 5, 1
    v_lshl_add_u32 v{t}, v{t+1}, 11, v{t}
    v_bfe_u32 v{t+1}, v{TID}, 3, 2
    v_lshl_add_u32 v{t}, v{t+1}, 5, v{t}
    v_and_b32 v{t+1}, 3, v{TID}
    v_lshl_add_u32 v{t}, v{t+1}, 3, v{t}
    v_add_u32 v{TRA}, s{S_T2}, v{t}""")
    for tt in range(1, 4): A(f"v_xor_b32 v{TRA+tt}, {32*tt}, v{TRA}")
    for q in range(8):
        if OPT['rot']: A(f"s_add_u32 s{S_T0}, s{S_SL}, {q}\ns_and_b32 s{S_T0}, s{S_T0}, 7\ns_lshl_b32 s{S_OFF+q}, s{S_T0}, 12")
        else: A(f"s_mov_b32 s{S_OFF+q}, {q*4096}")
    order = [k for k in range(32) if not inlds(k)] + [k for k in range(32) if inlds(k)]
    def issue(n):
        k = order[n]
        A(f"s_mul_i32 s{S_T1}, s{S_OFF + k//4}, 36")
        for q in range(4):
            if q == 2: A(f"s_add_u32 s{S_T1}, s{S_T1}, s{S_RDY}")
            A(f"s_add_u32 m0, s{S_T2}, {(n % 8)*4096 + q*1024}\ns_add_u32 s{S_T0}, s{S_T1}, {((k % 4)*32 + (q & 1)*8)*1152}")
            A(f"buffer_load_dwordx4 v{SRC}, {buf(S_W, s(S_T0))} lds")
    for n in range(8): issue(n)
    for n in range(24):
        A("s_waitcnt vmcnt(28)")
        for x in trr(W0 + 16*n, n % 8): A(x)
        A("s_waitcnt lgkmcnt(0)")
        issue(n + 8)
    A("s_waitcnt vmcnt(0)")

def run(A, name, L_fail, slp=1, back=None, fc=0):
    t = 12
    A(f"""v_and_b32 v{t}, 15, v{TID}
    v_mul_u32_u24 v{t}, 2304, v{t}
    v_lshrrev_b32 v{t+1}, 4, v{TID}
    v_lshl_add_u32 v{t}, v{t+1}, 3, v{t}
    s_lshl_b32 s{S_T0}, s{S_SL}, 7
    s_add_u32 s{S_T0}, s{S_T0}, s{S_COL}
    v_add_u32 v{OUTA}, s{S_T0}, v{t}
    v_and_b32 v{FLA}, 7, v{TID}
    v_lshlrev_b32 v{FLA}, 2, v{FLA}
    s_lshl_b32 s{S_T0}, s{S_WV}, 5
    v_add_u32 v{FLA}, s{S_T0}, v{FLA}
    v_lshlrev_b32 v{WRA}, 4, v{TID}
    v_add_u32 v{WRA}, {LRED}, v{WRA}
    s_lshl_b32 s{S_T0}, s{S_WV}, 12
    s_add_u32 s{S_T0}, s{S_T0}, {LRED}
    v_add_u32 v{RDA}, s{S_T0}, v{L16}
    s_lshl_b32 s{S_T0}, s{S_WV}, 15
    s_add_u32 s{S_CTX}, s{S_CTX}, s{S_T0}""")
    fl = lambda u: f"s_lshr_b32 s{S_T1}, s{u}, s{S_FSH}\ns_lshl_b32 s{S_T1}, s{S_T1}, 7\ns_add_u32 s{S_T1}, s{S_T1}, s{S_FLG}"
    pop = lambda d: f"s_ff1_i32_b64 s{d}, s[{S_MK}:{S_MK+1}]\ns_bitset0_b64 s[{S_MK}:{S_MK+1}], s{d}\ns_lshl_b32 s{d}, s{d}, 1\ns_xor_b32 s{d}, s{d}, s{S_UA}\ns_and_b32 s{d}, s{d}, 127"
    A(pop(S_U))
    A("v_mov_b32 v14, 0\nv_mov_b32 v15, 0")
    def ld(k, base):
        return ([f"s_add_u32 s{S_T0}, s{base}, s{S_OFF + k//4}"] if k % 4 == 0 else [],
                f"buffer_load_dwordx4 {v(CF + 4*(k % NC), 4)}, v{L16}, {buf(S_WS, s(S_T0))} offset:{(k % 4)*1024} sc1")
    fload = f"buffer_load_dword v{TMP}, v{FLA}, {buf(S_WS, s(S_T1))} sc1"
    rw = lambda AC: [f"ds_write_b128 v{WRA}, {v(AC + 4*tt, 4)} offset:{tt*4096}" for tt in range(4)]
    rr = lambda AC: [f"ds_read_b128 {v(AC + 4*i, 4)}, v{RDA} offset:{i*1024}" for i in range(4)]
    ra = lambda AC: [f"v_add_f32 v{AC+j}, v{AC+j}, v{AC+4*i+j}" for i in range(1, 4) for j in range(4)] + \
                    [f"v_cvt_pk_bf16_f32 v12, v{AC}, v{AC+1}", f"v_cvt_pk_bf16_f32 v13, v{AC+2}, v{AC+3}",
                     f"v_xor_b32 v{WRA}, 16384, v{WRA}", f"v_xor_b32 v{RDA}, 16384, v{RDA}"]
    rs = f"buffer_store_dwordx2 v[12:13], v{OUTA}, {buf(S_X, s(S_OUTO))}"
    KH, KS = 14, 13
    nxt = (f"s_cmp_lg_u64 s[{S_MK}:{S_MK+1}], 0\ns_cselect_b32 s{S_MORE}, 1, 0|" + (pop(S_T3) + "\n" + fl(S_T3)).replace("\n", "|") +
           f"|s_lshl_b32 s{S_NXT}, s{S_T3}, 17|s_add_u32 s{S_NXT}, s{S_NXT}, s{S_CTX}").split("|")
    def kstep(k, AC, pend):
        kn = (k + 1) % 32
        extra = sum(1 for e in ((2, KS, 15) if fc else (2, KS)) if e < k and k + 1 <= e + NC)
        wt = f"s_waitcnt vmcnt({NC - 2 + extra})" + (" lgkmcnt(0)" if inlds(kn) else "")
        pre, l = ld(k + NC, S_CUR) if k + NC < 32 else ld(k + NC - 32, S_NXT)
        for tt in range(4):
            a = v(AC + 4*tt, 4)
            wr = v(WS_ + 4*tt, 4) if inlds(k) else R(W0 + 16*rk(k) + 4*tt, 4)
            A(f"v_mfma_f32_16x16x32_bf16 {a}, {wr}, {v(CF + 4*(k % NC), 4)}, {'0' if k == 0 else a}")
            if tt == 3: A(wt)
            if k < 3 and 4*k + tt < len(nxt): A(nxt[4*k + tt])
            if k == NC - 1 and tt == 0: A(f"s_waitcnt vmcnt({NC - 3})\nv_cmp_ne_u32 vcc, 1, v{TMP}")
            if k == NC - 1 and tt == 2:
                A(f"s_cmp_eq_u64 vcc, 0\ns_cselect_b32 s{S_RDY}, s{S_MORE}, 0")
            if k == NC and tt == 0: A(f"s_cmp_eq_u32 s{S_RDY}, 1\ns_cselect_b32 s{S_NXT}, s{S_NXT}, {OOB}")
            if tt == 2:
                for x in pre: A(x)
            if k % 4 < 2: A(trr(WS_, k // 4)[4*(k % 4) + tt])
            if pend is not None:
                if k == 3: A(rw(pend)[tt])
                if k == 7: A(rr(pend)[tt])
                if k == 11: A(ra(pend)[2*tt]); A(ra(pend)[2*tt + 1])
                if k in (12, 13): A(ra(pend)[8 + 4*(k - 12) + tt])
        A(l)
        if pend is not None and k == 6: A("s_barrier")
        if k == 2: A(fload)
        if k == 15 and fc: A(f"v_add_u32 v14, 1, v14\nbuffer_store_dword v14, v15, {buf(S_WS, s(S_FC))}")
        if k == KS: A(rs if pend is not None else fload)
    A.label(f"{name}_w")
    if PROF["on"] and "opw" in PROF["on"]: A(f"s_add_u32 s100, s100, 1")
    A(fl(S_U))
    poll(A, FLA, TMP, s(S_T1), f"v_cmp_ne_u32 vcc, 1, v{TMP}", L_fail, sleep=slp, back=back)
    prof(A, "opp")
    A(f"s_lshl_b32 s{S_CUR}, s{S_U}, 17\ns_add_u32 s{S_CUR}, s{S_CUR}, s{S_CTX}")
    for k in range(NC):
        pre, l = ld(k, S_CUR)
        for x in pre + [l]: A(x)
    A(f"s_waitcnt vmcnt({NC - 1})")
    for k in range(KH): kstep(k, ACS[0], None)
    A(f"s_branch {name}_t0")
    for r in range(2):
        A.label(f"{name}_r{r}")
        prof(A, f"op{r}")
        for k in range(32):
            if k == KH: A.label(f"{name}_t{r}")
            kstep(k, ACS[r], ACS[1 - r] if k < KH else None)
        prof(A, "opm")
        A(f"""s_mul_i32 s{S_OUTO}, s{S_U}, {16*2304}
        s_mov_b32 s{S_U}, s{S_T3}
        s_mov_b32 s{S_CUR}, s{S_NXT}
        s_cmp_eq_u32 s{S_RDY}, 0""")
        A(f"s_cbranch_scc1 {name}_c0" if r == 0 else f"s_cbranch_scc0 {name}_r0")
    for r in (1, 0):
        AC = ACS[r]
        A.label(f"{name}_c{r}")
        for x in rw(AC): A(x)
        A("s_waitcnt lgkmcnt(0)\ns_barrier")
        for x in rr(AC): A(x)
        for i in range(1, 4):
            A(f"s_waitcnt lgkmcnt({3 - i})")
            A(f"v_pk_add_f32 {v(AC,2)}, {v(AC,2)}, {v(AC+4*i,2)}\nv_pk_add_f32 {v(AC+2,2)}, {v(AC+2,2)}, {v(AC+4*i+2,2)}")
        for x in ra(AC)[12:14] + [rs] + ra(AC)[14:]: A(x)
        A(f"s_cmp_lg_u32 s{S_MORE}, 0\ns_cbranch_scc1 {name}_w")
        if r == 1: A(f"s_branch {name}_x")
    A.label(f"{name}_x")
```

```python
from asmlib import *
from layout import *

L_X   = 0
XRB   = 2048 + 64
L_O   = 4224
L_JUNK = L_O + 2048
L_ZERO = L_JUNK + 256
L_MEM = 6656
L_KX  = L_MEM + 9216
L_W   = 24576
NLDS = 17
IDX, XW2, WA, T16, XW, XR, WRM, OW, T4R, PS, PS1, MS = range(12)
MR, ACC, STG, VACC, VX = 12, 24, 40, 56, 64
WREG0 = 72
S_WS = 8
S_W  = 12
S_H, S_WV, S_C, S_STEP, S_T0, S_T1, S_SPIN = 16, 17, 18, 19, 20, 21, 22
S_JOBLD, S_JOBST, S_RST0, S_RST1, S_RST2 = 23, 24, 25, 26, 27
S_PB, S_PO = 28, 29
S_KV, S_KVM = 30, 31
S_GA, S_ST, S_PF = 33, 34, 35
S_MK = 36
S_P0, S_P1 = 46, 47
S_HASJOB = 48
S_A, S_B, S_D, S_E = 49, 50, 51, 52
S_F = 53
S_G1, S_G2 = 6, 7
S_BP, S_BR, S_BL, S_BV = 82, 83, 84, 85
S_M64 = 4
S_PN = 85
S_ON = 14
S_KM = 86
S_CNT1, S_CNT2, S_CNT3 = 54, 55, 32
S_TS = 60

NREP = 4
TORD = [8, 0, 1, 2, 3, 4, 5, 6, 7]
def frag_map():
    order = []
    for c in range(9):
        for m in "qk":
            for t in range(2): order.append((m, c, t))
    for c in range(9):
        for t in range(2): order.append(("v", c, t))
    for T in range(9):
        for co in range(2): order.append(("o", T, co))
    lds = [("k", c, 1) for c in range(9)] + [("o", T, 1) for T in TORD[:8]]
    fm = {f: ("l", i) for i, f in enumerate(lds)}
    r = WREG0
    for f in order:
        if f in fm: continue
        fm[f] = ("r", r); r += 8
    assert r == 512
    return fm
FM = frag_map()

def emit_loader(A, fl='', lorder='qkvo', la=0, lb=0, npp=28, hooks=None):
    VA, VB, VL, VC = 1, 2, 3, 4
    RING, NP, TMP = 6, npp, 64
    A(f"s_mov_b32 s{S_P0}, 0x05040100\ns_mov_b32 s{S_P1}, 0x07060302")
    A(f"""v_and_b32 v{VL}, 63, v0
    v_lshlrev_b32 v{VL}, 4, v{VL}
    s_mul_i32 s{S_T0}, s{S_WV}, {NLDS*2048}
    s_add_u32 s{S_T0}, s{S_T0}, {L_W}
    v_add_u32 v{VL}, s{S_T0}, v{VL}""")
    A(f"""v_bfe_u32 v{TMP}, v0, 5, 1
    v_bfe_u32 v{TMP+1}, v0, 4, 1
    v_and_b32 v{TMP+2}, 15, v0
    v_lshlrev_b32 v{VA}, 17, v{TMP}
    v_lshl_add_u32 v{VA}, v{TMP+1}, 14, v{VA}
    v_lshl_add_u32 v{VA}, v{TMP+2}, 2, v{VA}
    s_lshl_b32 s{S_T0}, s{S_H}, 8
    s_lshl_b32 s{S_T1}, s{S_WV}, 6
    s_add_u32 s{S_T0}, s{S_T0}, s{S_T1}
    v_add_u32 v{VA}, s{S_T0}, v{VA}""")
    A(f"""v_lshlrev_b32 v{VB}, 4, v{TMP}
    v_lshl_add_u32 v{VB}, v{TMP+1}, 2, v{VB}
    v_mul_u32_u24 v{VB}, 1152, v{VB}
    s_mul_i32 s{S_T0}, s{S_H}, 147456
    v_add_u32 v{VB}, s{S_T0}, v{VB}""")
    A(f"""v_and_b32 v{VC}, 15, v0
    s_lshl_b32 s{S_T0}, s{S_WV}, 4
    v_add_u32 v{VC}, s{S_T0}, v{VC}
    v_lshlrev_b32 v{VC}, 1, v{VC}
    v_add_u32 v{VB}, v{VB}, v{VC}
    v_add_u32 v{VC}, v{VB}, v{VC}""")
    SRD = dict(q=S_W, k=48, v=52, o=84)
    for m, slot in (("q", B_WQ), ("k", B_WK), ("v", B_WV), ("o", B_WO)): A.srd(SRD[m], 88 + 2*(slot - B_WQ), 576*4096*2)
    rows = sorted({32*(b >> 2) + 8*(b & 1) + ((b >> 1) & 1) + p for b in range(8) for p in (0, 4)})
    RS = dict(zip(rows, ["0"] + [f"s{r}" for r in (23, 24, 25, 26, 27, 29, 31, 32, 33, 34, 35, 36, 37, 38, 39)]))
    for r in rows[1:]: A(f"s_mov_b32 {RS[r]}, {r*8192}")
    A(f"s_mov_b32 s44, {64*8192}")
    jobs = []
    cur = 0
    for mm in lorder:
        if mm != "o":
            for c, m in [(c, m) for c in range(9) for m in ("kv" if mm == "x" else mm)]:
                for b in range(8):
                    k0 = 32*(b >> 2) + 8*(b & 1) + ((b >> 1) & 1)
                    pre = None if c == cur else f"v_add_u32 v{VA}, s44, v{VA}" if c == cur + 1 else f"v_subrev_u32 v{VA}, {(cur - c)*64*8192}, v{VA}"
                    cur = c
                    jobs.append((pre, "dword", VA, SRD[m], (RS[k0], 0), (RS[k0+4], 0), [((m, c, 0), b, S_P0), ((m, c, 1), b, S_P1)]))
            continue
        for pp in range(5):
            for co in range(2):
                for b in range(8):
                    e0 = 64*co + 32*(b >> 2)
                    pre = f"s_mov_b32 s{S_T0}, {e0*1152 + pp*256}\ns_mov_b32 s{S_T1}, {(e0 + 8)*1152 + pp*256}" if b % 4 == 0 else None
                    so, im = s(S_T1 if b & 1 else S_T0), 2304*((b >> 1) & 1)
                    outs = [(("o", 2*pp, co), b, S_P0)] + ([(("o", 2*pp+1, co), b, S_P1)] if pp < 4 else [])
                    jobs.append((pre, "dword" if pp < 4 else "ushort", VC if pp < 4 else VB, SRD["o"], (so, im), (so, im + 1152), outs))
    def issue(i):
        pre, op, va, srd, o0, o1, outs = jobs[i]
        if pre: A(pre)
        r = RING + 2*(i % NP)
        for q, (so, im) in enumerate((o0, o1)): A(f"buffer_load_{op} v{r+q}, v{va}, s[{srd}:{srd+3}], {so} offen offset:{im} {fl}")
    def consume(i, outstanding):
        outs = jobs[i][-1]
        r = RING + 2*(i % NP)
        A(f"s_waitcnt vmcnt({outstanding})")
        for k, (f, b, sel) in enumerate(outs):
            kind, x = FM[f]
            t = TMP + 4*k + (b & 3)
            if kind == "r" and x < 256:
                A(f"v_perm_b32 v{x+b}, v{r+1}, v{r}, s{sel}")
            elif kind == "r":
                A(f"v_perm_b32 v{t}, v{r+1}, v{r}, s{sel}\nv_accvgpr_write_b32 a{x-256+b}, v{t}")
            else:
                A(f"v_perm_b32 v{t}, v{r+1}, v{r}, s{sel}")
                if b & 3 == 3:
                    A(f"ds_write_b128 v{VL}, {v(TMP+4*k, 4)} offset:{x*2048 + (b >> 2)*1024}\ns_waitcnt lgkmcnt(0)")
    n = len(jobs)
    ops = []
    for i in range(n + NP - 1):
        if i < n:
            if lb and i % lb == 0: A("s_barrier")
            if hooks and i in hooks: ops += ["h"] * hooks[i](A)
            issue(i); ops += [i, i]
        j = i - (NP - 1)
        if j >= 0:
            k = len(ops) - 1 - max(x for x, o in enumerate(ops) if o == j)
            consume(j, min(k, 63))

def emit_setup(A):
    t = MR
    TID, N, G, I1 = t, t+1, t+2, t+3
    A(f"""v_mov_b32 v{TID}, v0
    v_and_b32 v{N}, 15, v0
    v_bfe_u32 v{G}, v0, 4, 2
    v_lshlrev_b32 v{T16}, 4, v{TID}
    v_and_b32 v{WA}, 0x3f0, v{T16}
    s_mul_i32 s{S_T0}, s{S_WV}, {NLDS*2048}
    s_add_u32 s{S_T0}, s{S_T0}, {L_W}
    v_add_u32 v{WA}, s{S_T0}, v{WA}""")
    A(f"""v_and_b32 v{I1}, 1, v{TID}
    v_mul_u32_u24 v{IDX}, 0xaaaa, v{I1}
    v_add_u32 v{IDX}, 0xffff4444, v{IDX}""")
    x, y = t+4, t+5
    ROW, ISQ = t+6, t+7
    A(f"""v_lshrrev_b32 v{ROW}, 2, v{N}
    v_lshl_add_u32 v{ROW}, v{ROW}, 1, v{I1}
    v_bfe_u32 v{ISQ}, v{N}, 1, 1""")
    A(f"""v_lshrrev_b32 v{x}, 5, v{TID}
    v_lshlrev_b32 v{x}, 8, v{x}
    v_lshl_add_u32 v{x}, v{ROW}, 5, v{x}
    v_and_b32 v{y}, 1, v{G}
    v_lshl_add_u32 v{x}, v{y}, 4, v{x}
    v_and_b32 v{y}, 0x7f, v{x}
    v_xor_b32 v{y}, 16, v{y}
    v_add_u32 v{x}, {L_O}, v{x}
    v_add_u32 v{y}, {L_JUNK}, v{y}
    v_cmp_eq_u32 vcc, 1, v{ISQ}
    v_cndmask_b32 v{OW}, v{y}, v{x}, vcc""")
    A(f"""v_lshrrev_b32 v{x}, 1, v{G}
    v_lshlrev_b32 v{x}, 8, v{x}
    v_lshl_add_u32 v{x}, v{I1}, 7, v{x}
    v_and_b32 v{y}, 1, v{G}
    v_lshl_add_u32 v{x}, v{y}, 6, v{x}
    v_lshrrev_b32 v{y}, 2, v{N}
    v_lshl_add_u32 v{x}, v{y}, 4, v{x}
    v_mul_u32_u24 v{y}, {XRB}, v{ISQ}
    v_add_u32 v{XR}, v{x}, v{y}""")
    A(f"""v_bfe_u32 v{x}, v{N}, 3, 1
    v_lshlrev_b32 v{x}, 8, v{x}
    v_lshl_add_u32 v{x}, v{ISQ}, 6, v{x}
    v_lshl_add_u32 v{x}, v{G}, 4, v{x}
    v_bfe_u32 v{y}, v{N}, 2, 1
    v_lshl_add_u32 v{x}, v{y}, 3, v{x}
    v_lshl_add_u32 v{x}, v{I1}, 2, v{x}
    s_lshl_b32 s{S_T0}, s{S_WV}, 9
    v_add_u32 v{XW}, s{S_T0}, v{x}""")
    A(f"""v_lshrrev_b32 v{x}, 4, v{TID}
    v_xor_b32 v{y}, s{S_H}, v{x}
    v_lshlrev_b32 v{x}, 12, v{x}
    v_lshl_add_u32 v{x}, v{y}, 7, v{x}
    v_lshl_add_u32 v{PS}, v{N}, 3, v{x}""")
    A(f"""s_lshr_b32 s{S_T0}, s{S_WV}, 1
    s_lshl_b32 s{S_T0}, s{S_T0}, 2
    v_add_u32 v{x}, s{S_T0}, v{G}
    v_xor_b32 v{y}, s{S_H}, v{x}
    v_lshlrev_b32 v{x}, 12, v{x}
    v_lshl_add_u32 v{x}, v{y}, 7, v{x}
    v_lshl_add_u32 v{x}, v{N}, 2, v{x}
    s_and_b32 s{S_T0}, s{S_WV}, 1
    s_lshl_b32 s{S_T0}, s{S_T0}, 6
    s_add_u32 s{S_T0}, s{S_T0}, {64*4096}
    v_add_u32 v{PS1}, s{S_T0}, v{x}""")
    A(f"""v_bfe_u32 v{x}, v{N}, 2, 1
    v_lshlrev_b32 v{x}, 5, v{x}
    v_and_b32 v{y}, 1, v{G}
    v_lshl_add_u32 v{x}, v{y}, 8, v{x}
    v_lshrrev_b32 v{y}, 1, v{G}
    v_lshl_add_u32 v{x}, v{y}, 4, v{x}
    v_and_b32 v{y}, 3, v{N}
    v_lshl_add_u32 v{MS}, v{y}, 2, v{x}""")
    A(f"v_lshlrev_b32 v{WRM}, 7, v{TID}\nv_lshlrev_b32 v{T4R}, 2, v{TID}")
    for r in range(4):
        m = 0x11111111 << r
        A(f"s_mov_b32 s{S_MK+2*r}, {m:#x}\ns_mov_b32 s{S_MK+2*r+1}, {m:#x}")
    A(f"s_mov_b32 s{S_MK+8}, 0xf0f0f0f0\ns_mov_b32 s{S_MK+9}, 0xf0f0f0f0")
    A(f"s_mov_b32 s{S_C}, {f32bits(SCALE_LOG2E):#x}")
    A(f"""s_lshl_b32 s{S_T0}, s{S_WV}, 5
    s_add_u32 s{S_T0}, s{S_T0}, s{S_H}
    s_cmp_lt_u32 s{S_T0}, 72
    s_cselect_b32 s{S_HASJOB}, 1, 0
    s_lshl_b32 s{S_JOBLD}, s{S_T0}, 12
    s_lshl_b32 s{S_T1}, s{S_WV}, 10
    s_sub_u32 s{S_JOBLD}, s{S_JOBLD}, s{S_T1}
    s_lshr_b32 s{S_JOBST}, s{S_T0}, 2
    s_lshl_b32 s{S_JOBST}, s{S_JOBST}, 9
    s_and_b32 s{S_T1}, s{S_T0}, 3
    s_lshl_b32 s{S_T1}, s{S_T1}, 6
    s_add_u32 s{S_JOBST}, s{S_JOBST}, s{S_T1}
    s_add_u32 s{S_JOBST}, s{S_JOBST}, {MEMI}
    s_cmp_lt_u32 s{S_T0}, 72
    s_cselect_b32 s{S_JOBST}, s{S_JOBST}, {OOB}
    s_lshl_b32 s{S_RST0}, s{S_H}, 12
    s_add_u32 s{S_RST1}, s{S_RST0}, {32*4096}
    s_add_u32 s{S_RST2}, s{S_RST0}, {64*4096}
    s_cmp_lt_u32 s{S_H}, 8
    s_cselect_b32 s{S_RST2}, s{S_RST2}, {OOB}
    s_mov_b32 s{S_PB}, {PART}
    s_mov_b32 s{S_PO}, {PART + PART_SZ}
    s_mov_b32 s{S_PN}, {PART + 2*PART_SZ}
    s_lshl_b32 s{S_KV}, s{S_H}, 14
    s_add_u32 s{S_KV}, s{S_KV}, {KVB}
    s_lshl_b32 s{S_KVM}, s{S_H}, 12
    s_add_u32 s{S_KVM}, s{S_KVM}, {KVM}
    s_add_u32 s{S_PF}, s{S_JOBST}, {2*16384}
    s_mov_b32 s{S_F}, 0x3f803f80
    s_mov_b32 s{S_KM}, 0x33333333
    s_mov_b32 s{S_KM+1}, 0x33333333
    s_lshl_b32 s{S_BL}, s{S_WV}, 13
    s_sub_u32 s{S_BL}, s{S_T0}, s{S_BL}
    s_add_u32 s{S_BL}, s{S_BL}, {BELL}
    s_cmp_lt_u32 s{S_T0}, 72
    s_cselect_b32 s{S_BL}, s{S_BL}, {OOB}
    s_and_b32 s{S_T1}, s{S_H}, {NREP-1}
    s_lshl_b32 s{S_T1}, s{S_T1}, 7
    s_add_u32 s{S_T1}, s{S_T1}, {BELL - 768}
    s_cmp_eq_u32 s{S_WV}, 3
    s_cselect_b32 s{S_BL}, s{S_T1}, s{S_BL}
    s_lshl_b32 s{S_BP}, s{S_H}, 7
    s_add_u32 s{S_BR}, s{S_BP}, {F_TEAM - 768}
    s_add_u32 s{S_BP}, s{S_BP}, {F_BKV - 768}
    s_mov_b32 s{S_STEP}, 0""")

def ws(off): return f"s[{S_WS}:{S_WS+3}], {off} offen"

def emit_init_sentinels(A):
    for i in range(4): A(f"v_mov_b32 v{VX+i}, -1")
    for buf in (S_PB, S_PO):
        for r in (S_RST0, S_RST1, S_RST2):
            A(f"s_add_u32 s{S_T0}, s{buf}, s{r}\nbuffer_store_dwordx4 {v(VX,4)}, v{T16}, {ws(s(S_T0))}")
    A(f"s_add_u32 s{S_T0}, s{S_JOBST}, {1*16384}\nbuffer_store_dword v{VX}, v{MS}, {ws(s(S_T0))}")


    A(f"s_cmp_eq_u32 s{S_WV}, 3\ns_cselect_b32 s{S_T0}, {OOB}, s{S_BL}\ns_mov_b64 exec, {(1 << NREP) - 1}\nbuffer_store_byte v{VX}, v{WRM}, {ws(s(S_T0))}\ns_mov_b64 exec, -1")

def emit_touch(A, dst=STG+1, WRM=WRM, S_T0=S_T0, S_T1=S_T1):
    A(f"""s_mul_i32 s{S_T0}, s{S_H}, {(MEMI + 65536 - PART) // 32}
    s_add_u32 s{S_T0}, s{S_T0}, {PART}
    s_cmp_eq_u32 s{S_WV}, 3
    s_cselect_b32 s{S_T0}, {OOB}, s{S_T0}
    buffer_load_dword v{dst}, v{WRM}, {ws(s(S_T0))} sc1""")

def emit_mem0(A, between=None):
    A.srd(S_W, 96, 9216)
    x, y = VX, VX+1
    A(f"""v_bfe_u32 v{x}, v{T16}, 5, 3
    v_mul_u32_u24 v{x}, 1152, v{x}
    v_lshrrev_b32 v{y}, 8, v{T16}
    v_lshl_add_u32 v{x}, v{y}, 5, v{x}
    v_and_b32 v{y}, 16, v{T16}
    v_add_u32 v{x}, v{x}, v{y}""")
    for j in range(3):
        A(f"buffer_load_dwordx4 {v(ACC+4*j,4)}, v{x}, s[{S_W}:{S_W+3}], 0 offen offset:{j*512}")
    if between: between(A)
    A("s_waitcnt vmcnt(0)")
    for j in range(3):
        a = ACC + 4*j; d = MR + 4*j
        A(f"""v_perm_b32 v{d}, v{a+2}, v{a}, s{S_P0}
        v_perm_b32 v{d+1}, v{a+2}, v{a}, s{S_P1}
        v_perm_b32 v{d+2}, v{a+3}, v{a+1}, s{S_P0}
        v_perm_b32 v{d+3}, v{a+3}, v{a+1}, s{S_P1}""")
        for i in range(4): A(f"v_min_u32 v{d+i}, 0xfffeffff, v{d+i}")
    L = A.uniq("L_m0")
    A(f"s_cmp_lg_u32 s{S_WV}, 0\ns_cbranch_scc1 {L}")
    A(f"ds_write_b128 v{T16}, {v(MR+8,4)} offset:{L_MEM+8192}")
    A(f"v_mov_b32 v{x}, {L_ZERO}")
    for i in range(4): A(f"v_mov_b32 v{VACC+i}, 0")
    A(f"ds_write_b128 v{x}, {v(VACC,4)}")
    A.label(L)
    A(f"s_waitcnt lgkmcnt(0)\ns_barrier\nds_read_b32 v{MR+8}, v{T4R} offset:{L_MEM+8192}\ns_waitcnt lgkmcnt(0)")
    A(f"s_mov_b32 s{S_GA}, {MEMI}\ns_mov_b32 s{S_G1}, {MEMI}\ns_mov_b32 s{S_G2}, {MEMI}")

def wread(dst, slot):
    return [f"ds_read_b128 {v(dst,4)}, v{WA} offset:{slot*2048}", f"ds_read_b128 {v(dst+4,4)}, v{WA} offset:{slot*2048+1024}"]

def smf(acc, areg, f, stg=None):
    kind, x = FM[f]
    b = R(x, 8) if kind == "r" else v(stg, 8)
    return f"v_smfmac_f32_16x16x64_bf16 {v(acc,4)}, {v(areg,4)}, {b}, v{IDX}"

class LG:
    def __init__(self, A): self.A = A; self.q = []
    def op(self, text, tag=None): self.A(text); self.q.append(tag)
    def wait(self, tag, extra=""):
        idx = [i for i, t in enumerate(self.q) if t == tag]
        if not idx:
            if extra: self.A("s_waitcnt" + extra)
            return
        n = len(self.q) - 1 - idx[-1]
        assert n <= 15, n
        self.A(f"s_waitcnt lgkmcnt({n})" + extra); self.q = self.q[idx[-1]+1:]
    def all(self, extra=""):
        self.A("s_waitcnt lgkmcnt(0)" + extra); self.q = []


KXS, VXA = VX+5, VX+6
NEG = IDX
cmp_sent = lambda r: f"v_cmp_le_u32 vcc, 0xffff0000, v{r}"
def corder(w): return [w, 4 + w] + [c for c in range(9) if c not in (w, 4 + w)]

def pre_gemm_list(w):
    early = [f"v_mov_b64 {v(r,2)}, 0" for r in range(ACC, ACC+8, 2)]
    early += [f"v_and_b32 v{KXS}, 0x380, v{T16}", f"v_add_u32 v{KXS}, v{KXS}, v{T16}", f"v_and_b32 v{VXA}, 0xf40, v{T16}", f"v_add_u32 v{VXA}, v{VXA}, v{T16}",
              f"v_bfe_u32 v{VXA+1}, v{T16}, 7, 1", f"v_mad_i32_i24 v{VXA}, v{VXA+1}, s{S_M64}, v{VXA}"]
    early += [f"v_mov_b64 {v(VX,2)}, -1", f"v_mov_b64 {v(VX+2,2)}, -1", f"v_add_u32 v{XW2}, {XRB}, v{XW}"]
    early += wread(STG+8, 4 + w)
    late = wread(STG, w) + [f"v_mov_b64 {v(r,2)}, 0" for r in list(range(ACC+8, ACC+16, 2)) + list(range(VACC, VACC+8, 2))]
    return early, late

def side_consts(w, kvstep, vxd):
    return [f"s_add_u32 s{S_T0}, s{S_KV}, {w*1024}", f"s_add_u32 s{S_T1}, s{S_KV}, 8192",
            f"s_add_u32 s{S_A}, s{S_PO}, s{S_RST0}", f"s_add_u32 s{S_B}, s{S_PO}, s{S_RST1}",
            f"s_add_u32 s{S_D}, s{S_PO}, s{S_RST2}", f"s_add_u32 s{S_E}, s{S_KV}, {(1 << 19) if kvstep else 0}",
            f"s_mov_b32 m0, {L_KX + w*2048}"]

def delay(A, n):
    while n > 0:
        k = min(n, 16); A(f"s_nop {k-1}"); n -= k

def emit_loop(A, w, L_exit, L_fail, stamps=False, spin=20000, dA=0, d1=0, kvstep=True, nA=1,
              vxd=False, pubflag="sc1", nocomm=False, marks=None, nv1=3, norst=False, rstpos=1, wstride=128, keep=True, lag=4, pub=True, gv=0, vper=2, win=False, flags=False, bell=0, d0=None, bgap=0, gs=0, rdel=0, rsp=3, vgap=3, qe=1, ep=16, kxb=False, dup=0, dupw=2, ndup=1, gb=4, gw=True, d2=None, lazy=False, bpos=3, g8f=True, lw=False, r3=False, vg=False, wgap=3, rgap=0, we=0, wew=(0,), w4=False, vxe=False, wf=False, kst=1, zl=False, fm=False, fmr=None, vp=6, half0=False, prs=False, kxe=False, kxp=(0, 1, 3), prog=None, jd0=0, a0=None, a1=None, a2=None, fa=False, fb=False, cpos=0, jd=0, dR=None, dL=None):
    nve = 2
    assert cpos <= 2
    aw = (a0, a1, a2, None)
    jd = (jd0, jd, 0, 0)[w]; jw = (w,)
    def mark(name):
        if marks and name in marks:
            i = marks.index(name); A(f"s_memtime s[{S_TS+2*i}:{S_TS+2*i+1}]")
    cnt = lambda r: A(f"s_add_u32 s{r}, s{r}, 1") if stamps else None
    lg = LG(A)
    L_step, L_ent, L_last, L_gr = f"L_step{w}", f"L_ent{w}", f"L_last{w}", f"L_gr{w}"
    spin_chk = f"s_add_u32 s{S_SPIN}, s{S_SPIN}, 1\ns_cmp_gt_u32 s{S_SPIN}, {spin}\ns_cbranch_scc1 {L_fail}"
    pe, pl = pre_gemm_list(w)
    pe0 = pe
    if kxe: pe = [x for x in pe if f"v{KXS}," not in x] + [f"v_lshrrev_b32 v{T4R}, 2, v{T16}"]
    sc = side_consts(w, kvstep, vxd)
    rst = [f"buffer_store_dwordx4 {v(VX,4)}, v{T16}, {ws(s(sr))} ;st" for sr in (S_A, S_B, S_D)]
    pf = f"buffer_store_dword v{NEG}, v{MS}, {ws(s(S_PF))} ;st"
    vxl = [f"buffer_load_dwordx4 {v(VX,4)}, v{VXA}, {ws(s(S_T1))} sc1", f"buffer_load_dwordx4 {v(VX+4,4)}, v{VXA}, {ws(s(S_T1))} offset:256 sc1"]
    vxa = [x for x in pe if f"v{VXA}," in x or f"v{VXA+1}," in x]
    if vxe:
        prs = True
        keepx = lambda l: [x for x in l if x not in vxa and ", -1" not in x and f"v{XW2}," not in x] + [f"v_mov_b32 v{XW2}, -1"]
        pe, pe0 = keepx(pe), keepx(pe0) + vxa
    assert not r3
    if r3:
        prs = True
        keepx = lambda l: [x for x in l if ", -1" not in x and f"v{XW2}," not in x] + [f"v_mov_b32 v{XW2}, -1"]
        pe, pe0 = keepx(pe), keepx(pe0)
    if prs:
        sc = sc[:2] + [f"s_add_u32 s{r}, s{S_PO}, {pp*16*4096}" for pp, r in ((1, S_A), (2, S_B), (3, S_D))] + sc[5:]
        rst = [f"buffer_store_dwordx2 {v(IDX if vxe or r3 else VX,2)}, v{PS}, {ws(s(r))} ;st" for r in (S_PO, S_A, S_B, S_D)] + [f"buffer_store_dword v{NEG}, v{PS1}, {ws(s(S_PO))} ;st"]
    if norst: rst = []
    r0 = rst if rstpos == 0 else []
    wrm = f"buffer_load_dword v{WRM}, {ws(s(S_E))} sc1 lds"
    nwarm = 4 if w4 else 2
    A.label(L_ent)
    if w4: A(f"v_lshlrev_b32 v{WRM}, 2, v{T16}")
    A(f"s_movk_i32 s{S_M64}, -64\ns_mov_b32 s{S_ON}, s{S_F}\ns_mov_b32 s{S_ON+1}, s{S_F}")
    assert wstride == 128
    for x in pe0 + pl + sc + r0: A(x)
    kxd = lambda r: [f"buffer_load_dwordx4 v{r}, {ws(s(S_T0))} sc1 lds", f"s_mov_b32 m0, {L_KX + w*2048 + 1024 - 128}", f"buffer_load_dwordx4 v{r}, {ws(s(S_T0))} offset:128 sc1 lds"]
    if kxe:
        assert kxb and keep and gv != 5
        for x in kxd(KXS): A(x)
    if vxe or vg:
        for x in vxl: A(x)
    if we == 2 and w in wew: A(f"s_mov_b32 m0, {L_JUNK}\n{wrm}")
    if gv in (5, 12): A(f"v_mov_b32 v{VX+4}, v{MR+8}")
    A(f"s_waitcnt vmcnt(0) lgkmcnt(0)\ns_branch {L_step}")
    co = corder(w)
    two = gv == 5
    P8, CK = (VX + 4, VX + 7) if two or gv == 12 else (MR + 8, MR + 9)
    gl1 = f"buffer_load_dwordx4 {v(MR,4)}, v{T16}, {ws(s(S_GA))} sc1"
    gl2 = [f"buffer_load_dword v{P8}, v{T4R}, {ws(s(S_G2))} sc1", f"buffer_load_dwordx4 {v(MR+4,4)}, v{T16}, {ws(s(S_G1))} sc1"]
    zacc = [f"v_mov_b64 {v(r,2)}, 0" for r in list(range(ACC, ACC+16, 2)) + list(range(VACC, VACC+8, 2))]
    dupl = [gl2[1]]*ndup if dup and w >= dupw else []
    if gv == 12: dupl = ["\n".join([gl1] + gl2)]*ndup if dup else []
    A.label(L_gr)
    if dupl and gv < 11:
        for x in zacc: A(x)
        A(f"""s_waitcnt vmcnt(0)
        v_max3_u32 v{CK}, v{MR}, v{MR+1}, v{MR+2}
        v_max3_u32 v{CK}, v{CK}, v{MR+3}, v{P8}
        v_max3_u32 v{CK}, v{CK}, v{MR+4}, v{MR+5}
        v_max3_u32 v{CK}, v{CK}, v{MR+6}, v{MR+7}
        {cmp_sent(CK)}""")
        cnt(S_CNT1)
        A(f"s_waitcnt lgkmcnt(0)\ns_cbranch_vccz {L_step}")
    for x in [gl1] + gl2: A(x)
    if dL: A(f"v_mov_b32 v{CK}, s{S_STEP}\nv_mov_b32 v{CK+1}, {L_ZERO + 16}\nds_write_b32 v{CK+1}, v{CK}")
    cnt(S_CNT2)
    A(spin_chk)
    if gv == 12: A(f"s_branch {L_step}")
    elif gv == 11:
        for x in dupl + zacc: A(x)
    elif dupl:
        delay(A, dup)
        for x in dupl: A(x)
    else:
        for x in zacc: A(x)
    if r0 or vg or (we == 2 and w in wew): A("s_waitcnt vmcnt(0)")
    A(f"s_waitcnt lgkmcnt(0)\ns_branch {L_step}")
    A(".p2align 3")
    A.label(f"L_gat{w}")
    mark("tg")
    rest = sc + pl
    nvm = [1]
    def filler(n):
        k = 0
        while k < n and rest:
            if rest[0] == pl[0] and jd and w in jw: A(f"s_waitcnt vmcnt({nvm[0]})")
            A(rest.pop(0)); k += 1
        delay(A, n - k)
    for x, d in [(gl1, 0 if g8f else gs), (gl2[0], gs if g8f else 0), (gl2[1], dup if dupl else 0)] + [(x, dup if i + 1 < len(dupl) else 0) for i, x in enumerate(dupl)]:
        A(x); nvm[0] += len(x.split("\n")); filler(d)
    filler(len(rest))
    if we == 2 and w in wew:
        delay(A, rdel); A(f"s_mov_b32 m0, {L_JUNK}\n{wrm}")
    if vg:
        assert r3
        delay(A, rdel)
        for x in vxl: A(x)
    if r0: delay(A, rdel)
    for x in r0: A(x)
    if win:
        A(f"s_cmp_eq_u32 s{S_STEP}, 8\ns_cbranch_scc0 L_win{w}\ns_memtime s[94:95]\ns_memrealtime s[88:89]\nL_win{w}:")
    if not lw: A("s_waitcnt lgkmcnt(0)")
    A.label(L_step)
    n0 = len(r0) + (1 if we == 2 and w in wew else 0) + (2 if vg else 0)
    uses = co + co[nve:]
    mslot = lambda u: MR + 4*(u % 3)
    dsq, held, lvl = [], [], [0]
    def q(x, need_lvl):
        if lvl[0] >= need_lvl and not any(l <= need_lvl for _, l in held): dsq.append(x)
        else: held.append((x, need_lvl))
    def raise_(l):
        lvl[0] = l
        dsq[:0] = [x for x, n in held if n <= l]; held[:] = [(x, n) for x, n in held if n > l]
    def mread(u):
        if u < len(uses): q((f"ds_read_b128 {v(mslot(u),4)}, v{T16} offset:{L_MEM - w*1024 + 1024*uses[u]}", ("m", u)), 3 if uses[u] >= 4 else 1 if u == 2 else 2)
    def ds1():
        if dsq: lg.op(*dsq.pop(0))
    def need(tag):
        while any(x[1] == tag for x, _ in held): side_next()
        while any(t == tag for _, t in dsq): ds1()
        lg.wait(tag)
    w0 = f"ds_write_b128 v{T16}, {v(MR,4)} offset:{L_MEM}"
    w1 = f"ds_write_b32 v{T4R}, v{P8} offset:{L_MEM+8192}"
    w2 = f"ds_write_b128 v{T16}, {v(MR+4,4)} offset:{L_MEM+4096}"
    k_ = [f"v_max3_u32 v{CK}, v{MR}, v{MR+1}, v{MR+2}", f"v_max3_u32 v{CK}, v{CK}, v{MR+3}, v{P8}",
          f"v_max3_u32 v{CK}, v{CK}, v{MR+4}, v{MR+5}", f"v_max3_u32 v{CK}, v{CK}, v{MR+6}, v{MR+7}", cmp_sent(CK)]
    br = f"s_cbranch_vccnz {L_gr}" if not nocomm else "s_nop 0"
    wv = lambda n: f"s_waitcnt vmcnt({n0+n})"
    k2 = [f"v_max3_u32 v{CK}, v{P8}, v{MR+4}, v{MR+5}", k_[3], k_[4]]
    if gv == 0: side = [[w0], [wv(1), w1], [wv(0), w2], k_[0:2], k_[2:4], [k_[4]], [br], ["BAR3"]]
    nd = len(dupl) * (3 if gv == 12 else 1)
    if gv == 12: side = [[]]*gb + [['BAR3']]
    if gv == 6: side = [[w0], [wv(1 + nd), k_[0], k_[1]], [w1], [wv(nd), k_[2], k_[3], k_[4], w2, br], [], [], ["BAR3"]]
    if gv == 7: side = [[w0, wv(1 + nd), k_[0], k_[1], w1, wv(nd), k_[2], k_[3], k_[4], w2, br], [], [], [], ["BAR3"]]
    if gv == 8: side = [[w0], [wv(1 + nd), k_[0], k_[1]], [w1, wv(nd), k_[2], k_[3], k_[4]], [br, w2], [], [], [], ["BAR3"]]
    if gv == 9: side = [[w0], [k_[0]], [], [], [wv(1 + nd), k_[1], w1, wv(nd), k_[2], k_[3], k_[4]], [br, w2], [], [], [], ["BAR3"]]
    if gv == 10: side = [[w0], [k_[0]], [], [wv(1 + nd), k_[1], w1, wv(nd), k_[2], k_[3], k_[4]], [br, w2], [], [], [], ["BAR3"]]
    k3 = [f"v_max3_u32 v{CK}, v{MR+4}, v{MR+5}, v{MR+6}", f"v_max_u32 v{CK}, v{CK}, v{MR+7}", k_[4]]
    if gv == 11: side = [[w0], [wv(1 + nd), k_[0], k_[1], k_[4]], *([[br, wv(nd)] + k3 + [w1]] if not cpos else [[br, w1]] + [[]]*(cpos-1) + [[wv(nd)] + k3]), [f"s_cbranch_vccnz L_g3r{w}" if not nocomm else "s_nop 0", f"L_g3{w}:", w2]] + [[]]*bpos + [["BAR3"]]
    if gv == 5: side = [[w0], [k_[0]], [f"v_max_u32 v{CK}, v{CK}, v{MR+3}"], [k_[4]], [br, "BAR1"], [wv(0), k2[0]], [w2], [k2[1]], [k2[2]], ["BR2", w1]]
    gap = [[], [], []]
    if kxe: side += [[f"s_mov_b32 m0, {L_JUNK}"] + ([pf] if w < 3 else [])]
    else: side += [[f"buffer_load_dwordx4 v{KXS}, {ws(s(S_T0))} sc1 lds ;kx"], [f"s_mov_b32 m0, {L_KX + w*2048 + 1024 - 128}"], [], ["BAR3"] if two else [],
        [f"buffer_load_dwordx4 v{KXS}, {ws(s(S_T0))} offset:128 sc1 lds ;kx"], [f"s_mov_b32 m0, {L_JUNK}"], [pf] if w < 3 else [], []]
    sr, sw = [], []
    if rstpos == 1:
        for x in rst: sr += [[]]*min(w, rsp) + [[x]] + [[]]*(rsp - min(w, rsp))
    if r3:
        sr += [[f"v_add_u32 v{XW2}, {XRB}, v{XW}"]]
        if not vg: sw += [[vxl[0] + " ;vx"]] + gap[:vgap] + [[vxl[1] + " ;vx"]] + gap[:wgap]
    elif vxe: sr += [[f"v_add_u32 v{XW2}, {XRB}, v{XW}"]]
    else: sr += [[vxl[0] + " ;vx"]] + gap[:vgap] + [[vxl[1] + " ;vx"]] + gap
    sw.append([f"v_mov_b32 v{MS}, s{S_STEP}"] if flags and w == 3 else [])
    if we == 1 and w in wew: sr[:0] = [[wrm + " ;warm"]]
    elif we == 2 and w in wew: pass
    elif w < nwarm: sw += [[wrm + " ;warm"]]
    if flags and w == 3:
        sw += [["s_mov_b64 exec, 1", f"buffer_store_dword v{MS}, v{T4R}, {ws(s(S_BR))} sc1 ;fl", "s_mov_b64 exec, -1"],
               [f"buffer_load_dword v{MS}, v{T4R}, {ws(s(S_BP))} sc1 ;fl"]]
    if r3: sw += [[]]*(rgap + (3 if vg else 5 + vgap + wgap) - len(sw))
    side += (sw + sr) if wf or r3 else (sr + sw)
    vm = []
    issued, redo = [], []
    def side_next():
        if side:
            for x in side.pop(0):
                if x.startswith("BAR"):
                    lg.wait("gw"); A("s_barrier"); mark("bar" + x[3]); raise_(int(x[3])); ds1()
                    if gv == 12 and dupl and any(t == ("m", 3) for _, t in dsq): A("s_waitcnt vmcnt(0)")
                elif x == "BR2":
                    A((f"s_cbranch_vccnz L_g2r{w}" if not nocomm else "s_nop 0") + f"\nL_g2{w}:"); redo.extend(issued); raise_(2)
                elif x.startswith("ds_"): lg.op(x, "gw")
                else: A(x)
                if x.startswith("buffer"): vm.append(x.split(";")[1])
    def vmwait(tag):
        idx = [i for i, t in enumerate(vm) if t == tag]
        return len(vm) - 1 - idx[-1]
    q0, q1, k0, k1 = ACC, ACC+4, ACC+8, ACC+12
    add2 = lambda r: f"v_add_f32 v{r}, v{r}, v{r+1}\nv_add_f32 v{r+2}, v{r+2}, v{r+3}"
    def epi(a, b, off):
        sc_ = [f"v_mul_f32 v{r}, s{S_C}, v{r}" for r in (a, b, a+2, b+2)] if fm and off else []
        d0_, d1_ = (a, a+2) if off else (XW2, T4R)
        return add2(a).split("\n") + add2(b).split("\n") + sc_ + [f"v_cvt_pk_bf16_f32 v{d0_}, v{a}, v{b}",
                f"v_cvt_pk_bf16_f32 v{d1_}, v{a+2}, v{b+2}", f"ds_write2_b32 v{XW2 if off else XW}, v{d0_}, v{d1_} offset1:32"]
    eq = []
    def eq1(n):
        for _ in range(n):
            if eq:
                x = eq.pop(0)
                if x.startswith("ds_"): lg.op(x, "xw")
                else: A(x)
    kxr = lambda d, m, tk: f"ds_read_b128 {v(d,4)}, v{T16} offset:{L_KX - w*1024 + m*2048 + tk*1024}"
    mo = [(w + i) & 3 for i in range(4)]
    seq = []
    for u in range(9 - qe):
        seq += [(u, "q", 0), (u, "q", 1), (u, "k", 0)] + ([(u, "v", 0), (u, "v", 1)] if u < nve else []) + [(u, "k", 1)]
    seq += [(u, "q", t) for u in range(9 - qe, 9) for t in range(2)] + [(u, "k", t) for u in range(9 - qe, 9) for t in range(2)]
    lastq = max(i for i, x in enumerate(seq) if x[1] == "q")
    mread(2)
    A(f"s_waitcnt vmcnt({n0+2+nd})")
    if gv == 12:
        A(f"{k_[0]}\n{wv(1 + nd)}\n{k_[1]}"); lg.op(w0, "gw")
        A(f"{wv(nd)}\n{k_[2]}\n{k_[3]}\n{k_[4]}")
        if gw: lg.op(w2, "gw")
        A(br)
        if not gw: lg.op(w2, "gw")
        side[0] = [w1]
    for i, (u, m, t) in enumerate(seq):
        c = uses[u]
        if m == "q" and t == 0: need(("m", u)); mark(f"c{u}")
        last = m == "k" and t == 1
        if last: need(("w", u))
        if last and u == 0 and lw: lg.all()
        x = smf({"q": ACC, "k": ACC+8, "v": VACC}[m] + 4*t, mslot(u), (m, c, t), STG + 8*(u & 1))
        A(x); issued.append(x)
        if last:
            if dupl and (u == 1 if gv != 12 else (u == 0 and lvl[0] == 3)): A(f"s_waitcnt vmcnt({len(vm) + n0})")
            mread(u + 3)
            if u + 2 < 9:
                for y in wread(STG + 8*(u & 1), uses[u + 2]): q((y, ("w", u + 2)), 2)
            if kxb and u == 7 and not kxe: A(f"s_waitcnt vmcnt({vmwait('kx')})\ns_barrier")
            if kxb and u >= 7: dsq.extend((kxr(STG+4*mm, mm, 0), ("kx", mm, 0)) for mm in mo if (mm >> 1) == (u & 1))
        ds1()
        if i == lastq + 2: eq.extend(epi(q0, q1, XRB))
        if eq: eq1(1)
        else: side_next()
    mark("qk")
    vs = [(u, t) for u in range(9, len(uses)) for t in range(2)]
    def vsm(ds=True, sd=True):
        if not vs: return
        u, t = vs.pop(0)
        if t == 0: need(("m", u))
        A(smf(VACC + 4*t, mslot(u), ("v", uses[u], t)))
        if t == 1:
            n = len(dsq); mread(u + 3)
            if len(dsq) > n: dsq.insert(0, dsq.pop())
        if ds: ds1()
        if sd: side_next()
    assert fm and not any(f"v{T4R}," in y for x in side for y in x)
    eq.extend(epi(k0, k1, 0))
    while eq:
        vsm(sd=False); eq1(ep)
    mark("xw")
    for i in range(nv1): vsm()
    vsm(False)
    lg.wait("xw", f" vmcnt({vmwait('kx')})" if not kxb else "")
    A("s_barrier")
    mark("b1")
    post = []
    for m in mo:
        post += [(f"ds_read_b128 {v(ACC+4*m,4)}, v{XR} offset:{m*512}", ("x", m))] + ([] if kxb else [(kxr(STG+4*m, m, 0), ("kx", m, 0))])
    lg.op(*post.pop(0))
    kpub = f"s_mov_b64 exec, s[{S_KM}:{S_KM+1}]\nbuffer_store_dwordx4 {v(ACC+4*w,4)}, v{XR}, {ws(s(S_KVM))} offset:{w*512} {pubflag}\ns_mov_b64 exec, -1"
    dsq.extend(post)
    while vs: vsm()
    mark("v")
    T0, T1, T2 = mslot(len(uses)), mslot(len(uses)+2), mslot(len(uses)+1)
    mf = lambda d, a, b, c: f"v_mfma_f32_16x16x32_bf16 {v(d,4)}, {v(a,4)}, {v(b,4)}, {c}"
    v0_, v1_ = VACC, VACC+4
    ONES = VACC + 4
    M = VACC + 3
    one = lambda i: f"v_mov_b32 v{ONES+i}, s{S_F}"
    vpub = [f"buffer_store_dword v{VACC+t}, v{T4R}, {ws(s(S_KVM))} offset:{2048 + 1024*t} {pubflag}" for t in range(2)]
    if fm:
        assert kxe and keep and 6 <= vp <= 11 - 3*kst
        while side: side_next()
        WB = [STG, STG+8, ACC+8]
        O0, O1, LA = ACC, ACC+4, ACC+8
        RL = T1
        so = [S_PB, S_B, S_D, S_E]
        sal = [f"s_add_u32 s{S_A}, s{S_PB}, s{S_JOBLD}"] + [f"s_add_u32 s{so[pp]}, s{S_PB}, {pp*16*4096}" for pp in range(1, 4)]
        m16 = lambda d, a, b, c: f"v_mfma_f32_16x16x16_bf16 {v(d,4)}, {v(a,2)}, {v(b,2)}, {c}"
        exs = lambda r: f"v_exp_f32 v{r}, v{r}"
        cv = lambda d, r: f"v_cvt_pk_bf16_f32 v{d}, v{r}, v{r+1}"
        mz = lambda r: A(f"v_mov_b32 v{r}, 0")
        z16 = lambda d: A(mf(d, T2, T2, "0"))
        ad = add2(v0_).split("\n") + add2(v1_).split("\n")
        gp = [[], [], [ad[0]], [ad[1]], [sal[0], ad[2], ad[3]],
              [sal[1], f"v_cvt_pk_bf16_f32 v{v0_}, v{v0_}, v{v0_+2}", f"v_cvt_pk_bf16_f32 v{v0_+1}, v{v1_}, v{v1_+2}"],
              [sal[2], f"v_mov_b32 v{VACC+2}, v{XW2}", f"v_mov_b32 v{VACC+3}, v{T4R}", exs(T0)], [exs(T0+1)], [exs(T0+2)], [exs(T0+3)], [exs(T2)], [sal[3], exs(T2+1)]]
        for g in range(12):
            i = g & 3; m = mo[i]
            if g < 4:
                need(("kx", m, 0)); need(("x", m))
                A(mf(T0, STG+4*m, ACC+4*m, "0" if i == 0 else v(T0,4)))
                dsq.append((kxr(STG+4*m, m, 1), ("kx", m, 1)))
            elif g < 8: A(mf(T2, ACC+4*m, ACC+4*m, "0" if i == 0 else v(T2,4)))
            else:
                need(("kx", m, 1))
                A(mf(T1, STG+4*m, ACC+4*m, "0" if i == 0 else v(T1,4)))
            x = gp[g]
            if x and x[0].startswith("s_"): A(x[0]); x = x[1:]
            ds1()
            for y in x: A(y)
            if g == vp + w*kst and pub: A(f"buffer_store_dwordx4 {v(VACC,4)}, v{T16}, {ws(s(S_KVM))} {pubflag}"); vm.append("pub")
        assert not dsq
        mark("s")
        ones = [f"v_mov_b64 {v(ONES,2)}, s[{S_ON}:{S_ON+1}]", f"v_mov_b64 {v(ONES+2,2)}, s[{S_ON}:{S_ON+1}]"]
        pm = [cv(T2+3, T2), cv(T2, T2), f"v_mov_b32 v{T2+1}, 0", f"v_mov_b32 v{T2+2}, 0"]
        for x in [ones[0]] + pm + [cv(T0, T0), cv(T0+1, T0+2)]: A(x)
        A(m16(O0, VACC, T2, "0")); A(exs(T1))
        A(m16(O1, VACC, T2+2, "0")); A(exs(T1+1))
        A(m16(LA, ONES, T2, "0")); A(exs(T1+2)); A(exs(T1+3))
        A(ones[1]); A(cv(T0+2, T1)); A(cv(T0+3, T1+2))
        mark("exp")
        wr = wread(WB[0], 9) + wread(WB[1], 10), wread(WB[2], 11)
        pkm = lambda r: A(f"v_pk_mul_f32 {v(r,2)}, {v(r,2)}, {v(RL,2)} op_sel_hi:[1,0]")
        def pvx():
            A(wr[0][0])
            A(mf(LA, ONES, T0, v(LA,4)))
            A(wr[0][1]); mz(T2)
            A(mf(O0, VX, T0, v(O0,4)))
            A(wr[0][2]); mz(T2+3)
            A(mf(O1, VX+4, T0, v(O1,4)))
            A(wr[0][3]); mz(T1+3)
            A(f"v_rcp_f32 v{RL}, v{LA}\nv_subrev_u32 v{T1+2}, {f32bits(2.0**-60):#x}, v{LA}\nv_cmp_le_u32 vcc, {fmr or (120 << 23):#x}, v{T1+2}")
            pkm(O0); pkm(O0+2); A(wr[1][0]); pkm(O1); pkm(O1+2)
            for r in range(4): A(f"v_cvt_pk_bf16_f32 v{O0+r}, v{O0+r}, v{O1+r}")
            mark("pv")
            z16(T0)
            A(f"ds_write_b128 v{OW}, {v(O0,4)}")
        A(f"s_waitcnt vmcnt({len(vm) if vg else vmwait('st' if vxe else 'vx')})" if not wf else "s_nop 0")
        pvx()
        z16(T1)
        A(f"s_andn2_b64 vcc, vcc, s[{S_KM}:{S_KM+1}]\n{wr[1][1]}\n" + (f"s_cbranch_scc1 L_sm{w}" if not nocomm else "s_nop 1") + f"\nL_smr{w}:")
        z16(VACC)
        A(f"v_mov_b32 v{XW2}, {L_ZERO}\nv_and_b32 v{T4R}, 0x380, v{T16}")
        if not zl: z16(VACC+4)
        A(f"s_add_u32 s{S_T0}, s{S_KV}, {w*1024 + ((1 << 19) if kvstep else 0)}\nv_add_u32 v{T4R}, v{T4R}, v{T16}\ns_mov_b32 m0, {L_KX + w*2048}")
        def slow():
            A.label(f"L_sm{w}")
            cnt(S_CNT1)
            A("s_waitcnt lgkmcnt(0)")
            for m in range(4): A(f"ds_read_b128 {v(ACC+4*m,4)}, v{XR} offset:{m*512}\n{kxr(STG+4*m, m, 0)}")
            A("s_waitcnt lgkmcnt(0)")
            for m in range(4): A(mf(T0, STG+4*m, ACC+4*m, "0" if m == 0 else v(T0,4)) + "\n" + kxr(STG+4*m, m, 1))
            for m in range(4): A(mf(T2, ACC+4*m, ACC+4*m, "0" if m == 0 else v(T2,4)))
            A("s_waitcnt lgkmcnt(0)")
            for m in range(4): A(mf(T1, STG+4*m, ACC+4*m, "0" if m == 0 else v(T1,4)))
            TM = T2 + 2
            A(f"""v_max3_f32 v{M}, v{T0}, v{T0+1}, v{T0+2}
            v_max3_f32 v{M}, v{M}, v{T0+3}, v{T2}
            v_max3_f32 v{M}, v{M}, v{T2+1}, v{T1}
            v_max3_f32 v{M}, v{M}, v{T1+1}, v{T1+2}
            v_max_f32 v{M}, v{M}, v{T1+3}
            v_mov_b32 v{TM}, v{M}
            v_permlane32_swap_b32 v{TM}, v{M}
            v_max_f32 v{M}, v{M}, v{TM}
            v_mov_b32 v{TM}, v{M}
            v_permlane16_swap_b32 v{TM}, v{M}
            v_max_f32 v{M}, v{M}, v{TM}""")
            regs = [T2, T2+1] + [T0+i for i in range(4)] + [T1+i for i in range(4)]
            for r in regs: A(f"v_sub_f32 v{r}, v{r}, v{M}")
            for r in regs: A(exs(r))
            for x in pm + [cv(T0, T0), cv(T0+1, T0+2), cv(T0+2, T1), cv(T0+3, T1+2)]: A(x)
            A(m16(O0, VACC, T2, "0")); A(m16(O1, VACC, T2+2, "0")); A(m16(LA, ONES, T2, "0"))
            pvx()
            z16(T1)
            A(f"{wr[1][1]}\ns_branch L_smr{w}")
    else:
        for i, m in enumerate(mo):
            need(("kx", m, 0)); need(("x", m))
            A(mf(T0, STG+4*m, ACC+4*m, "0" if i == 0 else v(T0,4)))
            dsq.append((kxr(STG+4*m, m, 1), ("kx", m, 1)))
            ds1()
            side_next()
        while side: side_next()
        vepi = [add2(v0_), add2(v1_),
                f"v_cvt_pk_bf16_f32 v{v0_}, v{v0_}, v{v0_+2}\nv_cvt_pk_bf16_f32 v{v0_+1}, v{v1_}, v{v1_+2}",
                f"v_lshrrev_b32 v{VACC+2}, 1, v{T16}\nv_max3_f32 v{M}, v{T0}, v{T0+1}, v{T0+2}"]
        for i, m in enumerate(mo):
            A(mf(T2, ACC+4*m, ACC+4*m, "0" if i == 0 else v(T2,4)))
            ds1()
            A(vepi[i])
        WB = [STG, STG+8, ACC+8]
        wq = {}
        for j in range(3):
            for hh, x in enumerate(wread(WB[j], 9 + j)): wq[WB[j] + 4*hh] = (x, ("wo", j))
        for i, m in enumerate(mo):
            need(("kx", m, 1))
            A(mf(T1, STG+4*m, ACC+4*m, "0" if i == 0 else v(T1,4)))
            dsq.append(wq.pop(STG+4*m))
            ds1()
            if i in (0, 1) and pub: A(vpub[i]); vm.append("pub")
            if i == (2 if w != 2 else 3): A(f"v_max3_f32 v{M}, v{M}, v{T0+3}, v{T2}\nv_max_f32 v{M}, v{M}, v{T2+1}")
        mark("s")
        dsq.extend(wq.values())
        TM = T2 + 2
        so = [S_PB, S_B, S_D, S_E]
        sal = [f"s_add_u32 s{S_A}, s{S_PB}, s{S_JOBLD}"] + [f"s_add_u32 s{so[pp]}, s{S_PB}, {pp*16*4096}" for pp in range(1, 4)]
        A(one(0)); A(sal[0]); A(one(1)); A(sal[1]); A(one(2)); ds1(); A(one(3))
        A(f"""v_max3_f32 v{M}, v{M}, v{T1}, v{T1+1}
        v_max3_f32 v{TM}, v{M}, v{T1+2}, v{T1+3}
        v_max3_f32 v{M}, v{M}, v{T1+2}, v{T1+3}
        {sal[2]}
        {sal[3]}
        v_permlane32_swap_b32 v{TM}, v{M}
        v_max_f32 v{T2+3}, v{M}, v{TM}
        v_max_f32 v{M}, v{M}, v{TM}
        v_mov_b32 v{T2+2}, 0""")
        ds1()
        A(f"""v_permlane16_swap_b32 v{T2+3}, v{M}
        v_max_f32 v{M}, v{M}, v{T2+3}
        v_mul_f32 v{VACC+2}, s{S_C}, v{M}""")
        assert not dsq
        mark("max")
        for r in (T2, T0, T0+2, T1, T1+2):
            A(f"v_pk_fma_f32 {v(r,2)}, {v(r,2)}, s[{S_C}:{S_C+1}], {v(VACC+2,2)} op_sel_hi:[1,0,0] neg_lo:[0,0,1] neg_hi:[0,0,1]")
        ex = lambda r: A(f"v_exp_f32 v{r}, v{r}")
        ex(T2); ex(T2+1); ex(T0)
        A(f"v_cvt_pk_bf16_f32 v{T2+3}, v{T2}, v{T2+1}\nv_cvt_pk_bf16_f32 v{T2}, v{T2}, v{T2+1}\nv_mov_b32 v{T2+1}, 0")
        O0, O1, LA = ACC, ACC+4, T1
        m16 = lambda d, a, b, c: f"v_mfma_f32_16x16x16_bf16 {v(d,4)}, {v(a,2)}, {v(b,2)}, {c}"
        ex(T0+1); ex(T0+2)
        A(m16(O0, VACC, T2, "0"))
        ex(T0+3)
        A(m16(O1, VACC, T2+2, "0"))
        ex(T1); ex(T1+1)
        A(f"v_cvt_pk_bf16_f32 v{T0}, v{T0}, v{T0+1}\nv_cvt_pk_bf16_f32 v{T0+1}, v{T0+2}, v{T0+3}")
        ex(T1+2); ex(T1+3)
        A(f"v_cvt_pk_bf16_f32 v{T0+2}, v{T1}, v{T1+1}\nv_cvt_pk_bf16_f32 v{T0+3}, v{T1+2}, v{T1+3}")
        mark("exp")
        A(m16(LA, ONES, T2, "0"))
        A(f"s_waitcnt vmcnt({len(vm) if vg else vmwait('st' if vxe else 'vx')})" if not wf else "s_nop 0")
        A(mf(LA, ONES, T0, v(LA,4)))
        RL = LA
        mz = lambda r: A(f"v_mov_b32 v{r}, 0")
        mz(T2); mz(T2+3)
        A(mf(O0, VX, T0, v(O0,4)))
        A("s_nop 1")
        A(mf(O1, VX+4, T0, v(O1,4)))
        mz(T0); mz(T0+1)
        A(f"v_rcp_f32 v{RL}, v{LA}")
        mz(T0+2); mz(T0+3)
        pkm = lambda r: A(f"v_pk_mul_f32 {v(r,2)}, {v(r,2)}, {v(RL,2)} op_sel_hi:[1,0]")
        pkm(O0); pkm(O0+2); mz(T1+3); pkm(O1); pkm(O1+2)
        for r in range(4): A(f"v_cvt_pk_bf16_f32 v{O0+r}, v{O0+r}, v{O1+r}")
        z16 = lambda d: A(mf(d, T2, T2, "0"))
        mark("pv")
        if keep: z16(VACC)
        lg.op(f"ds_write_b128 v{OW}, {v(O0,4)}", "ow")
        if keep:
            z16(VACC+4); mz(T1); mz(T1+1); mz(T1+2); A(f"v_mov_b32 v{XW2}, {L_ZERO}")
            if kxe: A(f"v_and_b32 v{T4R}, 0x380, v{T16}\nv_add_u32 v{T4R}, v{T4R}, v{T16}")
            else: A("s_nop 1")
            z16(VX)
            if kxe: A(f"s_add_u32 s{S_T0}, s{S_KV}, {w*1024 + ((1 << 19) if kvstep else 0)}\ns_mov_b32 m0, {L_KX + w*2048}")
        else:
            mz(T1); mz(T1+1); mz(T1+2); A(f"v_mov_b32 v{XW2}, {L_ZERO}")
            for r in range(VACC, VACC+16, 2): A(f"v_mov_b64 {v(r,2)}, 0")
    if dL and w < 3: lg.op(f"ds_read_b32 v{O1}, v{XW2} offset:16", "lt")
    A(f"s_cmp_eq_u32 s{S_STEP}, 63\ns_cbranch_scc1 {L_exit}")
    lg.all()
    if dL and w < 3: A(f"v_readfirstlane_b32 s{S_BV}, v{O1}")
    A("s_barrier")
    mark("b2")
    lg.op(f"ds_read_b128 {v(ACC,4)}, v{T16} offset:{L_O - w*1024}", ("o", 0))
    if keep: z16(VX if fm else VX+4)
    lg.op(f"ds_read_b128 {v(ACC+4,4)}, v{T16} offset:{L_O - w*1024 + 1024}", ("o", 1))
    if fm and zl: z16(VACC+4); z16(VX+4)
    elif keep: A("s_nop 2"); z16(VX+4)
    accs = [MR, MR+4, MR+8, VACC, VACC+4, VX, VX+4, MR, MR+8]
    LZ = ACC + 8
    def tepi(P):
        a = accs[P]
        dst = a if (P & 1) or P == 0 else accs[P-1] + 1
        r = [f"v_add_f32 v{a}, v{a}, v{a+1}", f"v_add_f32 v{a+2}, v{a+2}, v{a+3}", f"v_cvt_pk_bf16_f32 v{dst}, v{a}, v{a+2}"]
        if P == 0: r += [f"buffer_store_dword v{a}, v{PS1}, {ws(s(S_PB))}", "Z7"]
        elif not P & 1: r += [f"buffer_store_dwordx2 {v(accs[P-1],2)}, v{PS}, {ws(s(so[(P-1) >> 1]))}"]
        if P == 2: r += ["Z8"]
        return r
    jl = [f"buffer_load_dwordx4 {v(LZ+4*i,4)}, v{T16}, {ws(s(S_A))} offset:{i*1024} sc1" for i in range(4)]
    ZA = XW2
    vq = []
    def vq1(n):
        for _ in range(n):
            if vq: A(vq.pop(0))
            if vq and vq[0][0] == "Z":
                P = int(vq.pop(0)[1]); dsq.append((f"ds_read_b128 {v(accs[P],4)}, v{ZA}", ("z", P)))
    order = [(0, 0), (1, 0), (0, 1), (1, 1)] + [(P, h) for P in range(2, 9) for h in range(2)]
    done = {}
    for hs, (P, half) in enumerate(order):
        T = TORD[P]
        if P == 0: need(("o", half))
        if half == 0: mark(f"t{P}")
        A(smf(accs[P], ACC + 4*half, ("o", T, half), WB[P % 3]))
        if half == 1:
            done[hs + lag - 1] = P
            if P + 3 < 8: dsq.extend([(x, ("wo", P + 3)) for x in wread(WB[P % 3], 9 + P + 3)])
        ds1()
        if hs + 1 < len(order):
            Pn, hn = order[hs + 1]
            if hn == 1 and Pn < 8: need(("wo", Pn))
            if hn == 0 and Pn >= 7: need(("z", Pn))
        if kxe and hs in kxp:
            A(kxd(T4R)[kxp.index(hs)])
            if hs != kxp[1]: vm.append("kx")
        if hs in done: vq += tepi(done.pop(hs))
        vq1(vper if vper else (1 + (hs & 1)))
    for hs in sorted(done): vq += tepi(done[hs])
    vq1(len(vq))
    mark("op")
    if vxe:
        A(f"s_add_u32 s{S_T1}, s{S_KV}, {8192 + ((1 << 19) if kvstep else 0)}")
        for x in vxa + vxl: A(x)
        vm += ["vx", "vx"]
    book = f"""s_add_u32 s{S_STEP}, s{S_STEP}, 1
    s_mov_b32 s{S_T0}, s{S_PB}
    s_mov_b32 s{S_PB}, s{S_PN if r3 else S_PO}
    {f"s_mov_b32 s{S_PN}, s{S_PO}" + chr(10) if r3 else ""}s_mov_b32 s{S_PO}, s{S_T0}
    s_and_b32 s{S_T0}, s{S_STEP}, 3
    s_lshl_b32 s{S_T0}, s{S_T0}, 14
    s_add_u32 s{S_GA}, s{S_T0}, {MEMI}
    s_add_u32 s{S_ST}, s{S_T0}, s{S_JOBST}
    s_xor_b32 s{S_T0}, s{S_T0}, {2 << 14}
    s_add_u32 s{S_PF}, s{S_T0}, s{S_JOBST}
    s_add_u32 s{S_KV}, s{S_KV}, {(1 << 19) if kvstep else 0}
    s_add_u32 s{S_KVM}, s{S_KVM}, {32*4096}
    s_add_u32 s{S_G1}, s{S_GA}, 4096
    s_add_u32 s{S_G2}, s{S_GA}, 8192
    s_mov_b32 s{S_SPIN}, 0""".split("\n")
    SEL, D = VACC+4, VACC
    CK = MR + 4
    L_nojob, L_red, L_red2 = f"L_nojob{w}", f"L_red{w}", f"L_redb{w}"
    selgen = [f"v_mov_b32 v{D}, 0x3f80", f"v_cndmask_b32 v{D}, v{D}, 1.0, s[{S_MK+8}:{S_MK+9}]"]
    selgen += [f"v_cndmask_b32 v{SEL+r}, 0, v{D}, s[{S_MK+2*r}:{S_MK+2*r+1}]" for r in range(4)]
    if w == 3:
        for x in book + pe: A(x)
        if prog:
            A("s_memtime s[62:63]\ns_waitcnt lgkmcnt(0)")
            for i, st_ in enumerate(prog): A(f"s_cmp_eq_u32 s{S_STEP}, {st_}\ns_cselect_b32 s{88+2*i}, s62, s{88+2*i}")
        if flags:
            A(f"""s_add_u32 s{S_T0}, s{S_STEP}, 1
            s_lshr_b32 s{S_T0}, s{S_T0}, 3
            s_min_u32 s{S_T0}, s{S_T0}, 7
            s_cmp_lt_u32 s{S_STEP}, 3
            s_cselect_b32 s{S_T0}, {8 if half0 else 0}, s{S_T0}
            s_waitcnt vmcnt({vmwait('fl') + 5})
            L_kvw:
            v_readlane_b32 s{S_T1}, v{MS}, s{S_T0}
            s_cmp_eq_u32 s{S_T1}, 1
            s_cbranch_scc0 L_kvp""")
    else:
        if w == 2: A(f"s_cmp_eq_u32 s{S_HASJOB}, 0\ns_cbranch_scc1 {L_nojob}")
        fill = book + pe + selgen
        if bell: fill.append(f"v_mov_b32 v{MR+5}, s{S_STEP}")
        dd = d1 if w == 1 or d0 is None else d0
        if w == 2 and d2 is not None: dd = d2
        if dL is None:
            k = min(dd, len(fill))
            for x in fill[:k]: A(x)
            delay(A, dd - k)
        else:
            k = min(dd, len(book) if w != 1 else len(fill)) if fb else 0
            for x in fill[:k]: A(x)
            dd -= k
            if aw[w] is not None: A(f"s_waitcnt vmcnt({aw[w]})")
            if dL: A(f"s_cmp_eq_u32 s{S_BV}, s{S_STEP}\ns_cbranch_scc1 L_lt{w}")
            delay(A, dL)
            A.label(f"L_lt{w}")
            delay(A, dd - dL)
        mark("jl")
        if jd: nA = 2 if w in jw else 1
        for x in jl: A(x)
        if nA > 1:
            k2 = min(k + jd, len(fill))
            for x in fill[k:k2]: A(x)
            delay(A, jd - (k2 - k)); k = k2
            for x in jl: A(x)
        for x in fill[k:]: A(x)
        def reduce(extra):
            for i in range(4):
                a = LZ + 4*i
                A(f"s_waitcnt vmcnt({extra+3-i})")
                ck = f"v_max3_u32 v{CK}, v{a}, v{a+1}, v{a+2}\nv_max_u32 v{CK}, v{CK}, v{a+3}" if i == 0 else \
                     f"v_max3_u32 v{CK}, v{CK}, v{a}, v{a+1}\nv_max3_u32 v{CK}, v{CK}, v{a+2}, v{a+3}"
                if extra: A(ck)
                A(mf(D, a, SEL, "0" if i == 0 else v(D,4)))
                if not extra: A(ck)
            A(cmp_sent(CK))
        reduce(4*(nA-1))
        mark("rd")
        if not nocomm: A(f"s_cbranch_vccnz {L_red}")
        A.label(L_red2)
        if bell: A(f"s_mov_b64 exec, {(1 << NREP) - 1}\nbuffer_store_byte v{MR+5}, v{WRM}, {ws(s(S_BL))}\ns_mov_b64 exec, -1")
        A(f"""v_permlane32_swap_b32 v{D}, v{D+2}
        v_permlane32_swap_b32 v{D+1}, v{D+3}
        v_pk_add_f32 {v(D,2)}, {v(D,2)}, {v(D+2,2)}
        v_cvt_pk_bf16_f32 v{D}, v{D}, v{D+1}
        buffer_store_dword v{D}, v{MS}, {ws(s(S_ST))}""")
    mark("st")
    if bell:
        if w < 3:
            for x in pl: A(x)
        else:
            PR = MR + 10
            A(f"s_mul_i32 s{S_BV}, s{S_STEP}, 0x01010101\nv_mov_b32 v{PR}, 0\ns_mov_b64 exec, 0x3ffff")
            delay(A, bell)
            A.label("L_bell")
            A(f"buffer_load_dword v{PR}, v{T4R}, {ws(s(S_BL))} sc1\nv_cmp_ne_u32 vcc, s{S_BV}, v{PR}")
            cnt(S_CNT1)
            A(f"s_add_u32 s{S_SPIN}, s{S_SPIN}, 1\ns_cbranch_vccz L_rung")
            delay(A, bgap)
            A(f"s_cmp_lt_u32 s{S_SPIN}, {spin*8}\ns_cbranch_scc1 L_bell\ns_branch {L_fail}")
            A.label("L_rung")
            A(f"s_mov_b64 exec, -1\ns_mov_b32 s{S_SPIN}, 0")
        A("s_barrier")
        delay(A, dA)
    else:
        if w < 3:
            if dR is not None:
                A(f"s_cmp_lg_u32 s{S_SPIN}, 0\ns_cbranch_scc1 L_nom{w}")
                delay(A, dA - dR)
                A.label(f"L_nom{w}")
                delay(A, dR)
            elif fa:
                for x in sc[:dA]: A(x)
                delay(A, dA - len(sc))
            else: delay(A, dA)
        A("s_barrier")
    A(f"s_branch L_gat{w}")
    if w < 3:
        A.label(L_red)
        for r in range(nA - 1, 0, -1):
            reduce(4*(r-1))
            A(f"s_cbranch_vccz {L_red2}")
        A.label(L_red + "b")
        cnt(S_CNT3)
        for x in jl: A(x)
        A(spin_chk)
        reduce(0)
        A(f"s_cbranch_vccz {L_red2}\ns_branch {L_red}b")
    if gv == 11:
        A.label(f"L_g3r{w}")
        if n0:
            A(f"s_waitcnt vmcnt({n0})\nL_g3t{w}:")
            for x in k3: A(x)
            A(f"s_cbranch_vccz L_g3{w}\n{gl2[1]}\n{spin_chk}\ns_waitcnt vmcnt(0)\ns_branch L_g3t{w}")
        if lazy:
            for r in range(nd - 1, -1, -1):
                A(f"s_waitcnt vmcnt({r})")
                for x in k3: A(x)
                A(f"s_cbranch_vccz L_g3{w}")
            A.label(f"L_g3s{w}")
            A(gl2[1]); cnt(S_CNT1); A(spin_chk)
            for x in dupl:
                delay(A, dup - 6); A(x)
            A(f"s_waitcnt vmcnt({nd})")
            for x in k3: A(x)
            A(f"s_cbranch_vccz L_g3{w}\ns_branch L_g3r{w}")
        A(gl2[1])
        cnt(S_CNT1)
        A(f"s_add_u32 s{S_SPIN}, s{S_SPIN}, 1\ns_waitcnt vmcnt({nd})")
        for x in k3: A(x)
        A(f"s_cmp_gt_u32 s{S_SPIN}, {spin}\ns_cbranch_vccz L_g3{w}\ns_cbranch_scc0 L_g3r{w}\ns_branch {L_fail}")
    if two:
        A.label(f"L_g2r{w}")
        cnt(S_CNT1)
        for x in gl2: A(x)
        A(spin_chk)
        for x in zacc: A(x)
        A("s_waitcnt vmcnt(0)")
        for x in k2: A(x)
        A(f"s_cbranch_vccnz L_g2r{w}\n{w2}")
        for x in redo: A(x)
        A(f"s_waitcnt lgkmcnt(0)\ns_branch L_g2{w}")
    if fm: slow()
    if w == 3 and flags:
        A("L_kvp:"); cnt(S_CNT3)
        A(f"buffer_load_dword v{MS}, v{T4R}, {ws(s(S_BP))} sc1\n{spin_chk}\ns_waitcnt vmcnt(0)\ns_branch L_kvw")
    if w == 2:
        A.label(L_nojob)
        for x in book + pe: A(x)
        A("s_barrier")
        A(f"s_branch L_gat{w}")

def emit_loops(A, L_exit, L_fail, **kw):
    for w in range(4): A(f"s_cmp_eq_u32 s{S_WV}, {w}\ns_cbranch_scc1 L_ent{w}")
    A(f"s_branch {L_fail}")
    n = len(A.l)
    hoist = kw.pop("hoist", True)
    for w in range(4): emit_loop(A, w, L_exit, L_fail, **kw)
    if hoist: A.l[n:] = hoist_waits(A.l[n:])
```

```python
from common import *
BUFSZ = 32768

O0 = 128
SB = [32, 64]
PB = [96, 112]
QA = 256
FR = 256 + 64
M_, L_, AL, TM = 20, 22, 24, 26
A_DM, A_KC, A_KN, A_VP = 1, 2, 3, 4
A_MK, A_CT = 5, 6
S_C, S_J, S_H, S_T, S_TD, S_NT, S_SO, S_M0, S_FL, S_KVH, S_NEG, S_THR = 40, 41, 42, 43, 44, 45, 46, 47, 48, 49, 50, 51
S_RET, S_CT, S_DL = 52, 54, 55
S_SM = 52
S_K, S_KD = 62, 63
Oa = lambda T, a: O0 + 16*(2*T + a)
mf32 = lambda d, a, b, c: f"v_mfma_f32_32x32x16_bf16 {R(d,16)}, {R(a,4)}, {R(b,4)}, {c}"

def consts(A, thr=20.0):
    A(f"s_mov_b32 s{S_C}, {f32bits(SCALE_LOG2E):#x}\ns_mov_b32 s{S_NEG}, {f32bits(-1e30):#x}\ns_mov_b32 s{S_THR}, {f32bits(thr):#x}")

def lane_regs(A):
    A(f"""v_and_b32 v{A_MK}, 31, v{TID}
    v_bfe_u32 v{TM}, v{TID}, 5, 1
    v_lshlrev_b32 v{TM+1}, 2, v{TM}
    v_sub_u32 v{A_MK}, v{A_MK}, v{TM+1}
    v_bfe_u32 v{TM+1}, v{TID}, 4, 1
    v_lshlrev_b32 v{A_CT}, 17, v{TM+1}
    v_lshl_add_u32 v{A_CT}, v{TM}, 8, v{A_CT}
    v_and_b32 v{TM+1}, 15, v{TID}
    v_lshl_add_u32 v{A_CT}, v{TM+1}, 4, v{A_CT}""")

def diag_mask(S):
    l = []
    for r in range(16):
        l += [f"v_cmp_le_i32 vcc, {8*(r >> 2) + (r & 3)}, v{A_MK}", f"v_cndmask_b32 v{S+r}, v{TM+5}, v{S+r}, vcc"]
    return [f"v_mov_b32 v{TM+5}, s{S_NEG}"] + l

def ctx_store(A, a, s_off, lreg, fl='sc1'):
    t = TM
    A(f"""v_mov_b32 v{t}, v{lreg}
    v_permlane32_swap_b32 v{t}, v{lreg}
    v_add_f32 v{t}, v{t}, v{lreg}
    v_rcp_f32 v{t}, v{t}""")
    for T in range(4):
        o = Oa(T, a)
        for i in range(0, 16, 2): A(f"v_pk_mul_f32 {v(o+i,2)}, {v(o+i,2)}, {v(t,2)} op_sel_hi:[1,0]")
        for hf in range(2):
            for i in range(4): A(f"v_cvt_pk_bf16_f32 v{o+8*hf+i}, v{o+8*hf+2*i}, v{o+8*hf+2*i+1}")
            A(f"buffer_store_dwordx4 {v(o+8*hf,4)}, v{A_CT}, {buf(S_WS, s(s_off))} offset:{T*1024 + hf*512} {fl}")

NR = 8
LEAD = 4
OA = 256 + 96
NM = 128
OAa = lambda T, a: OA + 16*(2*T + a)

def emit_A(A, name, L_fail, skip=2):
    lane_regs(A)
    A(f"""v_and_b32 v{A_KC}, 63, v{TID}
    v_lshlrev_b32 v{A_KC}, 4, v{A_KC}
    s_lshl_b32 s{S_T0}, s{S_WV}, 13
    v_add_u32 v{A_DM}, s{S_T0}, v{A_KC}
    v_add_u32 v{A_KN}, {BUFSZ}, v{A_KC}
    v_mov_b32 v{A_VP}, v{A_KC}
    s_lshl_b32 s{S_SO}, s{S_H}, 20
    s_add_u32 s{S_SO}, s{S_SO}, {KVA}
    s_mov_b32 s{S_M0}, s{S_T0}
    s_lshl_b32 s{S_TD}, s{S_J}, 2
    s_add_u32 s{S_NT}, s{S_TD}, 4
    s_add_u32 s{S_TD}, s{S_TD}, s{S_WV}
    s_mov_b32 s{S_T}, 0
    s_mov_b32 s{S_FL}, 0
    s_mov_b32 s{S_CT}, s{S_NEG}
    s_mov_b32 s{S_DL}, s{S_NEG}
    s_barrier""")
    def dma():
        l = [[f"s_mov_b32 m0, s{S_M0}"], [f"s_add_u32 s{S_T0}, s{S_SO}, 4096"]]
        l += [[f"buffer_load_dwordx4 v{A_DM}, {buf(S_WS, s(S_SO))} offset:{1024*j} sc1 lds"] for j in range(4)]
        l += [[f"s_add_u32 m0, s{S_M0}, 4096"]]
        l += [[f"buffer_load_dwordx4 v{A_DM}, {buf(S_WS, s(S_T0))} offset:{1024*j} sc1 lds"] for j in range(4)]
        l += [[f"s_add_u32 s{S_SO}, s{S_SO}, {BUFSZ}"], [f"s_add_u32 s{S_M0}, s{S_M0}, {BUFSZ}"], [f"s_and_b32 s{S_M0}, s{S_M0}, {4*BUFSZ-1}"]]
        return l
    sel = [[f"s_add_u32 s{S_T0}, s{S_T}, 3"], [f"s_cmp_lt_u32 s{S_T0}, s{S_NT}", f"s_cselect_b32 s{S_SO}, s{S_SO}, {OOB}"]]
    A(f"""s_lshr_b32 s{S_T2}, s{S_H}, 1
    s_lshl_b32 s{S_T2}, s{S_T2}, 6
    s_lshl_b32 s{S_T3}, s{S_TD}, 1
    s_add_u32 s{S_T2}, s{S_T2}, s{S_T3}
    s_lshl_b32 s{S_T2}, s{S_T2}, 1
    s_and_b32 s{S_T3}, s{S_H}, 1
    s_add_u32 s{S_T2}, s{S_T2}, s{S_T3}
    s_lshl_b32 s{S_T2}, s{S_T2}, 13
    s_add_u32 s{S_T2}, s{S_T2}, {QA_}""")
    for a in range(2):
        for q in range(2):
            A(f"s_add_u32 s{S_T3}, s{S_T2}, {a*16384 + q*4096}")
            for i in range(4): A(f"buffer_load_dwordx4 {R(QA + 32*a + 16*q + 4*i, 4)}, v{A_KC}, {buf(S_WS, s(S_T3))} offset:{1024*i} sc1")
    for t in range(3):
        for g in dma():
            for x in g: A(x)
    for r in range(OA, OA + 128): A(f"v_accvgpr_write_b32 a{r-256}, 0")
    for r in list(range(PB[1], PB[1] + 16, 2)) + list(range(NM, NM + 32, 2)) + [L_]: A(f"v_mov_b64 {v(r,2)}, 0")
    kfr = lambda ad, blk: [(ad, blk*16384 + ks*1024) for ks in range(8)]
    vfr = lambda ad, blk: [(ad, blk*16384 + 8192 + i*1024) for i in range(8)]
    rd = lambda i, f: f"ds_read_b128 {R(FR + 4*(i % NR), 4)}, v{f[0]} offset:{f[1]}"
    def s_mm(S, fi):
        return [[mf32(S + 16*a, FR + 4*((fi + ks) % NR), QA + 32*a + 4*ks, R(NM + 16*a if ks == 0 else S + 16*a, 16))] for ks in range(8) for a in range(2)]
    def pv_mm(P, fi):
        return [[mf32(OAa(i >> 1, a), FR + 4*((fi + i) % NR), P + 8*a + 4*(i & 1), R(OAa(i >> 1, a), 16))] for i in range(8) for a in range(2)]
    def add_reads(groups, frs):
        for i, f in enumerate(frs):
            groups[2*i].insert(1, rd(i + LEAD, f))
            groups[2*i + 1].insert(1, f"s_waitcnt lgkmcnt({LEAD-1})")
    prof(A, "at0")
    A("s_waitcnt vmcnt(16)\ns_barrier")
    prof(A, "at1")
    k0 = kfr(A_KC, 0); vp = vfr(A_VP, 1)
    for i in range(LEAD): A(rd(i, k0[i]))
    A(f"s_waitcnt lgkmcnt({LEAD-1})")
    g = s_mm(SB[0], 0); add_reads(g, k0[LEAD:] + vp[:LEAD])
    for x in sum(g, []): A(x)
    def softmax(par, mask, tag):
        S, P = SB[par], PB[par]
        pre = []
        if mask == 0: pre += diag_mask(S)
        if mask == 1: pre += diag_mask(S + 16) + [f"v_mov_b32 v{S+r}, v{TM+5}" for r in range(16)]
        t = TM
        pre.append(f"v_max3_f32 v{t}, v{S}, v{S+1}, v{S+2}")
        for i in range(3, 31, 2): pre.append(f"v_max3_f32 v{t}, v{t}, v{S+i}, v{S+i+1}")
        pre += [f"v_max_f32 v{t}, v{t}, v{S+31}", f"v_cmp_lt_f32 vcc, s{S_CT}, v{t}", "BR"]
        st = [[], []]
        for a in range(2):
            for i in range(0, 16, 2):
                r = S + 16*a + i
                st[0].append([f"v_exp_f32 v{r}, v{r}", f"v_exp_f32 v{r+1}, v{r+1}"])
                st[1].append([f"v_add_f32 v{L_+a}, v{L_+a}, v{r}", f"v_add_f32 v{L_+a}, v{L_+a}, v{r+1}", f"v_cvt_pk_bf16_f32 v{P + 8*a + i//2}, v{r}, v{r+1}"])
        body = []
        for k in range(17):
            if k < 16: body.append(st[0][k][0])
            if k > 0: body += st[1][k - 1][:2]
            if k < 16: body.append(st[0][k][1])
            if k > 0: body.append(st[1][k - 1][2])
        return pre, body
    cold = []
    def update(tag, par):
        S = SB[par]
        A.label(f"{name}_up{tag}")
        for a in range(2):
            s_ = S + 16*a; t, u = TM, TM + 1
            A(f"v_max3_f32 v{t}, v{s_}, v{s_+1}, v{s_+2}")
            for i in range(3, 15, 2): A(f"v_max3_f32 v{t}, v{t}, v{s_+i}, v{s_+i+1}")
            A(f"""v_max_f32 v{t}, v{t}, v{s_+15}
            v_mov_b32 v{u}, v{t}
            v_permlane32_swap_b32 v{u}, v{t}
            v_max3_f32 v{t}, v{t}, v{u}, s{S_DL}
            v_exp_f32 v{AL+a}, -v{t}""")
            for i in range(16): A(f"v_sub_f32 v{s_+i}, v{s_+i}, v{t}\nv_sub_f32 v{NM+16*a+i}, v{NM+16*a+i}, v{t}")
            A(f"v_min_f32 v{AL+a}, 1.0, v{AL+a}\nv_mul_f32 v{L_+a}, v{L_+a}, v{AL+a}")
        A(f"s_cmp_eq_u32 s{S_DL}, 0\ns_cselect_b32 s{S_FL}, 1, 0\ns_mov_b32 s{S_DL}, 0\ns_mov_b32 s{S_CT}, s{S_THR}\ns_branch {name}_upr{tag}")
        A.label(f"{name}_rs{tag}")
        A(f"s_mov_b32 s{S_RET}, {'abcd'.index(tag)}\ns_branch {name}_rescale")
    def step(par, mask, do_s, tag, nxt, extra=None, post=()):
        vf = vfr(A_VP, 1) if par == 0 else vfr(A_KC, 0)
        kf = kfr(A_KC, 1) if par == 0 else kfr(A_KN, 0)
        g = pv_mm(PB[1 - par], 0)
        if do_s:
            g += s_mm(SB[1 - par], 8)
            add_reads(g, vf[LEAD:] + kf + nxt)
        else:
            add_reads(g, vf[LEAD:] + nxt)
        if extra:
            for i, e in enumerate(extra): g[(2*i + 1) if do_s else i] += e
        g[15] += [f"s_cmp_eq_u32 s{S_FL}, 0", f"s_cbranch_scc0 {name}_rs{tag}", f"{name}_rsr{tag}:"]
        pre, body = softmax(par, mask, tag)
        npre = 6 if mask is None else 14
        g[npre] += [f"s_cbranch_vccnz {name}_up{tag}", f"{name}_upr{tag}:"]
        out = merge(g[:npre], pre[:-1], skip=skip) + merge(g[npre:], body + list(post))
        if post: assert out.index(post[0]) > max(i for i, x in enumerate(out) if x.startswith("ds_read"))
        for x in out: A(x)
        cold.append((tag, par))
    rot = [f"v_mov_b32 v{A_VP}, v{A_KC}", f"v_mov_b32 v{A_KC}, v{A_KN}", f"v_add_u32 v{A_KN}, {BUFSZ}, v{A_KN}", f"v_and_b32 v{A_KN}, {4*BUFSZ-1}, v{A_KN}"]
    A(f"s_cmp_eq_u32 s{S_TD}, 0\ns_cbranch_scc1 {name}_last")
    A(".p2align 3")
    A.label(f"{name}_loop")
    step(0, None, True, "a", vfr(A_KC, 0)[:LEAD], sel)
    A("s_waitcnt vmcnt(8)\ns_barrier")
    step(1, None, True, "b", vfr(A_KC, 1)[:LEAD], dma() + [[f"s_add_u32 s{S_T}, s{S_T}, 1"], [f"s_cmp_lt_u32 s{S_T}, s{S_TD}"]], rot)
    A(f"s_cbranch_scc1 {name}_loop")
    A.label(f"{name}_last")
    prof(A, "at2")
    step(0, 0, True, "c", vfr(A_KC, 0)[:LEAD], sel)
    A("s_waitcnt vmcnt(8)\ns_barrier")
    step(1, 1, False, "d", vfr(A_KC, 1)[:LEAD], dma())
    g = pv_mm(PB[1], 0)
    vf = vfr(A_KC, 1)
    for i in range(8):
        if i + LEAD < 8: g[2*i].append(rd(i + LEAD, vf[i + LEAD]))
        if i < 7: g[2*i + 1].append(f"s_waitcnt lgkmcnt({min(LEAD - 1, 6 - i)})")
    for x in sum(g, []): A(x)
    A(f"""s_lshl_b32 s{S_T2}, s{S_TD}, 19
    s_lshl_b32 s{S_T3}, s{S_H}, 12
    s_add_u32 s{S_T2}, s{S_T2}, s{S_T3}
    s_add_u32 s{S_T2}, s{S_T2}, {CTXA}
    s_add_u32 s{S_T3}, s{S_T2}, {2 << 17}""")
    A.label(f"{name}_idle")
    A(f"s_add_u32 s{S_T}, s{S_T}, 1\ns_cmp_ge_u32 s{S_T}, s{S_NT}\ns_cbranch_scc1 {name}_fin")
    A(f"s_waitcnt vmcnt(0)\ns_barrier\ns_branch {name}_idle")
    for tag, par in cold: update(tag, par)
    A.label(f"{name}_rescale")
    A("s_nop 7\ns_nop 3")
    for T in range(4):
        for a in range(2):
            for i in range(0, 16, 8):
                r = OAa(T, a) + i - 256
                for k in range(8): A(f"v_accvgpr_read_b32 v{160+k}, a{r+k}")
                for k in range(8): A(f"v_mul_f32 v{160+k}, v{160+k}, v{AL+a}")
                for k in range(8): A(f"v_accvgpr_write_b32 a{r+k}, v{160+k}")
    A(f"s_mov_b32 s{S_FL}, 0")
    for i, tag in enumerate("abc"): A(f"s_cmp_eq_u32 s{S_RET}, {i}\ns_cbranch_scc1 {name}_rsr{tag}")
    A(f"s_branch {name}_rsrd")
    A.label(f"{name}_fin")
    prof(A, "at3")
    for r in range(128): A(f"v_accvgpr_read_b32 v{O0+r}, a{OA-256+r}")
    ctx_store(A, 0, S_T2, L_)
    ctx_store(A, 1, S_T3, L_ + 1)

def emit_B(A, name, L_fail, fl="sc1", NW=56, slp=(1, 1, 8), fc=0, mx=0):
    lane_regs(A)
    L16, KM_A, VM_A, FA, KM_B, LV, FKV = 1, 2, 3, 4, 7, 16, 17
    SET = [256, 256 + 96]
    KM, VM = 96, 8
    S_IT, S_QO, S_RBK, S_MK, S_HC = S_M0, S_TD, S_NT, 64, S_J
    A(f"""v_and_b32 v{L16}, 63, v{TID}
    v_min_u32 v{FKV}, 47, v{L16}
    v_lshlrev_b32 v{L16}, 4, v{L16}
    v_bfe_u32 v{TM}, v{TID}, 5, 1
    v_and_b32 v{TM+1}, 1, v{TID}
    v_lshlrev_b32 v{KM_A}, 7, v{TM+1}
    v_lshl_add_u32 v{KM_A}, v{TM}, 6, v{KM_A}
    v_lshlrev_b32 v{VM_A}, 7, v{TM}
    v_bfe_u32 v{TM+1}, v{TID}, 1, 2
    v_lshl_add_u32 v{KM_A}, v{TM+1}, 4, v{KM_A}
    v_bfe_u32 v{TM+1}, v{TID}, 4, 1
    v_lshl_add_u32 v{VM_A}, v{TM+1}, 10, v{VM_A}
    v_bfe_u32 v{TM+1}, v{TID}, 3, 1
    v_lshl_add_u32 v{VM_A}, v{TM+1}, 4, v{VM_A}
    v_bfe_u32 v{TM+1}, v{TID}, 2, 1
    v_lshl_add_u32 v{VM_A}, v{TM+1}, 5, v{VM_A}
    v_and_b32 v{TM+1}, 3, v{TID}
    v_lshl_add_u32 v{VM_A}, v{TM+1}, 2, v{VM_A}
    v_mov_b32 v{FA}, 0
    v_lshlrev_b32 v{FKV}, 7, v{FKV}
    v_mul_u32_u24 v{TM}, {F_BQ - F_BKV - 32*128}, v{TM}
    v_add_u32 v{FKV}, v{FKV}, v{TM}
    v_add_u32 v{FKV}, {F_BKV}, v{FKV}
    v_mov_b32 v{TM+5}, s{S_NEG}
    s_mov_b32 s{S_KVH}, 0
    s_mov_b32 s{S_K}, {-fc}
    s_mov_b32 s{S_KD}, 0
    s_mov_b32 s{S_RBK}, -1""")
    if not PROF["st"]:
        for r in range(16): A(f"v_cmp_le_i32 s[{S_MK+2*r}:{S_MK+2*r+1}], {8*(r >> 2) + (r & 3)}, v{A_MK}")
    def next_addr(it):
        L, L1, L2, L3 = A.uniq("L_nb"), A.uniq("L_nb"), A.uniq("L_nb"), A.uniq("L_nb")
        A(f"""{L1}:
        s_ff1_i32_b64 s{it}, s[{S_SM}:{S_SM+1}]
        s_cmp_lt_u32 s{S_HC}, 32
        s_cbranch_scc1 {L2}
        s_bitset0_b64 s[{S_SM}:{S_SM+1}], s{it}
        s_sub_u32 s{S_HC}, s{S_HC}, 32
        s_add_u32 s{S_K}, s{S_K}, 1
        s_branch {L1}
        {L2}:
        s_lshl_b32 s{it}, s{it}, 5
        s_add_u32 s{it}, s{it}, s{S_HC}
        s_add_u32 s{S_HC}, s{S_HC}, {NW}
        s_lshl_b32 s{S_SO}, s{it}, 14
        s_add_u32 s{S_SO}, s{S_SO}, {KVB}
        s_lshl_b32 s{S_QO}, s{it}, 13
        s_add_u32 s{S_QO}, s{S_QO}, {QB_}
        s_cmp_ge_u32 s{it}, 2048
        s_cselect_b32 s{S_QO}, {OOB}, s{S_QO}
        s_cselect_b32 s{S_SO}, {OOB}, s{S_SO}
        s_cbranch_scc1 {L}""")
        if fc:
            A(f"s_cmp_le_i32 s{S_K}, s{S_KD}\ns_cbranch_scc1 {L3}")
            poll(A, FA, TM, s(S_DL), f"v_cmp_gt_i32 vcc, s{S_K}, v{TM}", L_fail, sleep=4)
            A(f"v_readfirstlane_b32 s{S_KD}, v{TM}\n{L3}:")
        A(f"""s_lshr_b32 s{S_T1}, s{it}, 8
        s_lshl_b32 s{S_T1}, s{S_T1}, 2
        s_cmp_eq_u32 s{S_T1}, s{S_RBK}
        s_cbranch_scc1 {L}
        s_mov_b32 s{S_RBK}, s{S_T1}""")
        poll(A, FKV, TM, s(S_RBK), f"v_cmp_ne_u32 vcc, 1, v{TM}", L_fail, sleep=slp[2], back=slp[3])
        A.label(L)
    def prefetch(p):
        l = []
        for k, (so, off, ad) in enumerate(((S_QO, 0, L16), (S_SO, 0, L16), (S_SO, 8192, L16))):
            for q in range(2):
                for i in range(4):
                    l.append((f"s_add_u32 s{S_T1}, s{so}, {off + q*4096}\n" if i == 0 else "") +
                             f"buffer_load_dwordx4 {R(SET[p] + 32*k + 16*q + 4*i, 4)}, v{ad}, {buf(S_WS, s(S_T1))} offset:{1024*i} sc1")
        return l
    next_addr(S_IT)
    A(f"s_cmp_ge_u32 s{S_IT}, 2048\ns_cbranch_scc1 {name}_x")
    for x in prefetch(0): A(x)
    A("s_waitcnt vmcnt(0)")
    S_PFX, S_XM = 60, 30
    S_PFL = S_CT
    flag = f"""v_mov_b32 v{TM}, 1
        s_waitcnt vmcnt(0)
        s_mov_b64 exec, 1
        buffer_store_dword v{TM}, v{FA}, {buf(S_WS, s(S_PFL))} {fl}
        {f"buffer_store_dword v{TM}, v{FA}, {buf(S_WS, s(S_PFX))} sc1" if mx else ""}
        s_mov_b64 exec, -1"""
    x1 = 1 if mx else 0
    A(f"s_mov_b32 s{S_PFL}, {OOB}\ns_mov_b32 s{S_PFX}, {OOB}\ns_mov_b32 s{S_XM}, {mx & 0xffffffff:#x}\ns_mov_b32 s{S_XM+1}, {mx >> 32:#x}")
    A.label(name)
    for p in range(2):
        Q, KX, VX = SET[p], SET[p] + 32, SET[p] + 64
        S, SM, P, t, u = SB[0], SB[1], SB[1] + 16, M_, TM
        A("s_waitcnt vmcnt(8)")
        for ks in range(8): A(mf32(S, KX + 4*ks, Q + 4*ks, "0" if ks == 0 else R(S, 16)))
        A(f"""s_and_b32 s{S_H}, s{S_IT}, 31
        s_lshr_b32 s{S_T}, s{S_IT}, 5
        s_lshl_b32 s{S_T2}, s{S_IT}, 12
        s_add_u32 s{S_T2}, s{S_T2}, {KVM}""")
        if PROF["st"]:
            for x in diag_mask(S): A(x)
        else:
            for r in range(16): A(f"v_cndmask_b32 v{S+r}, v{TM+5}, v{S+r}, s[{S_MK+2*r}:{S_MK+2*r+1}]")
        A(f"v_max3_f32 v{t}, v{S}, v{S+1}, v{S+2}")
        for i in range(3, 15, 2): A(f"v_max3_f32 v{t}, v{t}, v{S+i}, v{S+i+1}")
        A(f"v_max_f32 v{t}, v{t}, v{S+15}")
        kml = [f"buffer_load_dwordx4 {v(KM + 4*ks, 4)}, v{KM_A}, {buf(S_WS, s(S_T2))} offset:{(ks >> 1)*512 + (ks & 1)*256} sc1" for ks in range(8)]
        kml += [f"buffer_load_dword v{VM + 2*T + j}, v{VM_A}, {buf(S_WS, s(S_T2))} offset:{2048 + T*256 + j*64} sc1" for T in range(4) for j in range(2)]
        smm = lambda ks: mf32(SM, KM + 4*ks, Q + 4*ks, "0" if ks == 0 else R(SM, 16))
        pf = prefetch(1 - p)
        Lk, Lj = A.uniq("L_kn"), A.uniq("L_kj")
        A(f"s_cmp_lt_u32 s{S_T}, s{S_KVH}\ns_cbranch_scc1 {Lk}")
        A(flag)
        next_addr(S_FL)
        for x in pf: A(x)
        prof(A, "bt0")
        A(f"s_lshl_b32 s{S_T1}, s{S_H}, 7\ns_add_u32 s{S_T1}, s{S_T1}, {F_TEAM}")
        poll(A, FA, TM, s(S_T1), f"v_cmp_ge_u32 vcc, s{S_T}, v{TM}", L_fail, sleep=slp[1], back=slp[3])
        prof(A, "bt1")
        for x in kml: A(x)
        A(f"v_readfirstlane_b32 s{S_KVH}, v{TM}\ns_min_u32 s{S_KVH}, s{S_KVH}, 63\ns_sub_u32 s{S_KVH}, s{S_KVH}, 1")
        for ks in range(8): A(f"s_waitcnt vmcnt({15 - ks})\n{smm(ks)}")
        A(f"s_waitcnt vmcnt(0)\ns_branch {Lj}")
        A.label(Lk)
        for x in kml: A(x)
        A(flag.replace("vmcnt(0)", "vmcnt(16)"))
        next_addr(S_FL)
        for x in pf[:8]: A(x)
        for ks in range(8):
            A(f"s_waitcnt vmcnt({15 - ks + 9 + x1 + 2*ks})\n{smm(ks)}\n{pf[8 + 2*ks]}\n{pf[9 + 2*ks]}")
        A(f"s_waitcnt vmcnt({25 + x1})")
        A.label(Lj)
        prof(A, "bt2")
        A(f"""v_max3_f32 v{t}, v{t}, v{SM}, v{SM+1}
        v_max3_f32 v{t}, v{t}, v{SM+2}, v{SM+3}
        v_mov_b32 v{u}, v{t}
        v_permlane32_swap_b32 v{u}, v{t}
        v_max_f32 v{t}, v{t}, v{u}
        v_mul_f32 v{t}, s{S_C}, v{t}""")
        regs = [SM + i for i in range(4)] + [S + i for i in range(16)]
        for r in regs[::2]: A(f"v_pk_fma_f32 {v(r,2)}, {v(r,2)}, s[{S_C}:{S_C+1}], {v(t,2)} op_sel_hi:[1,0,0] neg_lo:[0,0,1] neg_hi:[0,0,1]")
        ex = lambda l: [f"v_exp_f32 v{r}, v{r}" for r in l]
        cv = lambda d, r, n: [f"v_cvt_pk_bf16_f32 v{d + i}, v{r+2*i}, v{r+2*i+1}" for i in range(n)]
        for x in ex(regs[:6]) + cv(P + 8, SM, 2): A(x)
        o = lambda T: Oa(T, 0)
        g = [[f"v_mfma_f32_32x32x8_bf16 {v(o(T),16)}, {v(VM + 2*T, 2)}, {v(P + 8, 2)}, 0"] for T in range(4)]
        for x in merge(g, ex(regs[6:14]) + cv(P, S, 4)): A(x)
        adds = [f"v_add_f32 v{L_}, v{regs[0]}, v{regs[1]}"] + [f"v_add_f32 v{L_}, v{L_}, v{r}" for r in regs[2:]]
        g = [[mf32(o(T), VX + 8*T, P, R(o(T), 16))] for T in range(4)]
        for x in merge(g, ex(regs[14:]) + adds[:5] + cv(P + 4, S + 8, 4)): A(x)
        g = [[mf32(o(T), VX + 8*T + 4, P + 4, R(o(T), 16))] for T in range(4)]
        for x in merge(g, adds[5:], tail=1): A(x)
        A(f"""s_lshl_b32 s{S_T2}, s{S_T}, 18
        s_lshl_b32 s{S_T3}, s{S_H}, 12
        s_add_u32 s{S_T2}, s{S_T2}, s{S_T3}
        s_add_u32 s{S_T2}, s{S_T2}, {CTXB}""")
        if mx:
            Lx, Ly = A.uniq("L_cx"), A.uniq("L_cy")
            A(f"s_bitcmp1_b64 s[{S_XM}:{S_XM+1}], s{S_T}\ns_cbranch_scc0 {Lx}")
            ctx_store(A, 0, S_T2, L_, "sc1")
            A(f"s_branch {Ly}\n{Lx}:")
        ctx_store(A, 0, S_T2, L_, fl)
        if mx: A.label(Ly)
        prof(A, "bt3")
        A(f"""s_lshl_b32 s{S_PFL}, s{S_IT}, 2
        s_add_u32 s{S_PFL}, s{S_PFL}, {F_CTXB}
        s_bitcmp1_b64 s[{S_XM}:{S_XM+1}], s{S_T}
        s_cselect_b32 s{S_PFX}, s{S_PFL}, {OOB}
        s_cselect_b32 s{S_PFL}, {OOB}, s{S_PFL}
        s_mov_b32 s{S_IT}, s{S_FL}
        s_cmp_lt_u32 s{S_IT}, 2048""")
        A(f"s_cbranch_scc0 {name}_f" if p == 0 else f"s_cbranch_scc1 {name}")
    A.label(f"{name}_f")
    A(flag)
    A.label(f"{name}_x")
```

```python
WS_BYTES = 0x10000000
KVA   = 0x0000000
KVB   = 0x2000000
CTXA  = 0x4000000
CTXB  = 0x5000000
KVM   = 0x6000000
PART  = 0x6800000
PART_SZ = 72 * 4096
MEMI  = 0x6900000
MEM0  = 0x6980000
BELL  = 0x69C0000
FLAGS = 0x6A00000
STAMP = 0x6B00000
OOB   = 0x20000000
A_X, A_CKV, A_WQ, A_WUK, A_WUV, A_WO, B_X, B_MEM0, B_WQ, B_WK, B_WV, B_WO, B_SEG, OUT, DBG, WS = range(16)
import math
SCALE_LOG2E = (128 ** -0.5) * math.log2(math.e)
import struct
def f32bits(x): return struct.unpack("<I", struct.pack("<f", x))[0]
F_BKV  = FLAGS
F_TEAM = FLAGS + 0x1000
F_CTXB = FLAGS + 0x2000
F_AKV  = FLAGS + 0x4000
F_CTXA = FLAGS + 0x5000
F_FC   = FLAGS + 0x5800
F_AQ   = FLAGS + 0x6000
F_BQ   = FLAGS + 0x7000
F_SIZE = 0x8000
QA_ = 0x7000000
QB_ = 0x8000000
D_TEAM, D_INIT = 64, 128
```

```python
import sys, os
sys.path.insert(0, os.path.dirname(os.path.abspath(__file__)))
from common import *
import gemm as G, attn as AT, attn16 as A16, oproj as OP, team as T

NAME = "concat_heads__compressed_kv_cla__memory_aug_recurrent_mem_tr__prompt"
TEAM = {'gv': 11, 'dL': 0, 'nv1': 4, 'zl': True, 'ep': 4, 'd2': 10, 'ndup': 1, 'dupw': 0, 'vper': 3, 'lag': 3, 'vgap': 1, 'd1': 69, 'd0': 33, 'a1': None, 'a0': None, 'dA': 17, 'fa': True, 'gs': 6, 'dup': 15, 'cpos': 0, 'bpos': 3, 'jd': 19, 'jd0': 15, 'kxb': True, 'qe': 1, 'rsp': 1, 'kxe': True, 'g8f': True, 'fm': True, 'vp': 6, 'fb': False}
S_I = 60
S_OUT = 61

def set_flag(A, s_off, val):
    L = A.uniq("L_sf")
    A(f"s_waitcnt vmcnt(0)\ns_barrier\ns_cmp_lg_u32 s{S_WV}, 0\ns_cbranch_scc1 {L}")
    A(f"v_mov_b32 v20, 0\nv_mov_b32 v21, {val}\ns_mov_b64 exec, 1\nbuffer_store_dword v21, v20, {buf(S_WS, s(s_off))} sc1\ns_mov_b64 exec, -1")
    A.label(L)

def wait_init(A):
    A(f"v_mov_b32 v20, {D_INIT}")
    poll(A, 20, 21, 0, "v_cmp_ne_u32 vcc, 8, v21", "L_end", srd=S_DBG)

def near(text):
    a, b = text.split("L_g_first:\n")
    import re
    return re.sub(r"(s_c?branch\w*) L_end\b", r"\1 L_end0", a) + "L_g_first:\n" + b.replace(" offset:0\n", "\n").replace(" offset:0 ", " ")

def stamp(A, i, on):
    if on: A(f"s_memrealtime s[{64+2*i}:{65+2*i}]")

def gen(stamps=False, roles="tpba", team_kw=None, marks=None, xmap=(2, 4, 1, 0, 3, 5, 6, 7), thr=20.0, bfl="", s0=9, nl=23, pl=(), probe=None, m16=True, st0=False, urg=2, fc=0, aopt=None, wb=None, loc=True, slp=(1, 1, 8, (32, 32)), border='yzbqc', gopt=None, oopt=None, ldfl='', cpf=True, lorder='xoq', burst=None, xpf=True, cpf2=True, touch=True, la=0, lb=4, half0=True, epf=(B_WO, B_WQ), e0=0, l0=8, nsl=8, wol=False, nx=(0, 0), xlim=52, npp=28, na=(9, 9, 9, 10, 9, 9, 9)):
    OP.OPT.update({'rot': True}); OP.OPT.update(oopt or {})
    G.OPT.clear(); G.OPT.update({'st': 'sc1', 'drop': False, 'pf': True, 'pf0': 0, 'npf': 16, 'no': [], 'nobar': False}); G.OPT.update(gopt or {})
    assert loc or bfl == 'sc1'
    A = Asm()
    PROF['on'] = marks; PROF['st'] = stamps
    S_ROLE = S_XCC
    A(f"""s_cmp_lt_u32 s2, 256
    s_cbranch_scc1 L_go
    L_end0:
    s_endpgm
    L_go:
    s_getreg_b32 s{S_XCC}, hwreg(HW_REG_XCC_ID)
    s_and_b32 s{S_XCC}, s{S_XCC}, 7
    s_load_dwordx2 s[4:5], s[0:1], {WS*8}
    s_load_dwordx2 s[6:7], s[0:1], {DBG*8}
    v_lshrrev_b32 v1, 6, v0
    v_readfirstlane_b32 s{S_WV}, v1""")
    if stamps:
        for r in range(64, 102): A(f"s_mov_b32 s{r}, 0")
    if st0: stamp(A, 0, stamps)
    A("s_waitcnt lgkmcnt(0)")
    if not st0: stamp(A, 0, stamps)
    A.srd(S_WS, 4, WS_BYTES)
    A.srd(S_DBG, 6, 256)
    A(f"""s_lshl_b32 s{S_T0}, s{S_XCC}, 2
    s_cmp_eq_u32 s{S_WV}, 0
    s_cbranch_scc0 L_tk
    v_lshlrev_b32 v3, 12, v0
    s_mov_b64 exec, 1
    v_mov_b32 v1, 1
    v_mov_b32 v2, 0
    buffer_atomic_add v1, v2, {buf(S_DBG, s(S_T0))} sc0
    s_mov_b64 exec, -1""")
    A(f"""s_getpc_b64 s[4:5]
    L_pc:
    s_mov_b32 s{S_X}, s4
    s_and_b32 s{S_X+1}, s5, 0xffff
    s_mov_b32 s{S_X+2}, L_end-L_pc
    s_mov_b32 s{S_X+3}, 0x20000
    s_lshr_b32 s{S_T1}, s2, 3
    s_lshl_b32 s{S_T1}, s{S_T1}, 7
    buffer_load_dword a255, v3, {buf(S_X, s(S_T1))}
    s_mov_b64 exec, 1
    s_waitcnt vmcnt(1)
    ds_write_b32 v2, v1
    s_waitcnt lgkmcnt(0)
    s_mov_b64 exec, -1
    L_tk:
    s_barrier
    v_mov_b32 v2, 0
    ds_read_b32 v1, v2
    s_lshr_b32 s{S_ROLE}, {sum(r << 4*i for i, r in enumerate(xmap)):#x}, s{S_T0}
    s_and_b32 s{S_ROLE}, s{S_ROLE}, 7
    s_waitcnt lgkmcnt(0)
    v_readfirstlane_b32 s{S_RANK}, v1
    s_barrier
    s_cmp_ge_u32 s{S_RANK}, 32
    s_cbranch_scc1 L_end
    s_cmp_eq_u32 s{S_ROLE}, 0
    s_cbranch_scc1 {"L_team" if "t" in roles else "L_end"}
    s_cmp_eq_u32 s{S_ROLE}, 1
    s_cbranch_scc0 L_np
    s_cmp_lt_u32 s{S_RANK}, 24
    s_cbranch_scc1 L_np
    v_lshlrev_b32 v1, 4, v0
    v_mov_b64 v[4:5], 0
    v_mov_b64 v[6:7], 0
    s_sub_u32 s{S_T0}, s{S_RANK}, 24
    s_lshl_b32 s{S_T0}, s{S_T0}, 12
    s_add_u32 s{S_T0}, s{S_T0}, {FLAGS}
    buffer_store_dwordx4 v[4:7], v1, {buf(S_WS, s(S_T0))} sc1
    s_waitcnt vmcnt(0)
    s_barrier
    s_cmp_lg_u32 s{S_WV}, 0
    s_cbranch_scc1 L_np
    v_mov_b32 v1, 1
    v_mov_b32 v2, {D_INIT}
    s_mov_b64 exec, 1
    buffer_atomic_add v1, v2, {buf(S_DBG, 0)}
    s_mov_b64 exec, -1
    L_np:""")
    if "b" not in roles: A(f"s_cmp_lt_u32 s{S_ROLE}, 4\ns_cbranch_scc1 L_end")
    if "a" not in roles: A(f"s_cmp_ge_u32 s{S_ROLE}, 4\ns_cbranch_scc1 L_end")
    PX, PQX, PW, PWQ = 52, 54, 6, 18
    S_ISB, S_TY, S_RB, S_HD = 61, 2, S_T2, S_T3
    A(f"s_cmp_lt_u32 s{S_ROLE}, 4\ns_cselect_b32 s{S_ISB}, 1, 0\ns_cbranch_scc1 L_pb")
    def ptrs(x, qx, wk, wv, wq, nt):
        A(f"""s_load_dwordx2 s[{PX}:{PX+1}], s[0:1], {x*8}
        s_load_dwordx2 s[{PQX}:{PQX+1}], s[0:1], {qx*8}
        s_load_dwordx2 s[{PW}:{PW+1}], s[0:1], {wk*8}
        s_load_dwordx2 s[4:5], s[0:1], {wv*8}
        s_load_dwordx2 s[{PWQ}:{PWQ+1}], s[0:1], {wq*8}
        s_mov_b32 s{G.S_NT}, {nt}""")
    S_TAB, S_HKV, S_HQ = 88, 89, 90
    ptrs(A_CKV, A_X, A_WUK, A_WUV, A_WQ, 3)
    A(f"""s_sub_u32 s{S_T0}, s{S_ROLE}, 4
    s_lshl_b32 s{S_T0}, s{S_T0}, 5
    s_add_u32 s{S_T0}, s{S_T0}, s{S_RANK}
    s_lshr_b32 s{S_HKV}, s{S_T0}, 2
    s_lshr_b32 s{S_HQ}, s{S_T0}, 3
    s_and_b32 s{S_T0}, s{S_RANK}, 3
    s_mul_i32 s{S_TAB}, s{S_T0}, 0x11
    s_and_b32 s{S_T0}, s{S_RANK}, 7
    s_bitcmp1_b32 s{S_RANK}, 2
    s_cselect_b32 s{S_T1}, 3, 0
    s_xor_b32 s{S_T0}, s{S_T0}, s{S_T1}
    s_lshl_b32 s{S_T0}, s{S_T0}, 8
    s_add_u32 s{S_TAB}, s{S_TAB}, s{S_T0}
    s_add_u32 s{S_TAB}, s{S_TAB}, 0x840
    s_branch L_pg
    L_pb:""")
    ptrs(B_X, B_X, B_WK, B_WV, B_WQ, 6)
    tabs = []
    for r in range(4):
        l = [{'x': 1 if r % 2 == 0 else 8 + (r >> 1), 'a': 2 + (r & 1), 'y': 1 + (r & 1), 'z': 3 if r % 2 == 0 else 8 + (r >> 1),
              'q': 10 + r, 'b': 4 + (r & 1), 'c': 6 + (r & 1)}[x] for x in border] + [14 + (r & 1)]
        tabs.append(sum(x << 4*i for i, x in enumerate(l)))
    A(f"""s_sub_u32 s{S_T0}, s{S_ROLE}, 2
    s_lshl_b32 s{S_T0}, s{S_T0}, 5
    s_add_u32 s{S_T0}, s{S_T0}, s{S_RANK}
    s_lshr_b32 s{S_HKV}, s{S_T0}, 1
    s_lshr_b32 s{S_HQ}, s{S_T0}, 2
    s_mov_b32 s{S_TAB}, {tabs[0]:#x}
    s_mov_b32 s{S_T1}, {tabs[2]:#x}
    s_bitcmp1_b32 s{S_RANK}, 0
    s_cselect_b32 s{S_TAB}, {tabs[1]:#x}, s{S_TAB}
    s_cselect_b32 s{S_T1}, {tabs[3]:#x}, s{S_T1}
    s_bitcmp1_b32 s{S_RANK}, 1
    s_cselect_b32 s{S_TAB}, s{S_T1}, s{S_TAB}
    s_cselect_b32 s{G.S_NT}, 5, 6
    {f"s_add_u32 s{G.S_NT}, s{S_ROLE}, 3" if loc else ""}
    s_cmp_eq_u32 s{S_ROLE}, 1
    s_cselect_b32 s{G.S_NT}, 1, s{G.S_NT}
    s_cselect_b32 s{S_TAB}, 0, s{S_TAB}
    s_cselect_b32 s{S_HKV}, s{S_RANK}, s{S_HKV}""")
    A(f"L_pg:\ns_waitcnt lgkmcnt(0)\ns_cmp_ge_u32 s{S_WV}, 2\ns_cselect_b64 s[{PW}:{PW+1}], s[4:5], s[{PW}:{PW+1}]")
    if xpf:
        A(f"""s_cmp_eq_u32 s{S_ISB}, 0
        s_cselect_b32 s{S_T0}, 4, 1
        s_mov_b32 s{S_X+2}, {768*1152}
        s_cselect_b32 s{S_X+2}, {1 << 20}, s{S_X+2}
        s_sub_u32 s{S_T0}, s{S_ROLE}, s{S_T0}
        s_lshl_b32 s{S_T0}, s{S_T0}, 5
        s_add_u32 s{S_T0}, s{S_T0}, s{S_RANK}
        s_lshl_b32 s{S_T0}, s{S_T0}, 13
        s_mov_b32 s{S_X}, s{PX}
        s_and_b32 s{S_X+1}, s{PX+1}, 0xffff
        s_mov_b32 s{S_X+3}, 0x20000
        v_lshlrev_b32 v{G.G_JK}, 5, v{TID}
        buffer_load_dword v{G.G_JK}, v{G.G_JK}, {buf(S_X, s(S_T0))}""")
    if G.OPT['pf']:
        SL = nsl * 16384
        A(f"s_sub_u32 s{S_T0}, 7, s{S_ROLE}\ns_mul_i32 s{S_T1}, s{S_RANK}, 6\ns_add_u32 s{S_T0}, s{S_T0}, s{S_T1}")
        first = 0
        items = [(x, 0, 576*8192, e0) for x in epf] + [(A_CKV, 1 << 20, 2048*1024, l0), (B_X, 96*8192, 2048*1152, l0), (A_X, 0, 2048*1152, l0), (A_WQ, 0, 576*8192, l0)] + ([] if wol else [(A_WO, 0, 576*8192, l0)])
        for k, (slot, off, size, st0) in enumerate(items):
            n = -(-(size - off) // SL)
            L = A.uniq("L_pf")
            if k < len(items) - 1: A(f"s_cmp_ge_u32 s{S_T0}, {first + n}\ns_cbranch_scc1 {L}")
            A(f"s_load_dwordx2 s[4:5], s[0:1], {slot*8}\ns_sub_u32 s{S_T1}, s{S_T0}, {first}\ns_mul_i32 s{S_T1}, s{S_T1}, {SL}\ns_add_u32 s{S_T1}, s{S_T1}, {off}")
            A(f"s_min_u32 s{S_T1}, s{S_T1}, {size}\ns_sub_u32 s{G.S_PS+2}, {size}, s{S_T1}\ns_mov_b32 s{G.S_PFO}, {(-st0*16384) & 0xffffffff:#x}\ns_branch L_pfd")
            A.label(L); first += n
        assert first <= 192
        A(f"""L_pfd:
        s_min_u32 s{G.S_PS+2}, s{G.S_PS+2}, {SL}
        s_waitcnt lgkmcnt(0)
        s_add_u32 s{G.S_PS}, s4, s{S_T1}
        s_addc_u32 s5, s5, 0
        s_and_b32 s{G.S_PS+1}, s5, 0xffff
        s_mov_b32 s{G.S_PS+3}, 0x20000
        s_cmp_eq_u32 s{S_ROLE}, 1
        s_cselect_b32 s{G.S_PFO}, {OOB}, s{G.S_PFO}
        v_lshlrev_b32 v{G.G_PF}, 6, v{TID}""")
    if burst:
        L = A.uniq("L_bu")
        A(f"s_and_b32 s{S_T0}, s{S_ROLE}, 6\ns_cmp_eq_u32 s{S_T0}, 2\ns_cbranch_scc0 {L}")
        A(f"s_and_b32 s{S_T0}, s{S_ROLE}, 1\ns_lshl_b32 s{S_T0}, s{S_T0}, 5\ns_add_u32 s{S_T0}, s{S_T0}, s{S_RANK}\ns_lshl_b32 s{S_T0}, s{S_T0}, 13")
        A(f"v_and_b32 v1, 63, v{TID}\nv_lshlrev_b32 v1, 7, v1")
        A(f"s_lshl_b32 s{S_T1}, s{S_WV}, 3\ns_lshr_b32 s{S_T1}, {sum(x*8 << 8*i for i, x in enumerate(burst)):#x}, s{S_T1}\ns_and_b32 s{S_T1}, s{S_T1}, 0xff")
        A(f"s_load_dwordx2 s[4:5], s[0:1], s{S_T1}\ns_waitcnt lgkmcnt(0)")
        A.srd(S_X, 4, 576*8192)
        for i in range(9): A(f"buffer_load_dword v2, v1, {buf(S_X, s(S_T0))}\ns_add_u32 s{S_T0}, s{S_T0}, {64*8192}")
        A("s_waitcnt vmcnt(0)")
        A.label(L)
    def atoms(text):
        l = []
        for x in (y.strip() for y in text.split("\n")):
            if x.startswith("s_cselect"): l[-1].append(x)
            else: l.append([x])
        return l
    NX = G.S_NX
    par_a = (atoms(f"s_lshr_b32 s{S_T0}, s{S_RANK}, 1\ns_cmp_eq_u32 s{NX}, 5\ns_cselect_b32 s{S_HQ}, s{S_T0}, s{S_HQ}") if loc else []) + atoms(f"""s_lshl_b32 s{S_T0}, s{NX}, 2
        s_lshr_b32 s{S_RB}, s{S_TAB}, s{S_T0}
        s_bfe_u32 s{S_TY}, s{S_RB}, 0x10003
        s_and_b32 s{S_RB}, s{S_RB}, 7
        s_or_b32 s{G.S_NNB}, s{S_TY}, s{S_ISB}
        s_lshr_b32 s{S_T0}, s{S_WV}, 1
        s_cmp_eq_u32 s{S_TY}, 0
        s_cselect_b32 s{G.S_NSW}, s{S_T0}, 0
        s_cselect_b32 s{S_HD}, s{S_HKV}, s{S_HQ}
        s_sub_u32 s{S_T1}, s{S_T0}, s{G.S_NSW}
        s_and_b32 s{G.S_NV}, s{G.S_NSW}, s{S_ISB}
        s_lshl_b32 s{G.S_NV}, s{G.S_NV}, 1
        s_or_b32 s{G.S_NV}, s{G.S_NV}, s{G.S_NSW}
        s_lshl2_add_u32 s{G.S_NV}, s{S_TY}, s{G.S_NV}
        s_lshl_b32 s{G.S_COL}, s{S_HD}, s{S_TY}
        s_add_u32 s{G.S_COL}, s{G.S_COL}, s{S_T1}
        s_lshl_b32 s{G.S_COL}, s{G.S_COL}, 8
        s_lshl_b32 s{G.S_XST}, s{G.S_NNB}, 7
        s_add_u32 s{G.S_XST}, s{G.S_XST}, 1024
        s_mul_i32 s{G.S_NXO}, s{S_RB}, s{G.S_XST}
        s_lshl_b32 s{G.S_NXO}, s{G.S_NXO}, 8
        s_and_b32 s{S_T1}, s{S_WV}, 1
        s_lshl1_add_u32 s{G.S_NO}, s{S_RB}, s{S_T1}
        s_lshl_b32 s{G.S_NO}, s{G.S_NO}, 7
        s_lshr_b32 s{G.S_NO}, s{G.S_NO}, s{S_TY}
        s_add_u32 s{G.S_NO}, s{G.S_NO}, s{S_HD}
        s_lshl1_add_u32 s{G.S_NO}, s{G.S_NO}, s{S_T0}
        s_lshl_b32 s{G.S_NO}, s{G.S_NO}, 13
        s_lshl_b32 s{G.S_NF}, s{S_HD}, 5
        s_add_u32 s{G.S_NF}, s{G.S_NF}, s{S_RB}
        s_lshl_b32 s{G.S_NF}, s{G.S_NF}, 2
        s_lshl_b32 s{S_T0}, s{S_TY}, 1
        s_add_u32 s{S_T0}, s{S_T0}, s{S_ISB}
        s_lshl_b32 s{S_T0}, s{S_T0}, 2
        s_lshr_b32 s{S_T1}, {(KVA >> 24) | (KVB >> 24) << 4 | (QA_ >> 24) << 8 | (QB_ >> 24) << 12:#x}, s{S_T0}
        s_and_b32 s{S_T1}, s{S_T1}, 15
        s_lshl_b32 s{S_T1}, s{S_T1}, 24
        s_add_u32 s{G.S_NO}, s{G.S_NO}, s{S_T1}
        s_lshr_b32 s{S_T1}, {sum(((f - FLAGS) >> 12) << 4*i for i, f in enumerate((F_AKV, F_BKV, F_AQ, F_BQ))):#x}, s{S_T0}
        s_and_b32 s{S_T1}, s{S_T1}, 15
        s_lshl_b32 s{S_T1}, s{S_T1}, 12
        s_add_u32 s{G.S_NF}, s{G.S_NF}, s{S_T1}
        s_add_u32 s{G.S_NF}, s{G.S_NF}, {FLAGS}
        s_cmp_lt_u32 s{NX}, s{G.S_NT}
        s_cselect_b32 s{G.S_NXO}, s{G.S_NXO}, {OOB}
        s_cselect_b32 s{G.S_COL}, s{G.S_COL}, {OOB}""")
    par_x = atoms(f"""s_cmp_eq_u32 s{S_TY}, 0
        s_cselect_b64 s[4:5], s[{PX}:{PX+1}], s[{PQX}:{PQX+1}]
        s_mov_b32 s{S_X}, s4
        s_and_b32 s{S_X+1}, s5, 0xffff
        s_lshl_b32 s{S_X+2}, s{G.S_XST}, 11
        s_mov_b32 s{S_X+3}, 0x20000
        s_mov_b32 s{G.S_XO}, s{G.S_NXO}""") + [[x] for x in G.x_params(G.S_XST)]
    par_w = atoms(f"""s_cmp_eq_u32 s{S_TY}, 0
        s_cselect_b64 s[4:5], s[{PW}:{PW+1}], s[{PWQ}:{PWQ+1}]
        s_mov_b32 s{S_W}, s4
        s_and_b32 s{S_W+1}, s5, 0xffff
        s_lshl_b32 s{S_W+2}, s{G.S_XST}, 12
        s_mov_b32 s{S_W+3}, 0x20000
        s_mov_b32 s{G.S_WO}, s{G.S_COL}""")
    A(f"s_cmp_eq_u32 s{S_ROLE}, 1\ns_cselect_b32 s91, 1, 0\ns_andn2_b32 s95, s{S_ISB}, s{S_RANK}")
    G.run(A, "L_g", par_a, par_x, par_w, wait_init, {1: S_ISB, 0: 91, 2: 95}[urg], 91 if half0 else None, f"s_cmp_eq_u32 s{S_ISB}, 0\ns_cbranch_scc1 L_att")
    stamp(A, 1, stamps)
    A(f"s_cmp_eq_u32 s{S_ROLE}, 1\ns_cbranch_scc1 L_part\ns_branch L_bdie")
    A.label("L_att")
    stamp(A, 1, stamps)
    H = AT.S_H
    A(f"""s_mov_b32 s{A16.S_QO}, s{G.S_CO}
    s_mov_b32 s{A16.S_PF}, s{G.S_CF}
    s_mov_b32 s{H}, s{S_HKV}
    s_bfe_u32 s{AT.S_J}, s{S_TAB}, 0x30008
    s_sub_u32 s{A16.S_NJ}, 7, s{AT.S_J}""")
    AT.consts(A, thr)
    if wol:
        srd_arg(A, S_W, A_WO, 4096*576*2)
        A(f"s_sub_u32 s97, s{S_ROLE}, 4\ns_lshl_b32 s97, s97, 5\ns_add_u32 s97, s97, s{S_RANK}\ns_mul_i32 s97, s97, {4096*576*2 // 128}")
    one = bool(marks and "one" in marks)
    A16.emit(A, "L_at", "L_end", one, wol=wol, **(aopt or {}))
    if one: A("s_branch L_done")
    stamp(A, 2, stamps)
    mP = sum(1 << i for i in list(range(s0)) + list(pl))
    rest = [i for i in range(s0, 64) if i not in pl]
    late = rest[::-1][0:2*nl:2] if nl else []
    mL = sum(1 << i for i in late); mE = sum(1 << i for i in rest) & ~mL
    mX = 0
    for m, n in ((mE, nx[0]), (mL, nx[1])):
        c = [i for i in range(xlim) if m >> i & 1][2:]
        mX |= sum(1 << c[(2*i + 1) * len(c) // (2*n)] for i in range(n))
    if mX: na = (11, 10, 11, 11, 11, 10, 0) if na[6] else na
    setm = lambda m: f"s_mov_b32 s4, {m & 0xffffffff:#x}\ns_mov_b32 s5, {m >> 32:#x}"
    srd_arg(A, S_W, A_WO, 4096*576*2)
    assert sum(na) == 64
    mk, left = [0]*7, list(na)
    for i in range(64):
        g = max(range(7), key=lambda x: (left[x], -x)); left[g] -= 1; mk[g] |= 1 << i
    A(f"""s_sub_u32 s{S_T1}, s{S_ROLE}, 4
    s_mul_i32 s{S_T0}, s{S_T1}, 27
    s_add_u32 s{S_T0}, s{S_T0}, s{S_RANK}
    s_mul_i32 s{S_T2}, s{S_T1}, 5
    s_add_u32 s{S_T2}, s{S_T2}, s{S_RANK}
    s_add_u32 s{S_T2}, s{S_T2}, {108 - 27}
    s_cmp_ge_u32 s{S_RANK}, 27
    s_cselect_b32 s{S_T0}, s{S_T2}, s{S_T0}
    s_cmp_ge_u32 s{S_T0}, {126 if na[6] or mX else 108}
    s_cbranch_scc1 L_done
    s_mul_i32 s{S_T1}, s{S_T0}, 57
    s_lshr_b32 s{S_T1}, s{S_T1}, 9
    s_mul_i32 s{S_T2}, s{S_T1}, 9
    s_sub_u32 s{OP.S_SL}, s{S_T0}, s{S_T2}
    s_and_b32 s{S_T3}, s{S_T1}, 1
    s_mov_b32 s{S_T2}, s{OP.S_SL}
    {setm(mX)}
    s_cmp_ge_u32 s{S_T1}, {12 if mX else 14}
    s_cbranch_scc1 L_bo2
    s_and_b32 s{OP.S_UA}, s{S_T1}, 1
    s_add_u32 s{OP.S_UA}, s{OP.S_UA}, 126
    s_lshr_b32 s{S_T1}, s{S_T1}, 1
    {chr(10).join(f"s_cmp_eq_u32 s{S_T1}, {g}{chr(10)}s_cselect_b32 s{OP.S_MK}, {mk[g] & 0xffffffff:#x}, s{OP.S_MK}{chr(10)}s_cselect_b32 s{OP.S_MK+1}, {mk[g] >> 32:#x}, s{OP.S_MK+1}" for g in range(7))}
    s_mov_b32 s{OP.S_CTX}, {CTXA}
    s_mov_b32 s{OP.S_FLG}, {F_CTXA}
    s_mov_b32 s{OP.S_FSH}, 4
    s_mov_b32 s{OP.S_COL}, 0
    s_mov_b32 s{OP.S_FC}, {OOB}
    s_branch L_op""")
    S_ID, S_PAR = S_T2, S_T3
    setm = lambda m: f"s_mov_b32 s4, {m & 0xffffffff:#x}\ns_mov_b32 s5, {m >> 32:#x}"
    A.label("L_bdie")
    if loc: A(f"{setm(mE)}\ns_cmp_eq_u32 s{S_ROLE}, 2\ns_cbranch_scc1 L_cr0\n{setm(mL)}\ns_branch L_cr0")
    A(f"""s_and_b32 s{S_PAR}, s{S_ROLE}, 1
    s_lshr_b32 s{S_ID}, s{S_RANK}, 2
    s_lshl_b32 s{S_ID}, s{S_ID}, 1
    s_and_b32 s{S_T0}, s{S_RANK}, 1
    s_add_u32 s{S_ID}, s{S_ID}, s{S_T0}
    {setm(mE)}
    s_bitcmp1_b32 s{S_RANK}, 1
    s_cbranch_scc1 L_crew
    {setm(mL)}
    s_branch L_crew""")
    A.label("L_part")
    A(f"{setm(mP)}\nL_cr0:\ns_bfe_u32 s{S_PAR}, s{S_RANK}, 0x10001\ns_lshr_b32 s{S_ID}, s{S_RANK}, 2\ns_bitcmp0_b32 s{S_RANK}, 0\ns_cselect_b32 s{S_T0}, 8, 0\ns_add_u32 s{S_ID}, s{S_ID}, s{S_T0}")
    A.label("L_crew")
    if "p" not in roles: A("s_branch L_done")
    A(f"""s_cmp_eq_u64 s[4:5], 0
    s_cbranch_scc1 L_done
    s_cmp_lt_u32 s{S_ID}, 9
    s_cbranch_scc1 L_bo
    s_mov_b64 s[{AT.S_SM}:{AT.S_SM+1}], s[4:5]
    s_sub_u32 s{AT.S_J}, s{S_ID}, 9
    s_lshl_b32 s{AT.S_J}, s{AT.S_J}, 1
    s_add_u32 s{AT.S_J}, s{AT.S_J}, s{S_PAR}
    s_mul_i32 s{S_T0}, s{S_WV}, 14
    s_add_u32 s{AT.S_J}, s{AT.S_J}, s{S_T0}""")
    AT.consts(A)
    A(f"s_lshl_b32 s{AT.S_DL}, s{S_ROLE}, 7\ns_add_u32 s{AT.S_DL}, s{AT.S_DL}, {F_FC}")
    AT.emit_B(A, "L_bt", "L_end", bfl, slp=slp, fc=fc, mx=mX)
    A("s_branch L_done")
    A.label("L_bo")
    A(f"s_andn2_b32 s4, s4, {mX & 0xffffffff:#x}\ns_andn2_b32 s5, s5, {mX >> 32:#x}\nL_bo2:")
    A(f"""s_mov_b64 s[{OP.S_MK}:{OP.S_MK+1}], s[4:5]
    s_mov_b32 s{OP.S_UA}, s{S_PAR}
    s_mov_b32 s{OP.S_SL}, s{S_ID}
    s_mov_b32 s{OP.S_CTX}, {CTXB}
    s_mov_b32 s{OP.S_FLG}, {F_CTXB}
    s_mov_b32 s{OP.S_FSH}, 1
    s_mov_b32 s{OP.S_COL}, 1152
    s_lshl_b32 s{OP.S_FC}, s{S_ROLE}, 7
    s_add_u32 s{OP.S_FC}, s{OP.S_FC}, {F_FC}
    s_lshl2_add_u32 s{S_T0}, s{S_RANK}, s{S_WV}
    s_cmp_eq_u32 s{S_T0}, 4
    s_cselect_b32 s{OP.S_FC}, s{OP.S_FC}, {OOB}""")
    srd_arg(A, S_W, B_WO, 4096*576*2)
    A.label("L_op")
    srd_arg(A, S_X, OUT, 2048*1152*2)
    OP.load_weights(A)
    stamp(A, 3, stamps)
    OP.run(A, "L_opl", "L_end", slp[0], slp[3], fc)
    A("s_branch L_done")
    A.label("L_team")
    A(f"s_load_dwordx8 s[88:95], s[0:1], {B_WQ*8}\ns_load_dwordx2 s[96:97], s[0:1], {B_MEM0*8}")
    T.emit_setup(A)
    T.emit_init_sentinels(A)
    A(f"v_lshrrev_b32 v0, 4, v{T.T16}\ns_waitcnt lgkmcnt(0)")
    def arrive(A):
        A(f"""s_cmp_eq_u32 s{S_WV}, 0
        s_cselect_b32 s98, {D_TEAM}, {OOB}
        v_mov_b32 v5, 1
        s_mov_b64 exec, 1
        buffer_atomic_add v5, v0, {buf(S_DBG, "s98")}
        s_mov_b64 exec, -1""")
        return 1
    def ask(A):
        A(f"v_and_b32 v5, 1, v0\nv_lshlrev_b32 v5, 6, v5\nbuffer_load_dword v5, v5, {buf(S_DBG, 0)} offset:{D_TEAM} sc1")
        return 1
    def ready(A):
        A(f"v_and_b32 v62, 1, v0\nv_lshlrev_b32 v63, 6, v62\nv_mul_u32_u24 v62, 24, v62\nv_sub_u32 v62, 32, v62\nv_cmp_ne_u32 vcc, v5, v62\ns_cbranch_vccz L_tok\nv_add_u32 v63, {D_TEAM}, v63")
        poll(A, 63, 5, 0, "v_cmp_ne_u32 vcc, v5, v62", "L_end", srd=S_DBG)
        A.label("L_tok")
        A(f"""v_mov_b32 v5, 0
        s_lshl_b32 s99, s{S_RANK}, 7
        s_add_u32 s99, s99, {F_BKV + (32 if half0 else 0)}
        buffer_load_dword v5, v5, {buf(S_WS, "s99")} sc1
        v_lshlrev_b32 v62, 7, v0
        s_getpc_b64 s[4:5]
        L_pc2:
        s_mov_b32 s40, s4
        s_and_b32 s41, s5, 0xffff
        s_mov_b32 s42, L_end-L_pc2
        s_mov_b32 s43, 0x20000
        buffer_load_dword v63, v62, {buf(40, 0)}""")
        T.emit_touch(A, 63, 62, 98, 100)
        A.srd(40, 96, 9216)
        A(f"buffer_load_dword v63, v62, {buf(40, 0)}")
        return 4
    kvw = lambda r, a: f"buffer_load_dword v{r}, v{a}, {buf(S_WS, 's98')} sc1"
    def warm0(A):
        A(f"v_readfirstlane_b32 s101, v5\ns_cmp_lt_u32 s{S_WV}, 2\ns_cselect_b32 s98, s{T.S_KV}, {OOB}\ns_cmp_eq_u32 s101, 1\ns_cselect_b32 s98, s98, {OOB}\n{kvw(63, 62)}")
        return 1
    assert lb and 32 % lb == 0 and npp <= 28
    T.emit_loader(A, ldfl, lorder, la, lb, npp, {32: arrive, 230: ask, 262: ready, 294: warm0})
    stamp(A, 1, stamps)
    T.emit_setup(A)
    def kv0(A):
        x, y = T.VX + 2, T.VX + 3
        A(f"s_cmp_eq_u32 s101, 1\ns_cbranch_scc1 L_kv0\nv_mov_b32 v{x}, 0")
        poll(A, x, y, "s99", f"v_cmp_ne_u32 vcc, 1, v{y}", "L_end", spin=T.S_SPIN, sleep=0)
        A(f"s_cmp_lt_u32 s{S_WV}, 2\ns_cselect_b32 s98, s{T.S_KV}, {OOB}\n{kvw(y, T.WRM)}\nL_kv0:")
    T.emit_mem0(A, kv0)
    stamp(A, 2, stamps)
    prof(A, "tm0")
    A(f"s_mov_b32 s{T.S_SPIN}, 0")
    if marks and "tm0" in marks: A(f"s_mov_b32 s{T.S_CNT1}, 0\ns_mov_b32 s{T.S_CNT2}, 0\ns_mov_b32 s{T.S_CNT3}, 0")
    kw = dict(stamps=bool(marks and "tm0" in marks), spin=SPIN_MAX, flags=True, half0=half0, **TEAM)
    kw.update(team_kw or {})
    T.emit_loops(A, "L_texit", "L_end", **kw)
    A.label("L_texit")
    prof(A, "tm1")
    if marks and "tm0" in marks: A(f"s_mul_i32 s100, s{T.S_CNT2}, 1000\ns_add_u32 s100, s100, s{T.S_CNT3}")
    A(f"s_lshl_b32 s{S_OUT}, s{S_RANK}, 7\ns_add_u32 s{S_OUT}, s{S_OUT}, {F_TEAM}")
    set_flag(A, S_OUT, 64)
    A.label("L_done")
    if wb == "all": A("s_waitcnt vmcnt(0)\nbuffer_wbl2 sc1\ns_waitcnt vmcnt(0)")
    if probe:
        lo, hi, idx, K = probe
        stamp(A, 4, True)
        A(f"""s_waitcnt lgkmcnt(0)
        s_cmp_lt_u32 s{S_XCC}, {lo}
        s_cbranch_scc1 L_end
        s_cmp_gt_u32 s{S_XCC}, {hi}
        s_cbranch_scc1 L_end
        s_sub_u32 s{S_T0}, s{64+2*abs(idx)}, s64
        s_mul_i32 s{S_T0}, s{S_T0}, {K}
        {f"s_mov_b32 s{S_T0}, {K}" if idx == 0 else ""}
        s_min_u32 s{S_T0}, s{S_T0}, 60000
        L_probe:
        s_sleep 8
        s_memrealtime s[4:5]
        s_waitcnt lgkmcnt(0)
        s_sub_u32 s4, s4, s64
        s_cmp_lt_u32 s4, s{S_T0}
        s_cbranch_scc1 L_probe""")
    elif stamps:
        stamp(A, 4, True)
        A(f"""s_waitcnt vmcnt(0) lgkmcnt(0)
        s_lshl_b32 s{S_T0}, s{S_XCC}, 5
        s_add_u32 s{S_T0}, s{S_T0}, s{S_RANK}
        s_lshl_b32 s{S_T0}, s{S_T0}, 2
        s_add_u32 s{S_T0}, s{S_T0}, s{S_WV}
        s_lshl_b32 s{S_T0}, s{S_T0}, 7
        s_add_u32 s{S_T0}, s{S_T0}, {STAMP}
        v_mov_b32 v1, 0""")
        if stamps == "dbg":
            A(f"s_not_b32 s64, s64\ns_mov_b64 exec, 1")
            def mx(word, reg, cond):
                L = A.uniq("L_ds")
                A(f"{cond}\ns_cbranch_scc0 {L}\nv_mov_b32 v2, s{reg}\nbuffer_atomic_umax v2, v1, {buf(S_DBG, 0)} offset:{4*word}\n{L}:")
            R_ = S_XCC
            mx(8, 64, f"s_cmp_ge_u32 s{R_}, 0"); mx(9, 66, f"s_cmp_eq_u32 s{R_}, 0"); mx(10, 68, f"s_cmp_eq_u32 s{R_}, 0"); mx(11, 72, f"s_cmp_eq_u32 s{R_}, 0")
            mx(12, 72, f"s_cmp_eq_u32 s{R_}, 1"); mx(13, 66, f"s_cmp_ge_u32 s{R_}, 4"); mx(14, 66, f"s_cmp_eq_u32 s{R_}, 2"); mx(15, 72, f"s_cmp_ge_u32 s{R_}, 2")
            A("s_not_b32 s64, s64\ns_mov_b64 exec, -1")
        for i in range(19): A(f"v_mov_b32 v2, s{64+2*i}\nbuffer_store_dword v2, v1, {buf(S_WS, s(S_T0))} offset:{4*i}")
    A.label("L_end")
    k = NAME + "_kernel"
    ref = open(os.path.join(os.path.dirname(os.path.abspath(__file__)), "..", NAME + ".s.ref")).read()
    hdr = ref[:ref.index("; Override launch geometry")]
    return hdr + f"""; Generated by gen/build.py (hand-written generator; see gen/*.py)
; @launch grid=(256,1,1) block=(256,1,1) lds=163840
.amdgcn_target "amdgcn-amd-amdhsa--gfx950"
.text
.globl {k}
.p2align 8
.type {k},@function
{k}:
{near(A.text())}s_endpgm
.section .rodata,"a"
.p2align 6
.amdhsa_kernel {k}
  .amdhsa_next_free_vgpr 512
  .amdhsa_next_free_sgpr 102
  .amdhsa_accum_offset 256
  .amdhsa_group_segment_fixed_size 0
  .amdhsa_kernarg_size 128
  .amdhsa_user_sgpr_count 2
  .amdhsa_user_sgpr_kernarg_segment_ptr 1
  .amdhsa_system_sgpr_workgroup_id_x 1
.end_amdhsa_kernel
"""

if __name__ == "__main__":
    out = os.path.join(os.path.dirname(os.path.abspath(__file__)), "..", NAME + ".s")
    open(out, "w").write(gen())
    print("written", out)
```
